```python
import torch

def _softmax(x, axis=-1):
    return torch.softmax(x, dim=axis)
def _gelu(x):
    return torch.nn.functional.gelu(x, approximate="tanh")
def _silu(x):
    return torch.nn.functional.silu(x)
def _sigmoid(x):
    return torch.sigmoid(x)
def _layernorm(x, axis=-1, eps=1e-5):
    m = x.mean(dim=axis, keepdim=True)
    v = x.var(dim=axis, keepdim=True, unbiased=False)
    return (x - m) / torch.sqrt(v + eps)
def _scatter_add(tgt, idx, src, axis=0):
    return tgt.clone().index_add_(axis, idx, src)
def _segment_sum(src, seg, n):
    out = torch.zeros((n,) + src.shape[1:], dtype=src.dtype)
    return out.index_add_(0, seg, src)
def _pad(x, pw):
    flat = tuple(v for pair in reversed(pw) for v in pair)
    return torch.nn.functional.pad(x, flat)

kernel_name = 'concat_heads__mha_block_cached__mha_block_cached__near_ridge'

def setup_inputs():

    _w = (lambda a: (lambda t: t.to(torch.bfloat16) if t.is_floating_point() else t)(torch.as_tensor(a)))
    def _A_setup():
        B, Sq, D = 8, 128, 576
        H, Sk, Dh = 32, 1024, 128
        return {
            "x": _w((lambda *s: torch.randn(*s, dtype=torch.bfloat16) * 0.8)(B, Sq, D)),
            "k_cache": _w((lambda *s: torch.randn(*s, dtype=torch.bfloat16) * 0.8)(B, H, Sk, Dh)),
            "v_cache": _w((lambda *s: torch.randn(*s, dtype=torch.bfloat16) * 0.05)(B, H, Sk, Dh)),
            "wq": _w((lambda *s: torch.randn(*s, dtype=torch.bfloat16) * 0.8)(D, H * Dh) * (D ** -0.5)),
            "wo": _w((lambda *s: torch.randn(*s, dtype=torch.bfloat16) * 0.05)(H * Dh, D) * ((H * Dh) ** -0.5)),
        }
    _A_in = _A_setup()

    def _B_setup():
        B, Sq, D = 8, 128, 576
        H, Sk, Dh = 32, 1024, 128
        return {
            "x": _w((lambda *s: torch.randn(*s, dtype=torch.bfloat16) * 0.8)(B, Sq, D)),
            "k_cache": _w((lambda *s: torch.randn(*s, dtype=torch.bfloat16) * 0.8)(B, H, Sk, Dh)),
            "v_cache": _w((lambda *s: torch.randn(*s, dtype=torch.bfloat16) * 0.05)(B, H, Sk, Dh)),
            "wq": _w((lambda *s: torch.randn(*s, dtype=torch.bfloat16) * 0.8)(D, H * Dh) * (D ** -0.5)),
            "wo": _w((lambda *s: torch.randn(*s, dtype=torch.bfloat16) * 0.05)(H * Dh, D) * ((H * Dh) ** -0.5)),
        }
    _B_in = _B_setup()

    return {
        "A_x": _A_in["x"],
        "A_k_cache": _A_in["k_cache"],
        "A_v_cache": _A_in["v_cache"],
        "A_wq": _A_in["wq"],
        "A_wo": _A_in["wo"],
        "B_x": _B_in["x"],
        "B_k_cache": _B_in["k_cache"],
        "B_v_cache": _B_in["v_cache"],
        "B_wq": _B_in["wq"],
        "B_wo": _B_in["wo"],
    }

def reference(A_x, A_k_cache, A_v_cache, A_wq, A_wo, B_x, B_k_cache, B_v_cache, B_wq, B_wo):
    def _A_ref(x, k_cache, v_cache, wq, wo):
        B, Sq, D = x.shape
        H, Dh = 32, 128
        q = (lambda x, *d: x.permute(*d))((x @ wq).reshape(B, Sq, H, Dh), 0, 2, 1, 3)
        scores = torch.einsum("bhqd,bhkd->bhqk", q, k_cache) * (Dh ** -0.5)
        p = _softmax(scores, axis=-1)
        o = torch.einsum("bhqk,bhkd->bhqd", p, v_cache)
        return (lambda x, *d: x.permute(*d))(o, 0, 2, 1, 3).reshape(B, Sq, H * Dh) @ wo

    def _B_ref(x, k_cache, v_cache, wq, wo):
        B, Sq, D = x.shape
        H, Dh = 32, 128
        q = (lambda x, *d: x.permute(*d))((x @ wq).reshape(B, Sq, H, Dh), 0, 2, 1, 3)
        scores = torch.einsum("bhqd,bhkd->bhqk", q, k_cache) * (Dh ** -0.5)
        p = _softmax(scores, axis=-1)
        o = torch.einsum("bhqk,bhkd->bhqd", p, v_cache)
        return (lambda x, *d: x.permute(*d))(o, 0, 2, 1, 3).reshape(B, Sq, H * Dh) @ wo

    a = _A_ref(A_x, A_k_cache, A_v_cache, A_wq, A_wo)
    b = _B_ref(B_x, B_k_cache, B_v_cache, B_wq, B_wo)
    return torch.concatenate([a, b], axis=-1)
```

```python
import sys

NAME = "concat_heads__mha_block_cached__mha_block_cached__near_ridge"
OUT = f"cdna_kernels/{NAME}.s"

L = []
def e(s=""):
    L.append(s)

def vr(a, n):
    return f"v[{a}:{a+n-1}]"
def ar(a, n):
    return f"a[{a}:{a+n-1}]"

HEADER = f"""; Kernarg layout for this problem (104 bytes, ptrs only, base s[0:1]):
; @launch kernel=attn_kernel grid=(512,1,1) block=(256,1,1) lds=81920
; @launch kernel=oproj_kernel grid=(256,1,1) block=(256,1,1) lds=147520
.amdgcn_target "amdgcn-amd-amdhsa--gfx950"
.text
"""

def gen_attn():
    e(".globl attn_kernel")
    e(".p2align 8")
    e(".type attn_kernel,@function")
    e("attn_kernel:")
    e("s_cmp_ge_u32 s2, 512")
    e("s_cbranch_scc1 L_attn_done")
    e("s_load_dwordx2 s[38:39], s[0:1], 96")
    e("s_and_b32 s3, s2, 7")
    e("s_and_b32 s4, s3, 1")
    e("s_lshr_b32 s3, s3, 1")
    e("s_lshr_b32 s47, s2, 3")
    e("s_and_b32 s6, s47, 7")
    e("s_lshl_b32 s3, s3, 3")
    e("s_add_u32 s6, s6, s3")
    e("s_lshr_b32 s5, s47, 3")
    e("s_mul_i32 s3, s4, 40")
    e("s_add_u32 s0, s0, s3")
    e("s_addc_u32 s1, s1, 0")
    e("s_load_dwordx8 s[28:35], s[0:1], 0")
    e("v_lshrrev_b32 v1, 6, v0")
    e("v_and_b32 v0, 63, v0")
    e("s_nop 0")
    e("v_readfirstlane_b32 s7, v1")
    e("v_lshrrev_b32 v1, 4, v0")
    e("v_and_b32 v2, 15, v0")
    e("v_lshlrev_b32 v3, 2, v1")
    e("v_xor_b32 v3, v3, v2")
    for j in range(4):
        e(f"v_xor_b32 v23, {j}, v3")
        e(f"v_lshlrev_b32 v23, 4, v23")
        e(f"v_lshl_add_u32 v{4+j}, v1, 8, v23")
        e(f"v_lshl_add_u32 v{18+j}, v1, 13, v23")
    e("v_and_b32 v23, 31, v0")
    e("v_lshrrev_b32 v22, 5, v0")
    e("v_and_b32 v8, 3, v23")
    e("v_lshlrev_b32 v8, 2, v8")
    e("v_bfe_u32 v9, v23, 2, 2")
    e("v_or_b32 v8, v8, v9")
    e("v_xor_b32 v8, v8, v22")
    e("v_lshlrev_b32 v8, 4, v8")
    e("v_lshl_add_u32 v8, v23, 8, v8")
    e("v_lshrrev_b32 v10, 2, v2")
    e("v_and_b32 v11, 1, v1")
    e("v_lshlrev_b32 v11, 1, v11")
    e("v_bfe_u32 v12, v2, 1, 1")
    e("v_or_b32 v11, v11, v12")
    e("v_and_b32 v12, 1, v2")
    e("v_lshlrev_b32 v12, 3, v12")
    e("v_xor_b32 v13, v11, v22")
    e("v_lshl_add_u32 v13, v10, 2, v13")
    e("v_lshl_add_u32 v13, v13, 4, v12")
    e("v_lshl_add_u32 v14, v22, 2, v10")
    e("v_lshl_add_u32 v9, v14, 8, v13")
    e("v_lshlrev_b32 v14, 1, v22")
    e("v_xor_b32 v13, v11, v14")
    e("v_lshl_add_u32 v13, v10, 2, v13")
    e("v_lshl_add_u32 v13, v13, 4, v12")
    e("v_lshl_add_u32 v14, v22, 3, v10")
    e("v_lshl_add_u32 v3, v14, 8, v13")
    for db in range(4):
        for u in range(2):
            e(f"v_xor_b32 v{10+2*db+u}, {(db<<6)^(u<<4)}, v3")
    e("s_lshl_b32 s3, s7, 5")
    e("v_add_u32 v23, s3, v23")
    e("v_mul_u32_u24 v23, 1152, v23")
    e("v_lshl_add_u32 v22, v22, 4, v23")
    e("s_waitcnt lgkmcnt(0)")
    e("s_mul_i32 s3, s5, 147456")
    e("s_add_u32 s20, s28, s3")
    e("s_addc_u32 s21, s29, 0")
    e("s_and_b32 s21, s21, 0xffff")
    e("s_mov_b32 s22, 147456")
    e("s_mov_b32 s23, 0x20000")
    e("s_lshl_b32 s3, s5, 5")
    e("s_add_u32 s3, s3, s6")
    e("s_lshl_b32 s3, s3, 18")
    e("s_add_u32 s8, s30, s3")
    e("s_addc_u32 s9, s31, 0")
    e("s_and_b32 s9, s9, 0xffff")
    e("s_mov_b32 s10, 262144")
    e("s_mov_b32 s11, 0x20000")
    e("s_add_u32 s12, s32, s3")
    e("s_addc_u32 s13, s33, 0")
    e("s_and_b32 s13, s13, 0xffff")
    e("s_mov_b32 s14, 262144")
    e("s_mov_b32 s15, 0x20000")
    e("s_mov_b32 s16, s34")
    e("s_and_b32 s17, s35, 0xffff")
    e("s_mov_b32 s18, 4718592")
    e("s_mov_b32 s19, 0x20000")
    e("s_lshl_b32 s3, s4, 3")
    e("s_add_u32 s3, s3, s5")
    e("s_lshl_b32 s3, s3, 20")
    e("s_lshl_b32 s47, s6, 8")
    e("s_add_u32 s3, s3, s47")
    e("s_add_u32 s24, s38, s3")
    e("s_addc_u32 s25, s39, 0")
    e("s_and_b32 s25, s25, 0xffff")
    e("s_mov_b32 s26, 1048576")
    e("s_mov_b32 s27, 0x20000")
    e("s_lshl_b32 s44, s7, 12")
    e("s_mov_b32 s46, 0x3e0293ee")

    XB = 88
    ACC = 24
    WF = 232
    for S in range(36):
        e(f"buffer_load_dwordx4 {vr(XB+4*S,4)}, v22, s[20:23], 0 offen offset:{32*S}")

    e("s_cmp_ge_u32 s7, 2")
    e("s_cbranch_scc1 L_pf_kv")
    e("s_lshl_b32 s48, s7, 18")
    e("s_lshl_b32 s3, s6, 8")
    e("s_add_u32 s48, s48, s3")
    e("s_lshl_b32 s49, s7, 13")
    def w_issue(T):
        slot = (T & 1) * 16384
        for j in range(8):
            e(f"s_add_u32 s3, s49, {slot + j*1024}")
            e(f"s_mov_b32 m0, s3")
            e(f"s_add_u32 s50, s48, {(64*T + 4*j)*8192}")
            e(f"buffer_load_dwordx4 v{18+(j&3)}, s[16:19], s50 offen lds")
    w_issue(0)
    e("s_branch L_qp_start")
    e("L_pf_kv:")
    e("s_sub_u32 s48, s7, 2")
    e("s_lshl_b32 s48, s48, 13")
    for (srd, toff, slot) in ((8, 0, 2), (12, 0, 3), (8, 16384, 4)):
        for half in range(2):
            e(f"s_add_u32 s3, s48, {slot*16384 + half*4096}")
            e(f"s_mov_b32 m0, s3")
            e(f"s_add_u32 s50, s48, {toff + half*4096}")
            for j in range(4):
                e(f"buffer_load_dwordx4 v{4+j}, s[{srd}:{srd+3}], s50 offen offset:{j*1024} lds")
    e("s_waitcnt vmcnt(24)")
    e("L_qp_start:")
    for T in range(9):
        slot = (T & 1) * 16384
        e("s_cmp_ge_u32 s7, 2")
        e(f"s_cbranch_scc1 L_qp_b{T}")
        e("s_waitcnt vmcnt(0)")
        e(f"L_qp_b{T}:")
        e("s_barrier")
        if T < 8:
            e("s_cmp_ge_u32 s7, 2")
            e(f"s_cbranch_scc1 L_qp_c{T}")
            w_issue(T + 1)
            e(f"L_qp_c{T}:")
        frs = [(s, db) for s in range(4) for db in range(4)]
        NB = 6
        def rd(n):
            s, db = frs[n]
            f = WF + 4 * (n % NB)
            for u in range(2):
                e(f"ds_read_b64_tr_b16 {vr(f+2*u,2)}, v{10+2*db+u} offset:{slot + s*4096 + u*1024}")
        for n in range(NB - 1):
            rd(n)
        for n in range(16):
            s, db = frs[n]
            issued = min(16, n + NB - 1)
            if n + NB - 1 < 16:
                rd(n + NB - 1)
                issued = n + NB
            rem = (issued - (n + 1)) * 2
            e(f"s_waitcnt lgkmcnt({rem})")
            f = WF + 4 * (n % NB)
            c = "0" if (T == 0 and s == 0) else vr(ACC + 16*db, 16)
            e(f"v_mfma_f32_32x32x16_bf16 {vr(ACC+16*db,16)}, {vr(f,4)}, {vr(XB+4*(4*T+s),4)}, {c}")
    VQ = 224
    e("s_nop 15")
    for db in range(4):
        for t in range(2):
            F = VQ + 4 * (2*db + t)
            a = ACC + 16*db + 8*t
            for j in range(4):
                e(f"v_cvt_pk_bf16_f32 v{F+j}, v{a+2*j}, v{a+2*j+1}")
    e("s_nop 1")
    for sp in range(8):
        F = VQ + 4*sp
        e(f"v_permlane32_swap_b32 v{F}, v{F+2}")
        e(f"v_permlane32_swap_b32 v{F+1}, v{F+3}")
    VO = 24; VS = 88; VP = 120; VF = 136; VT = 200
    for i in range(64):
        e(f"v_mov_b32 v{VO+i}, 0")
    e("v_mov_b32 v18, 0xff800000")
    e("v_mov_b32 v19, 0")
    e("s_barrier")
    e("s_mov_b32 m0, s44")
    e("s_add_u32 s50, s44, 16384")
    for j in range(4):
        e(f"buffer_load_dwordx4 v{4+j}, s[12:15], s50 offen offset:{j*1024} lds")
    e("s_add_u32 s42, s44, 32768")
    e("s_add_u32 s43, s44, 32768")
    e("s_mov_b32 s40, 32768")
    e("s_mov_b32 s41, 16384")
    e("s_mov_b32 s45, 0")
    e("L_loop:")
    e("s_waitcnt vmcnt(12)")
    e("s_barrier")
    e("s_add_u32 s3, s41, s44")
    e("s_mov_b32 m0, s3")
    e("v_add_u32 v10, s40, v8")
    for j in range(4):
        e(f"buffer_load_dwordx4 v{4+j}, s[8:11], s42 offen offset:{j*1024} lds")
    e("s_add_u32 s42, s42, 16384")
    for s in range(1, 8):
        e(f"v_xor_b32 v{10+s}, {s<<5}, v10")
    e("s_mov_b32 s41, s40")
    e("s_add_u32 s40, s40, 16384")
    e("s_cmp_ge_u32 s40, 81920")
    e("s_cselect_b32 s40, 0, s40")
    frs = [(s, kb) for s in range(8) for kb in range(2)]
    def krd(n):
        s, kb = frs[n]
        e(f"ds_read_b128 {vr(VF+4*n,4)}, v{10+s} offset:{kb*8192}")
    for n in range(8):
        krd(n)
    for n in range(16):
        s, kb = frs[n]
        if n < 8:
            krd(n + 8)
            e("s_waitcnt lgkmcnt(8)")
        else:
            e(f"s_waitcnt lgkmcnt({15-n})")
        c = "0" if s == 0 else vr(VS+16*kb, 16)
        e(f"v_mfma_f32_32x32x16_bf16 {vr(VS+16*kb,16)}, {vr(VF+4*n,4)}, {vr(VQ+4*s,4)}, {c}")
    e("s_waitcnt vmcnt(12)")
    e("s_barrier")
    e("s_add_u32 s3, s41, s44")
    e("s_mov_b32 m0, s3")
    e("v_add_u32 v10, s40, v9")
    for j in range(4):
        e(f"buffer_load_dwordx4 v{4+j}, s[12:15], s43 offen offset:{j*1024} lds")
    e("s_add_u32 s43, s43, 16384")
    for k in range(1, 8):
        db, u = k >> 1, k & 1
        e(f"v_xor_b32 v{10+k}, {(db<<6)^(u<<5)}, v10")
    e("s_mov_b32 s41, s40")
    e("s_add_u32 s40, s40, 16384")
    e("s_cmp_ge_u32 s40, 81920")
    e("s_cselect_b32 s40, 0, s40")
    vfr = [(kb, t, db) for kb in range(2) for t in range(2) for db in range(4)]
    def vrd(n):
        kb, t, db = vfr[n]
        for u in range(2):
            e(f"ds_read_b64_tr_b16 {vr(VF+4*n+2*u,2)}, v{10+2*db+u} offset:{kb*8192+t*4096+u*2048}")
    for n in range(6):
        vrd(n)
    e("s_nop 3")
    for c in range(4):
        b0 = VS + 8*c
        e(f"v_max3_f32 v{VT+c}, v{b0}, v{b0+1}, v{b0+2}")
    for c in range(4):
        b0 = VS + 8*c
        e(f"v_max3_f32 v{VT+c}, v{VT+c}, v{b0+3}, v{b0+4}")
    for c in range(4):
        b0 = VS + 8*c
        e(f"v_max3_f32 v{VT+c}, v{VT+c}, v{b0+5}, v{b0+6}")
    for c in range(4):
        b0 = VS + 8*c
        e(f"v_max_f32 v{VT+c}, v{VT+c}, v{b0+7}")
    e(f"v_max3_f32 v{VT}, v{VT}, v{VT+1}, v{VT+2}")
    e(f"v_max_f32 v{VT}, v{VT}, v{VT+3}")
    e(f"v_mov_b32 v{VT+1}, v{VT}")
    e("s_nop 1")
    e(f"v_permlane32_swap_b32 v{VT}, v{VT+1}")
    e(f"v_max_f32 v{VT}, v{VT}, v{VT+1}")
    e(f"v_mul_f32 v{VT}, s46, v{VT}")
    e(f"v_max_f32 v{VT+1}, v18, v{VT}")
    e(f"v_sub_f32 v{VT+2}, v18, v{VT+1}")
    e(f"v_exp_f32 v20, v{VT+2}")
    e(f"v_mov_b32 v18, v{VT+1}")
    for i in range(32):
        e(f"v_fma_f32 v{VS+i}, v{VS+i}, s46, -v18")
    for i in range(32):
        e(f"v_exp_f32 v{VS+i}, v{VS+i}")
    for c in range(4):
        b0 = VS + 8*c
        e(f"v_add_f32 v{VT+c}, v{b0}, v{b0+1}")
    for k in range(2, 8):
        for c in range(4):
            b0 = VS + 8*c
            e(f"v_add_f32 v{VT+c}, v{VT+c}, v{b0+k}")
    e(f"v_add_f32 v{VT}, v{VT}, v{VT+1}")
    e(f"v_add_f32 v{VT+2}, v{VT+2}, v{VT+3}")
    e(f"v_add_f32 v{VT}, v{VT}, v{VT+2}")
    e(f"v_fma_f32 v19, v19, v20, v{VT}")
    for k in range(16):
        e(f"v_cvt_pk_bf16_f32 v{VP+k}, v{VS+2*k}, v{VS+2*k+1}")
    for i in range(64):
        e(f"v_mul_f32 v{VO+i}, v20, v{VO+i}")
    for n in range(16):
        kb, t, db = vfr[n]
        if n + 6 < 16:
            vrd(n + 6)
            e("s_waitcnt lgkmcnt(12)")
        else:
            e(f"s_waitcnt lgkmcnt({(15-n)*2})")
        p = VP + 4*(2*kb + t)
        e(f"v_mfma_f32_32x32x16_bf16 {vr(VO+16*db,16)}, {vr(VF+4*n,4)}, {vr(p,4)}, {vr(VO+16*db,16)}")
    e("s_add_u32 s45, s45, 1")
    e("s_cmp_lt_u32 s45, 16")
    e("s_cbranch_scc1 L_loop")
    e(f"v_mov_b32 v{VT+1}, v19")
    e("s_nop 1")
    e(f"v_permlane32_swap_b32 v19, v{VT+1}")
    e(f"v_add_f32 v19, v19, v{VT+1}")
    e("v_rcp_f32 v20, v19")
    e("v_and_b32 v1, 31, v0")
    e("s_lshl_b32 s3, s7, 5")
    e("v_add_u32 v1, s3, v1")
    e("v_lshlrev_b32 v1, 13, v1")
    e("v_lshrrev_b32 v2, 5, v0")
    e("v_lshl_add_u32 v1, v2, 4, v1")
    e("s_nop 7")
    for i in range(64):
        e(f"v_mul_f32 v{VO+i}, v20, v{VO+i}")
    for db in range(4):
        for t in range(2):
            F = VF + 4 * (2*db + t)
            a = VO + 16*db + 8*t
            for j in range(4):
                e(f"v_cvt_pk_bf16_f32 v{F+j}, v{a+2*j}, v{a+2*j+1}")
    e("s_nop 1")
    for sp in range(8):
        F = VF + 4*sp
        e(f"v_permlane32_swap_b32 v{F}, v{F+2}")
        e(f"v_permlane32_swap_b32 v{F+1}, v{F+3}")
    for sp in range(8):
        F = VF + 4*sp
        e(f"buffer_store_dwordx4 {vr(F,4)}, v1, s[24:27], 0 offen offset:{32*sp}")
    e("s_waitcnt vmcnt(0)")
    e("L_attn_done:")
    e("s_endpgm")

def gen_oproj():
    e(".globl oproj_kernel")
    e(".p2align 8")
    e(".type oproj_kernel,@function")
    e("oproj_kernel:")
    e("s_cmp_ge_u32 s2, 256")
    e("s_cbranch_scc1 L_op_done")
    e("s_load_dwordx2 s[38:39], s[0:1], 96")
    e("s_load_dwordx2 s[36:37], s[0:1], 80")
    e("s_and_b32 s3, s2, 7")
    e("s_lshr_b32 s47, s2, 3")
    e("s_and_b32 s4, s47, 3")
    e("s_lshl_b32 s3, s3, 2")
    e("s_add_u32 s4, s4, s3")
    e("s_lshr_b32 s5, s47, 2")
    e("s_lshr_b32 s6, s4, 4")
    e("s_mul_i32 s3, s6, 40")
    e("s_add_u32 s0, s0, s3")
    e("s_addc_u32 s1, s1, 0")
    e("s_load_dwordx2 s[28:29], s[0:1], 32")
    e("v_lshrrev_b32 v1, 6, v0")
    e("v_and_b32 v0, 63, v0")
    e("s_nop 0")
    e("v_readfirstlane_b32 s7, v1")
    e("s_mov_b32 s3, 7282")
    for k in range(9):
        e(f"v_add_u32 v1, {64*k}, v0")
        e("v_mul_lo_u32 v2, v1, s3")
        e("v_lshrrev_b32 v2, 16, v2")
        e("v_mul_u32_u24 v3, 9, v2")
        e("v_sub_u32 v3, v1, v3")
        e("v_mul_u32_u24 v2, 1152, v2")
        e(f"v_lshl_add_u32 v{4+k}, v3, 4, v2")
    e("v_and_b32 v1, 15, v0")
    e("v_lshrrev_b32 v2, 4, v0")
    e("v_lshlrev_b32 v3, 13, v1")
    e("v_lshl_add_u32 v13, v2, 4, v3")
    for mi in range(1, 4):
        e(f"v_add_u32 v{13+mi}, {131072*mi}, v13")
    e("v_lshrrev_b32 v3, 2, v1")
    e("v_lshl_add_u32 v3, v2, 3, v3")
    e("v_mul_u32_u24 v3, 144, v3")
    e("v_and_b32 v18, 3, v1")
    e("v_lshl_add_u32 v3, v18, 3, v3")
    e("s_mul_i32 s44, s7, 36864")
    e("v_add_u32 v17, s44, v3")
    e("s_waitcnt lgkmcnt(0)")
    e("s_lshl_b32 s3, s4, 19")
    e("s_add_u32 s8, s38, s3")
    e("s_addc_u32 s9, s39, 0")
    e("s_and_b32 s9, s9, 0xffff")
    e("s_mov_b32 s10, 524288")
    e("s_mov_b32 s11, 0x20000")
    e("s_mov_b32 s12, s28")
    e("s_and_b32 s13, s29, 0xffff")
    e("s_mov_b32 s14, 4718592")
    e("s_mov_b32 s15, 0x20000")
    e("s_mov_b32 s16, s36")
    e("s_and_b32 s17, s37, 0xffff")
    e("s_mov_b32 s18, 2359296")
    e("s_mov_b32 s19, 0x20000")
    e("s_mul_i32 s42, s7, 1179648")
    e("s_mul_i32 s3, s5, 144")
    e("s_add_u32 s42, s42, s3")
    e("s_lshl_b32 s43, s7, 11")
    for i in range(80):
        e(f"v_accvgpr_write_b32 a{i}, 0")
    OB = 32; WFR = 160
    def issue(slot):
        for k in range(9):
            e(f"s_add_u32 s3, s44, {slot*9216 + k*1024}")
            e("s_mov_b32 m0, s3")
            e("s_nop 0")
            e(f"buffer_load_dwordx4 v{4+k}, s[12:15], s42 offen lds")
        e("s_add_u32 s42, s42, 73728")
        for s in range(2):
            for mi in range(4):
                e(f"buffer_load_dwordx4 {vr(OB+32*slot+16*s+4*mi,4)}, v{13+mi}, s[8:11], s43 offen offset:{64*s}")
        e("s_add_u32 s43, s43, 128")
    def compute(slot):
        def rd(s, ni):
            for u in range(2):
                e(f"ds_read_b64_tr_b16 {vr(WFR+20*s+4*ni+2*u,2)}, v17 offset:{slot*9216+s*4608+u*576+ni*32}")
        for ni in range(5):
            rd(0, ni)
        for s in range(2):
            for ni in range(5):
                if s == 0:
                    rd(1, ni)
                    e("s_waitcnt lgkmcnt(10)")
                else:
                    e(f"s_waitcnt lgkmcnt({8-2*ni})")
                for mi in range(4):
                    a = 16*ni + 4*mi
                    e(f"v_mfma_f32_16x16x32_bf16 {ar(a,4)}, {vr(WFR+20*s+4*ni,4)}, {vr(OB+32*slot+16*s+4*mi,4)}, {ar(a,4)}")
    issue(0); issue(1); issue(2)
    e("s_mov_b32 s45, 0")
    e("L_op_loop:")
    for c in range(4):
        issue((c + 3) & 3)
        e("s_waitcnt vmcnt(51)")
        compute(c)
    e("s_add_u32 s45, s45, 1")
    e("s_cmp_lt_u32 s45, 3")
    e("s_cbranch_scc1 L_op_loop")
    issue(3)
    e("s_waitcnt vmcnt(51)")
    compute(0)
    e("s_waitcnt vmcnt(34)")
    compute(1)
    e("s_waitcnt vmcnt(17)")
    compute(2)
    e("s_waitcnt vmcnt(0)")
    compute(3)
    e("s_nop 15")
    e("s_barrier")
    e("s_mul_i32 s3, s7, 20480")
    e("v_lshlrev_b32 v1, 4, v0")
    e("v_add_u32 v2, s3, v1")
    for t in range(20):
        e(f"ds_write_b128 v2, {ar(4*t,4)} offset:{t*1024}")
    e("s_waitcnt lgkmcnt(0)")
    e("s_barrier")
    e("s_lshl_b32 s3, s7, 10")
    e("v_add_u32 v2, s3, v1")
    e("v_add_u32 v3, 40960, v2")
    for ni in range(5):
        for p in range(4):
            e(f"ds_read_b128 {vr(32+16*ni+4*p,4)}, v{2+(p>>1)} offset:{(p&1)*20480 + ni*4096}")
        if ni == 2:
            e("s_waitcnt lgkmcnt(0)")
    e("s_and_b32 s3, s4, 15")
    e("s_lshl_b32 s3, s3, 6")
    e("s_lshl_b32 s47, s7, 4")
    e("s_add_u32 s3, s3, s47")
    e("v_and_b32 v1, 15, v0")
    e("v_add_u32 v1, s3, v1")
    e("v_mul_u32_u24 v1, 2304, v1")
    e("v_lshrrev_b32 v3, 4, v0")
    e("v_lshl_add_u32 v1, v3, 3, v1")
    e("s_mul_i32 s3, s6, 1152")
    e("s_mul_i32 s47, s5, 144")
    e("s_add_u32 s3, s3, s47")
    e("v_add_u32 v1, s3, v1")
    e("s_waitcnt lgkmcnt(0)")
    for ni in range(5):
        b0 = 32 + 16*ni
        for r in range(4):
            e(f"v_add_f32 v{b0+r}, v{b0+r}, v{b0+4+r}")
            e(f"v_add_f32 v{b0+8+r}, v{b0+8+r}, v{b0+12+r}")
        for r in range(4):
            e(f"v_add_f32 v{b0+r}, v{b0+r}, v{b0+8+r}")
        e(f"v_cvt_pk_bf16_f32 v{b0+4}, v{b0}, v{b0+1}")
        e(f"v_cvt_pk_bf16_f32 v{b0+5}, v{b0+2}, v{b0+3}")
        if ni == 4:
            e("s_mov_b64 exec, 0xffffffff")
        e(f"buffer_store_dwordx2 {vr(b0+4,2)}, v1, s[16:19], 0 offen offset:{32*ni}")
    e("s_waitcnt vmcnt(0)")
    e("L_op_done:")
    e("s_endpgm")

def desc(name, vgpr, accum, sgpr=64):
    e(f".amdhsa_kernel {name}")
    e(f"  .amdhsa_next_free_vgpr {vgpr}")
    e(f"  .amdhsa_next_free_sgpr {sgpr}")
    e(f"  .amdhsa_accum_offset {accum}")
    e("  .amdhsa_group_segment_fixed_size 0")
    e("  .amdhsa_kernarg_size 104")
    e("  .amdhsa_user_sgpr_count 2")
    e("  .amdhsa_user_sgpr_kernarg_segment_ptr 1")
    e("  .amdhsa_system_sgpr_workgroup_id_x 1")
    e(".end_amdhsa_kernel")

gen_attn()
gen_oproj()
e('.section .rodata,"a"')
e(".p2align 6")
desc("attn_kernel", 256, 256)
e(".p2align 6")
desc("oproj_kernel", 280, 200)

with open(sys.argv[1] if len(sys.argv) > 1 else OUT, "w") as f:
    f.write(HEADER + "\n".join(L) + "\n")
```

```python
import sys, os

NAME = "concat_heads__mha_block_cached__mha_block_cached__near_ridge"
OUT = f"cdna_kernels/{NAME}.s"
DIAG = int(os.environ.get("DIAG", "0"))
NT = " nt" if int(os.environ.get("NT", "0")) else ""

L = []
def e(s=""):
    L.append(s)

def stamp(idx):
    if not DIAG:
        return
    e(f"s_memrealtime s[{64+2*idx}:{65+2*idx}]")
    e("s_waitcnt lgkmcnt(0)")

def stamp_flush(n, base):
    if not DIAG:
        return
    lab = f"L_st_{len(L)}"
    e("s_cmp_lg_u32 s7, 0")
    e(f"s_cbranch_scc1 {lab}")
    e("s_mov_b64 exec, 1")
    e("s_lshl_b32 s62, s2, 7")
    e(f"s_add_u32 s62, s62, {base}")
    e("v_mov_b32 v192, s62")
    for i in range(n):
        e(f"v_mov_b32 v190, s{64+2*i}")
        e(f"v_mov_b32 v191, s{65+2*i}")
        e(f"global_store_dwordx2 v192, v[190:191], s[38:39] offset:{8*i}")
        e("s_nop 1")
    e("s_waitcnt vmcnt(0)")
    e(f"{lab}:")

def vr(a, n):
    return f"v[{a}:{a+n-1}]"
def ar(a, n):
    return f"a[{a}:{a+n-1}]"

HEADER = f"""; Kernarg layout for this problem (104 bytes, ptrs only, base s[0:1]):
; @launch kernel=attn_kernel grid=(512,1,1) block=(256,1,1) lds=81920
; @launch kernel=oproj_kernel grid=(256,1,1) block=(256,1,1) lds=131072
.amdgcn_target "amdgcn-amd-amdhsa--gfx950"
.text
"""

def gen_attn():
    e(".globl attn_kernel")
    e(".p2align 8")
    e(".type attn_kernel,@function")
    e("attn_kernel:")
    e("s_cmp_ge_u32 s2, 512")
    e("s_cbranch_scc1 L_attn_done")
    e("s_load_dwordx2 s[38:39], s[0:1], 96")
    e("s_and_b32 s3, s2, 7")
    e("s_and_b32 s4, s3, 1")
    e("s_lshr_b32 s3, s3, 1")
    e("s_lshr_b32 s47, s2, 3")
    e("s_and_b32 s6, s47, 7")
    e("s_lshl_b32 s3, s3, 3")
    e("s_add_u32 s6, s6, s3")
    e("s_lshr_b32 s5, s47, 3")
    e("s_mul_i32 s3, s4, 40")
    e("s_add_u32 s0, s0, s3")
    e("s_addc_u32 s1, s1, 0")
    e("s_load_dwordx8 s[28:35], s[0:1], 0")
    e("v_lshrrev_b32 v1, 6, v0")
    e("v_and_b32 v0, 63, v0")
    e("s_nop 0")
    e("v_readfirstlane_b32 s7, v1")
    e("v_lshrrev_b32 v1, 4, v0")
    e("v_and_b32 v2, 15, v0")
    e("v_lshlrev_b32 v3, 2, v1")
    e("v_xor_b32 v3, v3, v2")
    for j in range(4):
        e(f"v_xor_b32 v23, {j}, v3")
        e(f"v_lshlrev_b32 v23, 4, v23")
        e(f"v_lshl_add_u32 v{4+j}, v1, 8, v23")
        e(f"v_lshl_add_u32 v{18+j}, v1, 13, v23")
    e("v_lshrrev_b32 v22, 3, v0")
    e("v_mul_u32_u24 v22, 1152, v22")
    e("v_and_b32 v23, 7, v0")
    e("v_xor_b32 v23, v23, v1")
    e("v_lshl_add_u32 v200, v23, 4, v22")
    e("v_xor_b32 v23, 4, v23")
    e("v_lshl_add_u32 v201, v23, 4, v22")
    e("v_and_b32 v23, 31, v0")
    e("v_lshrrev_b32 v22, 5, v0")
    e("v_and_b32 v8, 3, v23")
    e("v_lshlrev_b32 v8, 2, v8")
    e("v_bfe_u32 v9, v23, 2, 2")
    e("v_or_b32 v8, v8, v9")
    e("v_xor_b32 v8, v8, v22")
    e("v_lshlrev_b32 v8, 4, v8")
    e("v_lshl_add_u32 v8, v23, 8, v8")
    e("v_bfe_u32 v9, v23, 1, 3")
    e("v_xor_b32 v9, v9, v22")
    e("v_lshlrev_b32 v9, 4, v9")
    e("v_lshl_add_u32 v9, v23, 7, v9")
    e("s_lshl_b32 s3, s7, 12")
    e("v_add_u32 v202, s3, v9")
    for s in range(1, 4):
        e(f"v_xor_b32 v{202+s}, {s<<5}, v202")
    e("v_lshrrev_b32 v10, 2, v2")
    e("v_and_b32 v11, 1, v1")
    e("v_lshlrev_b32 v11, 1, v11")
    e("v_bfe_u32 v12, v2, 1, 1")
    e("v_or_b32 v11, v11, v12")
    e("v_and_b32 v12, 1, v2")
    e("v_lshlrev_b32 v12, 3, v12")
    e("v_xor_b32 v13, v11, v22")
    e("v_lshl_add_u32 v13, v10, 2, v13")
    e("v_lshl_add_u32 v13, v13, 4, v12")
    e("v_lshl_add_u32 v14, v22, 2, v10")
    e("v_lshl_add_u32 v9, v14, 8, v13")
    e("v_lshlrev_b32 v14, 1, v22")
    e("v_xor_b32 v13, v11, v14")
    e("v_lshl_add_u32 v13, v10, 2, v13")
    e("v_lshl_add_u32 v13, v13, 4, v12")
    e("v_lshl_add_u32 v14, v22, 3, v10")
    e("v_lshl_add_u32 v3, v14, 8, v13")
    for db in range(4):
        for u in range(2):
            e(f"v_xor_b32 v{10+2*db+u}, {(db<<6)^(u<<4)}, v3")
            e(f"v_add_u32 v{206+2*db+u}, 65536, v{10+2*db+u}")
    for s in range(4):
        e(f"v_add_u32 v{214+s}, 65536, v{202+s}")
    e("s_waitcnt lgkmcnt(0)")
    e("s_mul_i32 s3, s5, 147456")
    e("s_add_u32 s20, s28, s3")
    e("s_addc_u32 s21, s29, 0")
    e("s_and_b32 s21, s21, 0xffff")
    e("s_mov_b32 s22, 147456")
    e("s_mov_b32 s23, 0x20000")
    e("s_lshl_b32 s3, s5, 5")
    e("s_add_u32 s3, s3, s6")
    e("s_lshl_b32 s3, s3, 18")
    e("s_add_u32 s8, s30, s3")
    e("s_addc_u32 s9, s31, 0")
    e("s_and_b32 s9, s9, 0xffff")
    e("s_mov_b32 s10, 262144")
    e("s_mov_b32 s11, 0x20000")
    e("s_add_u32 s12, s32, s3")
    e("s_addc_u32 s13, s33, 0")
    e("s_and_b32 s13, s13, 0xffff")
    e("s_mov_b32 s14, 262144")
    e("s_mov_b32 s15, 0x20000")
    e("s_mov_b32 s16, s34")
    e("s_and_b32 s17, s35, 0xffff")
    e("s_mov_b32 s18, 4718592")
    e("s_mov_b32 s19, 0x20000")
    e("s_lshl_b32 s3, s4, 3")
    e("s_add_u32 s3, s3, s5")
    e("s_lshl_b32 s3, s3, 20")
    e("s_lshl_b32 s47, s6, 12")
    e("s_add_u32 s3, s3, s47")
    e("s_add_u32 s24, s38, s3")
    e("s_addc_u32 s25, s39, 0")
    e("s_and_b32 s25, s25, 0xffff")
    e("s_mov_b32 s26, 1048576")
    e("s_mov_b32 s27, 0x20000")
    e("s_lshl_b32 s44, s7, 12")
    e("s_mov_b32 s46, 0x3e0293ee")
    e("s_lshl_b32 s48, s7, 17")
    e("s_lshl_b32 s3, s6, 8")
    e("s_add_u32 s48, s48, s3")
    e("s_mul_i32 s49, s7, 36864")

    ACC = 24
    XF = 88
    WF = 104
    VO = 24; VS = 88; VP = 120; VF = 136; VT = 200; VQ = 224

    def issue_static(t):
        slot = (t % 5) * 16384
        if t < 18:
            T = t >> 1
            if t & 1 == 0:
                for j in range(4):
                    e(f"s_add_u32 s3, s44, {slot + j*1024}")
                    e("s_mov_b32 m0, s3")
                    e(f"s_add_u32 s50, s49, {j*9216 + 128*T}")
                    e(f"buffer_load_dwordx4 v{200+(j&1)}, s[20:23], s50 offen lds")
            else:
                for j in range(4):
                    e(f"s_add_u32 s3, s44, {slot + j*1024}")
                    e("s_mov_b32 m0, s3")
                    e(f"s_add_u32 s50, s48, {(64*T + 4*j)*8192}")
                    e(f"buffer_load_dwordx4 v{18+j}, s[16:19], s50 offen lds")
        else:
            i = (t - 18) >> 1
            srd = 8 if ((t - 18) & 1) == 0 else 12
            e(f"s_add_u32 s3, s44, {slot}")
            e("s_mov_b32 m0, s3")
            e(f"s_add_u32 s50, s44, {i*16384}")
            for j in range(4):
                e(f"buffer_load_dwordx4 v{4+j}, s[{srd}:{srd+3}], s50 offen offset:{j*1024}{NT} lds")

    stamp(0)
    for t in range(4):
        issue_static(t)
    for t in range(18):
        T = t >> 1
        sl = t % 5
        slot = sl * 16384
        e("s_waitcnt vmcnt(12)")
        e("s_barrier")
        issue_static(t + 4)
        if t & 1 == 0:
            for s in range(4):
                if sl < 4:
                    e(f"ds_read_b128 {vr(XF+4*s,4)}, v{202+s} offset:{slot}")
                else:
                    e(f"ds_read_b128 {vr(XF+4*s,4)}, v{214+s}")
            e("s_waitcnt lgkmcnt(0)")
        else:
            frs = [(s, db) for s in range(4) for db in range(4)]
            NB = 6
            def rd(n):
                s, db = frs[n]
                f = WF + 4 * (n % NB)
                for u in range(2):
                    if sl < 4:
                        e(f"ds_read_b64_tr_b16 {vr(f+2*u,2)}, v{10+2*db+u} offset:{slot + s*4096 + u*1024}")
                    else:
                        e(f"ds_read_b64_tr_b16 {vr(f+2*u,2)}, v{206+2*db+u} offset:{s*4096 + u*1024}")
            for n in range(NB - 1):
                rd(n)
            for n in range(16):
                s, db = frs[n]
                issued = min(16, n + NB - 1)
                if n + NB - 1 < 16:
                    rd(n + NB - 1)
                    issued = n + NB
                rem = (issued - (n + 1)) * 2
                e(f"s_waitcnt lgkmcnt({rem})")
                f = WF + 4 * (n % NB)
                c = "0" if (T == 0 and s == 0) else vr(ACC + 16*db, 16)
                e(f"v_mfma_f32_32x32x16_bf16 {vr(ACC+16*db,16)}, {vr(f,4)}, {vr(XF+4*s,4)}, {c}")
    stamp(1)
    e("s_nop 15")
    for db in range(4):
        for t in range(2):
            F = VQ + 4 * (2*db + t)
            a = ACC + 16*db + 8*t
            for j in range(4):
                e(f"v_cvt_pk_bf16_f32 v{F+j}, v{a+2*j}, v{a+2*j+1}")
    e("s_nop 1")
    for sp in range(8):
        F = VQ + 4*sp
        e(f"v_permlane32_swap_b32 v{F}, v{F+2}")
        e(f"v_permlane32_swap_b32 v{F+1}, v{F+3}")
    for i in range(64):
        e(f"v_mov_b32 v{VO+i}, 0")
    e("v_mov_b32 v18, 0xff800000")
    e("v_mov_b32 v19, 0")
    e("s_add_u32 s42, s44, 32768")
    e("s_add_u32 s43, s44, 32768")
    e(f"s_mov_b32 s40, {(18%5)*16384}")
    e(f"s_mov_b32 s41, {(22%5)*16384}")
    e("s_mov_b32 s45, 0")
    e("L_loop:")
    e("s_waitcnt vmcnt(12)")
    e("s_barrier")
    e("s_add_u32 s3, s41, s44")
    e("s_mov_b32 m0, s3")
    e("v_add_u32 v10, s40, v8")
    for j in range(4):
        e(f"buffer_load_dwordx4 v{4+j}, s[8:11], s42 offen offset:{j*1024}{NT} lds")
    e("s_add_u32 s42, s42, 16384")
    for s in range(1, 8):
        e(f"v_xor_b32 v{10+s}, {s<<5}, v10")
    e("s_mov_b32 s41, s40")
    e("s_add_u32 s40, s40, 16384")
    e("s_cmp_ge_u32 s40, 81920")
    e("s_cselect_b32 s40, 0, s40")
    frs = [(s, kb) for s in range(8) for kb in range(2)]
    def krd(n):
        s, kb = frs[n]
        e(f"ds_read_b128 {vr(VF+4*n,4)}, v{10+s} offset:{kb*8192}")
    for n in range(8):
        krd(n)
    for n in range(16):
        s, kb = frs[n]
        if n < 8:
            krd(n + 8)
            e("s_waitcnt lgkmcnt(8)")
        else:
            e(f"s_waitcnt lgkmcnt({15-n})")
        c = "0" if s == 0 else vr(VS+16*kb, 16)
        e(f"v_mfma_f32_32x32x16_bf16 {vr(VS+16*kb,16)}, {vr(VF+4*n,4)}, {vr(VQ+4*s,4)}, {c}")
    e("s_waitcnt vmcnt(12)")
    e("s_barrier")
    e("s_add_u32 s3, s41, s44")
    e("s_mov_b32 m0, s3")
    e("v_add_u32 v10, s40, v9")
    for j in range(4):
        e(f"buffer_load_dwordx4 v{4+j}, s[12:15], s43 offen offset:{j*1024}{NT} lds")
    e("s_add_u32 s43, s43, 16384")
    for k in range(1, 8):
        db, u = k >> 1, k & 1
        e(f"v_xor_b32 v{10+k}, {(db<<6)^(u<<5)}, v10")
    e("s_mov_b32 s41, s40")
    e("s_add_u32 s40, s40, 16384")
    e("s_cmp_ge_u32 s40, 81920")
    e("s_cselect_b32 s40, 0, s40")
    vfr = [(kb, t, db) for kb in range(2) for t in range(2) for db in range(4)]
    def vrd(n):
        kb, t, db = vfr[n]
        for u in range(2):
            e(f"ds_read_b64_tr_b16 {vr(VF+4*n+2*u,2)}, v{10+2*db+u} offset:{kb*8192+t*4096+u*2048}")
    for n in range(6):
        vrd(n)
    e("s_nop 3")
    for c in range(4):
        b0 = VS + 8*c
        e(f"v_max3_f32 v{VT+c}, v{b0}, v{b0+1}, v{b0+2}")
    for c in range(4):
        b0 = VS + 8*c
        e(f"v_max3_f32 v{VT+c}, v{VT+c}, v{b0+3}, v{b0+4}")
    for c in range(4):
        b0 = VS + 8*c
        e(f"v_max3_f32 v{VT+c}, v{VT+c}, v{b0+5}, v{b0+6}")
    for c in range(4):
        b0 = VS + 8*c
        e(f"v_max_f32 v{VT+c}, v{VT+c}, v{b0+7}")
    e(f"v_max3_f32 v{VT}, v{VT}, v{VT+1}, v{VT+2}")
    e(f"v_max_f32 v{VT}, v{VT}, v{VT+3}")
    e(f"v_mov_b32 v{VT+1}, v{VT}")
    e("s_nop 1")
    e(f"v_permlane32_swap_b32 v{VT}, v{VT+1}")
    e(f"v_max_f32 v{VT}, v{VT}, v{VT+1}")
    e(f"v_mul_f32 v{VT}, s46, v{VT}")
    e(f"v_max_f32 v{VT+1}, v18, v{VT}")
    e(f"v_sub_f32 v{VT+2}, v18, v{VT+1}")
    e(f"v_exp_f32 v20, v{VT+2}")
    e(f"v_mov_b32 v18, v{VT+1}")
    for i in range(32):
        e(f"v_fma_f32 v{VS+i}, v{VS+i}, s46, -v18")
    for i in range(32):
        e(f"v_exp_f32 v{VS+i}, v{VS+i}")
    for c in range(4):
        b0 = VS + 8*c
        e(f"v_add_f32 v{VT+c}, v{b0}, v{b0+1}")
    for k in range(2, 8):
        for c in range(4):
            b0 = VS + 8*c
            e(f"v_add_f32 v{VT+c}, v{VT+c}, v{b0+k}")
    e(f"v_add_f32 v{VT}, v{VT}, v{VT+1}")
    e(f"v_add_f32 v{VT+2}, v{VT+2}, v{VT+3}")
    e(f"v_add_f32 v{VT}, v{VT}, v{VT+2}")
    e(f"v_fma_f32 v19, v19, v20, v{VT}")
    for k in range(16):
        e(f"v_cvt_pk_bf16_f32 v{VP+k}, v{VS+2*k}, v{VS+2*k+1}")
    for i in range(64):
        e(f"v_mul_f32 v{VO+i}, v20, v{VO+i}")
    for n in range(16):
        kb, t, db = vfr[n]
        if n + 6 < 16:
            vrd(n + 6)
            e("s_waitcnt lgkmcnt(12)")
        else:
            e(f"s_waitcnt lgkmcnt({(15-n)*2})")
        p = VP + 4*(2*kb + t)
        e(f"v_mfma_f32_32x32x16_bf16 {vr(VO+16*db,16)}, {vr(VF+4*n,4)}, {vr(p,4)}, {vr(VO+16*db,16)}")
    e("s_add_u32 s45, s45, 1")
    e("s_cmp_lt_u32 s45, 16")
    e("s_cbranch_scc1 L_loop")
    stamp(2)
    e(f"v_mov_b32 v{VT+1}, v19")
    e("s_nop 1")
    e(f"v_permlane32_swap_b32 v19, v{VT+1}")
    e(f"v_add_f32 v19, v19, v{VT+1}")
    e("v_rcp_f32 v20, v19")
    e("v_bfe_u32 v1, v0, 4, 1")
    e("s_lshl_b32 s3, s7, 1")
    e("v_add_u32 v1, s3, v1")
    e("v_lshlrev_b32 v1, 17, v1")
    e("v_lshrrev_b32 v2, 5, v0")
    e("v_lshl_add_u32 v1, v2, 8, v1")
    e("v_and_b32 v2, 15, v0")
    e("v_lshl_add_u32 v1, v2, 4, v1")
    e("s_nop 7")
    for i in range(64):
        e(f"v_mul_f32 v{VO+i}, v20, v{VO+i}")
    for db in range(4):
        for t in range(2):
            F = VF + 4 * (2*db + t)
            a = VO + 16*db + 8*t
            for j in range(4):
                e(f"v_cvt_pk_bf16_f32 v{F+j}, v{a+2*j}, v{a+2*j+1}")
    e("s_nop 1")
    for sp in range(8):
        F = VF + 4*sp
        e(f"v_permlane32_swap_b32 v{F}, v{F+2}")
        e(f"v_permlane32_swap_b32 v{F+1}, v{F+3}")
    for sp in range(8):
        F = VF + 4*sp
        e(f"buffer_store_dwordx4 {vr(F,4)}, v1, s[24:27], 0 offen offset:{(sp>>1)*1024 + (sp&1)*512}")
    e("s_waitcnt vmcnt(0)")
    stamp(3)
    stamp_flush(4, 33554432)
    e("L_attn_done:")
    e("s_endpgm")

def gen_oproj():
    e(".globl oproj_kernel")
    e(".p2align 8")
    e(".type oproj_kernel,@function")
    e("oproj_kernel:")
    e("s_cmp_ge_u32 s2, 256")
    e("s_cbranch_scc1 L_op_done")
    e("s_and_b32 s3, s2, 7")
    e("s_lshr_b32 s6, s3, 2")
    e("s_and_b32 s3, s3, 3")
    e("s_lshl_b32 s3, s3, 5")
    e("s_lshr_b32 s47, s2, 3")
    e("s_add_u32 s3, s3, s47")
    e("s_cmp_ge_u32 s3, 126")
    e("s_cbranch_scc1 L_op_done")
    e("s_load_dwordx2 s[38:39], s[0:1], 96")
    e("s_load_dwordx2 s[36:37], s[0:1], 80")
    e("s_mul_i32 s4, s3, 7282")
    e("s_lshr_b32 s4, s4, 16")
    e("s_mul_i32 s47, s4, 9")
    e("s_sub_u32 s5, s3, s47")
    e("s_mul_i32 s51, s4, 299616")
    e("s_lshr_b32 s51, s51, 16")
    e("s_add_u32 s4, s4, 1")
    e("s_mul_i32 s52, s4, 299616")
    e("s_lshr_b32 s52, s52, 16")
    e("s_sub_u32 s52, s52, s51")
    e("s_mul_i32 s3, s6, 40")
    e("s_add_u32 s0, s0, s3")
    e("s_addc_u32 s1, s1, 0")
    e("s_load_dwordx2 s[28:29], s[0:1], 32")
    e("v_lshrrev_b32 v1, 6, v0")
    e("v_and_b32 v0, 63, v0")
    e("s_nop 0")
    e("v_readfirstlane_b32 s7, v1")
    e("v_lshrrev_b32 v1, 3, v0")
    e("v_mul_u32_u24 v1, 1152, v1")
    e("v_bfe_u32 v2, v0, 4, 1")
    e("v_lshlrev_b32 v2, 1, v2")
    e("v_and_b32 v3, 7, v0")
    e("v_xor_b32 v3, v3, v2")
    e("v_lshl_add_u32 v4, v3, 4, v1")
    e("v_xor_b32 v3, 4, v3")
    e("v_lshl_add_u32 v5, v3, 4, v1")
    e("v_lshlrev_b32 v6, 4, v0")
    e("v_and_b32 v1, 15, v0")
    e("v_lshrrev_b32 v2, 4, v0")
    e("v_lshrrev_b32 v3, 2, v1")
    e("v_lshl_add_u32 v7, v2, 3, v3")
    e("v_lshlrev_b32 v7, 7, v7")
    e("v_lshrrev_b32 v3, 1, v3")
    e("v_and_b32 v2, 1, v2")
    e("v_lshl_add_u32 v3, v2, 1, v3")
    e("v_lshl_add_u32 v7, v3, 5, v7")
    e("v_and_b32 v1, 3, v1")
    e("v_lshl_add_u32 v7, v1, 3, v7")
    e("s_lshl_b32 s44, s7, 15")
    e("v_add_u32 v8, s44, v7")
    for ni in range(1, 4):
        e(f"v_xor_b32 v{8+ni}, {ni<<5}, v8")
    e("s_waitcnt lgkmcnt(0)")
    e("s_lshl_b32 s3, s6, 6")
    e("s_add_u32 s3, s3, s51")
    e("s_lshl_b32 s3, s3, 17")
    e("s_add_u32 s8, s38, s3")
    e("s_addc_u32 s9, s39, 0")
    e("s_and_b32 s9, s9, 0xffff")
    e("s_lshl_b32 s10, s52, 17")
    e("s_mov_b32 s11, 0x20000")
    e("s_mov_b32 s12, s28")
    e("s_and_b32 s13, s29, 0xffff")
    e("s_mov_b32 s14, 4718592")
    e("s_mov_b32 s15, 0x20000")
    e("s_mov_b32 s16, s36")
    e("s_and_b32 s17, s37, 0xffff")
    e("s_mov_b32 s18, 2359296")
    e("s_mov_b32 s19, 0x20000")
    e("s_mul_i32 s42, s7, 1179648")
    e("s_lshl_b32 s3, s5, 7")
    e("s_add_u32 s42, s42, s3")
    for mi in range(5):
        e(f"s_add_u32 s{53+mi}, s44, {mi*131072}")
    for i in range(80):
        e(f"v_accvgpr_write_b32 a{i}, 0")
    OB = 32; WFR = 192
    def issue(slot):
        for k in range(8):
            e(f"s_add_u32 s3, s44, {slot*8192 + k*1024}")
            e("s_mov_b32 m0, s3")
            e(f"s_add_u32 s50, s42, {k*9216}")
            e(f"buffer_load_dwordx4 v{4+(k&1)}, s[12:15], s50 offen lds")
        e("s_add_u32 s42, s42, 73728")
        for mi in range(5):
            for s in range(2):
                e(f"buffer_load_dwordx4 {vr(OB+40*slot+20*s+4*mi,4)}, v6, s[8:11], s{53+mi} offen offset:{1024*s}")
            e(f"s_add_u32 s{53+mi}, s{53+mi}, 2048")
    def compute(slot):
        def rd(s, ni):
            for u in range(2):
                e(f"ds_read_b64_tr_b16 {vr(WFR+16*s+4*ni+2*u,2)}, v{8+ni} offset:{slot*8192+s*4096+u*512}")
        for ni in range(4):
            rd(0, ni)
        for s in range(2):
            for ni in range(4):
                if s == 0:
                    rd(1, ni)
                    e("s_waitcnt lgkmcnt(8)")
                else:
                    e(f"s_waitcnt lgkmcnt({6-2*ni})")
                for mi in range(5):
                    a = 20*ni + 4*mi
                    e(f"v_mfma_f32_16x16x32_bf16 {ar(a,4)}, {vr(WFR+16*s+4*ni,4)}, {vr(OB+40*slot+20*s+4*mi,4)}, {ar(a,4)}")
    stamp(0)
    issue(0); issue(1); issue(2)
    e("s_mov_b32 s45, 0")
    e("L_op_loop:")
    for c in range(4):
        issue((c + 3) & 3)
        e("s_waitcnt vmcnt(54)")
        compute(c)
    e("s_add_u32 s45, s45, 1")
    e("s_cmp_lt_u32 s45, 3")
    e("s_cbranch_scc1 L_op_loop")
    issue(3)
    e("s_waitcnt vmcnt(54)")
    compute(0)
    e("s_waitcnt vmcnt(36)")
    compute(1)
    e("s_waitcnt vmcnt(18)")
    compute(2)
    e("s_waitcnt vmcnt(0)")
    compute(3)
    stamp(1)
    e("s_nop 15")
    e("s_barrier")
    e("s_mul_i32 s3, s7, 20480")
    e("v_add_u32 v2, s3, v6")
    for t in range(20):
        e(f"ds_write_b128 v2, {ar(4*t,4)} offset:{t*1024}")
    e("s_waitcnt lgkmcnt(0)")
    e("s_barrier")
    e("s_mul_i32 s3, s7, 5120")
    e("v_add_u32 v2, s3, v6")
    e("v_add_u32 v3, 40960, v2")
    for mi in range(5):
        for p in range(4):
            e(f"ds_read_b128 {vr(32+16*mi+4*p,4)}, v{2+(p>>1)} offset:{(p&1)*20480 + mi*1024}")
        if mi == 2:
            e("s_waitcnt lgkmcnt(0)")
    e("s_lshl_b32 s3, s51, 4")
    e("v_and_b32 v1, 15, v0")
    e("v_add_u32 v1, s3, v1")
    e("v_mul_u32_u24 v1, 2304, v1")
    e("v_lshrrev_b32 v7, 4, v0")
    e("v_lshl_add_u32 v1, v7, 3, v1")
    e("s_mul_i32 s3, s6, 1152")
    e("s_lshl_b32 s47, s5, 7")
    e("s_add_u32 s3, s3, s47")
    e("s_lshl_b32 s47, s7, 5")
    e("s_add_u32 s3, s3, s47")
    e("v_add_u32 v1, s3, v1")
    e("s_waitcnt lgkmcnt(0)")
    for mi in range(5):
        b0 = 32 + 16*mi
        for r in range(4):
            e(f"v_add_f32 v{b0+r}, v{b0+r}, v{b0+4+r}")
            e(f"v_add_f32 v{b0+8+r}, v{b0+8+r}, v{b0+12+r}")
        for r in range(4):
            e(f"v_add_f32 v{b0+r}, v{b0+r}, v{b0+8+r}")
        e(f"v_cvt_pk_bf16_f32 v{b0+4}, v{b0}, v{b0+1}")
        e(f"v_cvt_pk_bf16_f32 v{b0+5}, v{b0+2}, v{b0+3}")
        if mi == 4:
            e("s_cmp_lt_u32 s52, 5")
            e("s_cbranch_scc1 L_op_skip")
        e(f"s_mov_b32 s3, {mi*16*2304}")
        e(f"buffer_store_dwordx2 {vr(b0+4,2)}, v1, s[16:19], s3 offen")
    e("L_op_skip:")
    e("s_waitcnt vmcnt(0)")
    stamp(2)
    stamp_flush(3, 33554432 + 1048576)
    e("L_op_done:")
    e("s_endpgm")

def desc(name, vgpr, accum, sgpr=(100 if DIAG else 64)):
    e(f".amdhsa_kernel {name}")
    e(f"  .amdhsa_next_free_vgpr {vgpr}")
    e(f"  .amdhsa_next_free_sgpr {sgpr}")
    e(f"  .amdhsa_accum_offset {accum}")
    e("  .amdhsa_group_segment_fixed_size 0")
    e("  .amdhsa_kernarg_size 104")
    e("  .amdhsa_user_sgpr_count 2")
    e("  .amdhsa_user_sgpr_kernarg_segment_ptr 1")
    e("  .amdhsa_system_sgpr_workgroup_id_x 1")
    e(".end_amdhsa_kernel")

gen_attn()
gen_oproj()
e('.section .rodata,"a"')
e(".p2align 6")
desc("attn_kernel", 256, 256)
e(".p2align 6")
desc("oproj_kernel", 304, 224)

with open(sys.argv[1] if len(sys.argv) > 1 else OUT, "w") as f:
    f.write(HEADER + "\n".join(L) + "\n")
```

```python
import sys, os

NAME = "concat_heads__mha_block_cached__mha_block_cached__near_ridge"
OUT = f"cdna_kernels/{NAME}.s"
DIAG = int(os.environ.get("DIAG", "0"))
NT = " nt" if int(os.environ.get("NT", "0")) else ""

L = []
def e(s=""):
    L.append(s)

def stamp(idx):
    if not DIAG:
        return
    e(f"s_memrealtime s[{64+2*idx}:{65+2*idx}]")
    e("s_waitcnt lgkmcnt(0)")

def stamp_flush(n, base, wreg="s51"):
    if not DIAG:
        return
    lab = f"L_st_{len(L)}"
    e(f"s_cmp_lg_u32 {wreg}, 0")
    e(f"s_cbranch_scc1 {lab}")
    e("s_mov_b64 exec, 1")
    e("s_lshl_b32 s62, s2, 7")
    e(f"s_add_u32 s62, s62, {base}")
    e("v_mov_b32 v22, s62")
    for i in range(n):
        e(f"v_mov_b32 v20, s{64+2*i}")
        e(f"v_mov_b32 v21, s{65+2*i}")
        e(f"global_store_dwordx2 v22, v[20:21], s[38:39] offset:{8*i}")
        e("s_nop 1")
    e("s_waitcnt vmcnt(0)")
    e(f"{lab}:")

def vr(a, n):
    return f"v[{a}:{a+n-1}]"

HEADER = f"""; Kernarg layout for this problem (104 bytes, ptrs only, base s[0:1]):
; @launch kernel=attn_kernel grid=(256,1,1) block=(512,1,1) lds=163840
; @launch kernel=reduce_kernel grid=(576,1,1) block=(256,1,1) lds=0
.amdgcn_target "amdgcn-amd-amdhsa--gfx950"
.text
"""

class VM:
    def __init__(self):
        self.ops = []
    def add(self, tag, n=1):
        self.ops += [tag] * n
    def wait(self, tag):
        last = max(i for i, t in enumerate(self.ops) if t == tag)
        n = len(self.ops) - 1 - last
        e(f"s_waitcnt vmcnt({n})")
        self.ops = self.ops[last+1:]

def gen_attn():
    e(".globl attn_kernel")
    e(".p2align 8")
    e(".type attn_kernel,@function")
    e("attn_kernel:")
    e("s_cmp_ge_u32 s2, 256")
    e("s_cbranch_scc1 L_attn_done")
    e("s_load_dwordx2 s[38:39], s[0:1], 96")
    e("s_and_b32 s3, s2, 7")
    e("s_and_b32 s4, s3, 1")
    e("s_lshr_b32 s3, s3, 1")
    e("s_lshr_b32 s47, s2, 3")
    e("s_and_b32 s52, s47, 3")
    e("s_lshl_b32 s3, s3, 2")
    e("s_add_u32 s52, s52, s3")
    e("s_lshr_b32 s5, s47, 2")
    e("s_mul_i32 s3, s4, 40")
    e("s_add_u32 s0, s0, s3")
    e("s_addc_u32 s1, s1, 0")
    e("s_load_dwordx8 s[28:35], s[0:1], 0")
    e("s_load_dwordx2 s[36:37], s[0:1], 32")
    e("v_lshrrev_b32 v1, 6, v0")
    e("v_and_b32 v0, 63, v0")
    e("s_nop 0")
    e("v_readfirstlane_b32 s51, v1")
    e("s_nop 3")
    e("s_and_b32 s7, s51, 3")
    e("s_lshr_b32 s53, s51, 2")
    e("s_lshl_b32 s6, s52, 1")
    e("s_add_u32 s6, s6, s53")
    e("s_lshl_b32 s54, s53, 16")
    e("v_lshrrev_b32 v1, 4, v0")
    e("v_and_b32 v2, 15, v0")
    e("v_lshlrev_b32 v3, 2, v1")
    e("v_xor_b32 v3, v3, v2")
    for j in range(4):
        e(f"v_xor_b32 v23, {j}, v3")
        e(f"v_lshlrev_b32 v23, 4, v23")
        e(f"v_lshl_add_u32 v{4+j}, v1, 8, v23")
        e(f"v_lshl_add_u32 v{18+j}, v1, 13, v23")
    e("v_lshrrev_b32 v22, 3, v0")
    e("v_mul_u32_u24 v22, 1152, v22")
    e("v_and_b32 v23, 7, v0")
    e("v_xor_b32 v23, v23, v1")
    e("v_lshl_add_u32 v200, v23, 4, v22")
    e("v_xor_b32 v23, 4, v23")
    e("v_lshl_add_u32 v201, v23, 4, v22")
    e("v_and_b32 v23, 7, v0")
    e("v_bfe_u32 v9, v0, 4, 1")
    e("v_lshlrev_b32 v9, 2, v9")
    e("v_xor_b32 v23, v23, v9")
    e("v_lshl_add_u32 v222, v23, 4, v22")
    e("v_and_b32 v23, 31, v0")
    e("v_lshrrev_b32 v22, 5, v0")
    e("v_and_b32 v8, 3, v23")
    e("v_lshlrev_b32 v8, 2, v8")
    e("v_bfe_u32 v9, v23, 2, 2")
    e("v_or_b32 v8, v8, v9")
    e("v_xor_b32 v8, v8, v22")
    e("v_lshlrev_b32 v8, 4, v8")
    e("v_lshl_add_u32 v8, v23, 8, v8")
    e("v_add_u32 v8, s54, v8")
    e("v_bfe_u32 v9, v23, 1, 3")
    e("v_xor_b32 v9, v9, v22")
    e("v_lshlrev_b32 v9, 4, v9")
    e("v_lshl_add_u32 v9, v23, 7, v9")
    e("s_lshl_b32 s3, s7, 12")
    e("s_add_u32 s3, s3, s54")
    e("v_add_u32 v202, s3, v9")
    for s in range(1, 4):
        e(f"v_xor_b32 v{202+s}, {s<<5}, v202")
    e("v_lshrrev_b32 v10, 2, v2")
    e("v_and_b32 v11, 1, v1")
    e("v_lshlrev_b32 v11, 1, v11")
    e("v_bfe_u32 v12, v2, 1, 1")
    e("v_or_b32 v11, v11, v12")
    e("v_and_b32 v12, 1, v2")
    e("v_lshlrev_b32 v12, 3, v12")
    e("v_add_u32 v12, s54, v12")
    e("v_xor_b32 v13, v11, v22")
    e("v_lshl_add_u32 v13, v10, 2, v13")
    e("v_lshl_add_u32 v13, v13, 4, v12")
    e("v_lshl_add_u32 v14, v22, 2, v10")
    e("v_lshl_add_u32 v9, v14, 8, v13")
    e("v_lshrrev_b32 v13, 1, v10")
    e("v_lshl_add_u32 v13, v13, 2, v11")
    e("v_lshl_add_u32 v13, v13, 4, v12")
    e("v_lshl_add_u32 v14, v22, 3, v10")
    e("v_lshl_add_u32 v223, v14, 7, v13")
    e("v_lshlrev_b32 v14, 1, v22")
    e("v_xor_b32 v13, v11, v14")
    e("v_lshl_add_u32 v13, v10, 2, v13")
    e("v_lshl_add_u32 v13, v13, 4, v12")
    e("v_lshl_add_u32 v14, v22, 3, v10")
    e("v_lshl_add_u32 v3, v14, 8, v13")
    for db in range(4):
        for u in range(2):
            e(f"v_xor_b32 v{10+2*db+u}, {(db<<6)^(u<<4)}, v3")
    e("s_waitcnt lgkmcnt(0)")
    e("s_mul_i32 s3, s5, 147456")
    e("s_add_u32 s20, s28, s3")
    e("s_addc_u32 s21, s29, 0")
    e("s_and_b32 s21, s21, 0xffff")
    e("s_mov_b32 s22, 147456")
    e("s_mov_b32 s23, 0x20000")
    e("s_lshl_b32 s3, s5, 5")
    e("s_add_u32 s3, s3, s6")
    e("s_lshl_b32 s3, s3, 18")
    e("s_add_u32 s8, s30, s3")
    e("s_addc_u32 s9, s31, 0")
    e("s_and_b32 s9, s9, 0xffff")
    e("s_mov_b32 s10, 262144")
    e("s_mov_b32 s11, 0x20000")
    e("s_add_u32 s12, s32, s3")
    e("s_addc_u32 s13, s33, 0")
    e("s_and_b32 s13, s13, 0xffff")
    e("s_mov_b32 s14, 262144")
    e("s_mov_b32 s15, 0x20000")
    e("s_mov_b32 s16, s34")
    e("s_and_b32 s17, s35, 0xffff")
    e("s_mov_b32 s18, 4718592")
    e("s_mov_b32 s19, 0x20000")
    e("s_mov_b32 s56, s36")
    e("s_and_b32 s57, s37, 0xffff")
    e("s_mov_b32 s58, 4718592")
    e("s_mov_b32 s59, 0x20000")
    e("s_lshl_b32 s3, s4, 3")
    e("s_add_u32 s3, s3, s5")
    e("s_lshl_b32 s3, s3, 4")
    e("s_add_u32 s3, s3, s52")
    e("s_mul_i32 s3, s3, 147456")
    e("s_mul_i32 s47, s7, 36864")
    e("s_add_u32 s3, s3, s47")
    e("s_add_u32 s24, s38, s3")
    e("s_addc_u32 s25, s39, 0")
    e("s_and_b32 s25, s25, 0xffff")
    e("s_mov_b32 s26, 36864")
    e("s_mov_b32 s27, 0x20000")
    e("s_lshl_b32 s44, s7, 12")
    e("s_add_u32 s55, s44, s54")
    e("s_mov_b32 s46, 0x3e0293ee")
    e("s_lshl_b32 s48, s7, 17")
    e("s_lshl_b32 s3, s6, 8")
    e("s_add_u32 s48, s48, s3")
    e("s_mul_i32 s49, s7, 36864")
    e("s_lshl_b32 s3, s52, 8")
    e("s_lshl_b32 s47, s7, 5")
    e("s_add_u32 s3, s3, s47")
    e("s_mul_i32 s60, s3, 1152")
    e("s_lshl_b32 s3, s53, 9")
    e("s_add_u32 s60, s60, s3")

    ACC = 24
    XF = 88
    WF = 104
    VO = 24; VS = 88; VP = 120; VF = 136; VT = 200; VQ = 224

    def issue_kv_static(srd, i, slot):
        e(f"s_add_u32 s3, s55, {slot*16384}")
        e("s_mov_b32 m0, s3")
        e(f"s_add_u32 s50, s44, {i*16384}")
        for j in range(4):
            e(f"buffer_load_dwordx4 v{4+j}, s[{srd}:{srd+3}], s50 offen offset:{j*1024}{NT} lds")
    def issue_wo(tau, slot):
        for j in range(4):
            e(f"s_add_u32 s3, s55, {slot*16384 + j*1024}")
            e("s_mov_b32 m0, s3")
            e(f"s_add_u32 s50, s60, {j*9216 + (tau&1)*128*1152 + (tau>>1)*128}")
            e(f"buffer_load_dwordx4 v222, s[56:59], s50 offen lds")
    def issue_static(t):
        slot = t & 3
        if t < 18:
            T = t >> 1
            for j in range(4):
                e(f"s_add_u32 s3, s55, {slot*16384 + j*1024}")
                e("s_mov_b32 m0, s3")
                if t & 1 == 0:
                    e(f"s_add_u32 s50, s49, {j*9216 + 128*T}")
                    e(f"buffer_load_dwordx4 v{200+(j&1)}, s[20:23], s50 offen lds")
                else:
                    e(f"s_add_u32 s50, s48, {(64*T + 4*j)*8192}")
                    e(f"buffer_load_dwordx4 v{18+j}, s[16:19], s50 offen lds")
        elif t < 50:
            issue_kv_static(8 if ((t - 18) & 1) == 0 else 12, (t - 18) >> 1, slot)
        else:
            issue_wo(t - 50, slot)

    stamp(0)
    for t in range(3):
        issue_static(t)
    for t in range(18):
        T = t >> 1
        slot = (t & 3) * 16384
        e("s_waitcnt vmcnt(8)")
        e("s_barrier")
        issue_static(t + 3)
        if t & 1 == 0:
            for s in range(4):
                e(f"ds_read_b128 {vr(XF+4*s,4)}, v{202+s} offset:{slot}")
            e("s_waitcnt lgkmcnt(0)")
        else:
            frs = [(s, db) for s in range(4) for db in range(4)]
            NB = 6
            def rd(n):
                s, db = frs[n]
                f = WF + 4 * (n % NB)
                for u in range(2):
                    e(f"ds_read_b64_tr_b16 {vr(f+2*u,2)}, v{10+2*db+u} offset:{slot + s*4096 + u*1024}")
            for n in range(NB - 1):
                rd(n)
            for n in range(16):
                s, db = frs[n]
                issued = min(16, n + NB - 1)
                if n + NB - 1 < 16:
                    rd(n + NB - 1)
                    issued = n + NB
                rem = (issued - (n + 1)) * 2
                e(f"s_waitcnt lgkmcnt({rem})")
                f = WF + 4 * (n % NB)
                c = "0" if (T == 0 and s == 0) else vr(ACC + 16*db, 16)
                e(f"v_mfma_f32_32x32x16_bf16 {vr(ACC+16*db,16)}, {vr(f,4)}, {vr(XF+4*s,4)}, {c}")
    stamp(1)
    e("s_nop 15")
    for db in range(4):
        for t in range(2):
            F = VQ + 4 * (2*db + t)
            a = ACC + 16*db + 8*t
            for j in range(4):
                e(f"v_cvt_pk_bf16_f32 v{F+j}, v{a+2*j}, v{a+2*j+1}")
    e("s_nop 1")
    for sp in range(8):
        F = VQ + 4*sp
        e(f"v_permlane32_swap_b32 v{F}, v{F+2}")
        e(f"v_permlane32_swap_b32 v{F+1}, v{F+3}")
    for i in range(64):
        e(f"v_mov_b32 v{VO+i}, 0")
    e("v_mov_b32 v18, 0xff800000")
    e("v_mov_b32 v19, 0")
    for s in range(8):
        e(f"v_xor_b32 v{10+s}, {s<<5}, v8")
    VA = 212
    for k in range(8):
        db, u = k >> 1, k & 1
        e(f"v_xor_b32 v{VA+k}, {(db<<6)^(u<<5)}, v9")
    e("s_add_u32 s43, s44, 16384")
    e("s_add_u32 s42, s44, 32768")
    e("s_mov_b32 s45, 0")

    def issue_dyn(srd, sreg, slot):
        e(f"s_add_u32 s3, s55, {slot*16384}")
        e("s_mov_b32 m0, s3")
        e("s_nop 0")
        for j in range(4):
            e(f"buffer_load_dwordx4 v{4+j}, s[{srd}:{srd+3}], {sreg} offen offset:{j*1024}{NT} lds")
        e(f"s_add_u32 {sreg}, {sreg}, 16384")

    def pair(kslot, vslot, issueK, issueV, waitK=None, waitV=None):
        ko = kslot * 16384; vo = vslot * 16384
        if waitK: waitK()
        else: e("s_waitcnt vmcnt(8)")
        e("s_barrier")
        issueK()
        frs = [(s, kb) for s in range(8) for kb in range(2)]
        def krd(n):
            s, kb = frs[n]
            e(f"ds_read_b128 {vr(VF+4*n,4)}, v{10+s} offset:{ko + kb*8192}")
        for n in range(8):
            krd(n)
        for n in range(16):
            s, kb = frs[n]
            if n < 8:
                krd(n + 8)
                e("s_waitcnt lgkmcnt(8)")
            else:
                e(f"s_waitcnt lgkmcnt({15-n})")
            c = "0" if s == 0 else vr(VS+16*kb, 16)
            e(f"v_mfma_f32_32x32x16_bf16 {vr(VS+16*kb,16)}, {vr(VF+4*n,4)}, {vr(VQ+4*s,4)}, {c}")
        if waitV: waitV()
        else: e("s_waitcnt vmcnt(8)")
        e("s_barrier")
        issueV()
        vfr = [(kb, t, db) for kb in range(2) for t in range(2) for db in range(4)]
        def vrd(n):
            kb, t, db = vfr[n]
            for u in range(2):
                e(f"ds_read_b64_tr_b16 {vr(VF+4*n+2*u,2)}, v{VA+2*db+u} offset:{vo + kb*8192+t*4096+u*2048}")
        for n in range(6):
            vrd(n)
        e("s_nop 3")
        for c in range(4):
            b0 = VS + 8*c
            e(f"v_max3_f32 v{VT+c}, v{b0}, v{b0+1}, v{b0+2}")
        for c in range(4):
            b0 = VS + 8*c
            e(f"v_max3_f32 v{VT+c}, v{VT+c}, v{b0+3}, v{b0+4}")
        for c in range(4):
            b0 = VS + 8*c
            e(f"v_max3_f32 v{VT+c}, v{VT+c}, v{b0+5}, v{b0+6}")
        for c in range(4):
            b0 = VS + 8*c
            e(f"v_max_f32 v{VT+c}, v{VT+c}, v{b0+7}")
        e(f"v_max3_f32 v{VT}, v{VT}, v{VT+1}, v{VT+2}")
        e(f"v_max_f32 v{VT}, v{VT}, v{VT+3}")
        e(f"v_mov_b32 v{VT+1}, v{VT}")
        e("s_nop 1")
        e(f"v_permlane32_swap_b32 v{VT}, v{VT+1}")
        e(f"v_max_f32 v{VT}, v{VT}, v{VT+1}")
        e(f"v_mul_f32 v{VT}, s46, v{VT}")
        e(f"v_max_f32 v{VT+1}, v18, v{VT}")
        e(f"v_sub_f32 v{VT+2}, v18, v{VT+1}")
        e(f"v_exp_f32 v20, v{VT+2}")
        e(f"v_mov_b32 v18, v{VT+1}")
        for i in range(32):
            e(f"v_fma_f32 v{VS+i}, v{VS+i}, s46, -v18")
        for i in range(32):
            e(f"v_exp_f32 v{VS+i}, v{VS+i}")
        for c in range(4):
            b0 = VS + 8*c
            e(f"v_add_f32 v{VT+c}, v{b0}, v{b0+1}")
        for k in range(2, 8):
            for c in range(4):
                b0 = VS + 8*c
                e(f"v_add_f32 v{VT+c}, v{VT+c}, v{b0+k}")
        e(f"v_add_f32 v{VT}, v{VT}, v{VT+1}")
        e(f"v_add_f32 v{VT+2}, v{VT+2}, v{VT+3}")
        e(f"v_add_f32 v{VT}, v{VT}, v{VT+2}")
        e(f"v_fma_f32 v19, v19, v20, v{VT}")
        for k in range(16):
            e(f"v_cvt_pk_bf16_f32 v{VP+k}, v{VS+2*k}, v{VS+2*k+1}")
        for i in range(64):
            e(f"v_mul_f32 v{VO+i}, v20, v{VO+i}")
        for n in range(16):
            kb, t, db = vfr[n]
            if n + 6 < 16:
                vrd(n + 6)
                e("s_waitcnt lgkmcnt(12)")
            else:
                e(f"s_waitcnt lgkmcnt({(15-n)*2})")
            p = VP + 4*(2*kb + t)
            e(f"v_mfma_f32_32x32x16_bf16 {vr(VO+16*db,16)}, {vr(VF+4*n,4)}, {vr(p,4)}, {vr(VO+16*db,16)}")

    e("L_loop:")
    pair(2, 3, lambda: issue_dyn(12, "s43", 1), lambda: issue_dyn(8, "s42", 2))
    pair(0, 1, lambda: issue_dyn(12, "s43", 3), lambda: issue_dyn(8, "s42", 0))
    e("s_add_u32 s45, s45, 1")
    e("s_cmp_lt_u32 s45, 7")
    e("s_cbranch_scc1 L_loop")
    pair(2, 3, lambda: issue_static(49), lambda: issue_static(50))
    pair(0, 1, lambda: issue_static(51), lambda: issue_static(52))
    stamp(2)
    vm = VM()
    vm.add("t0", 4); vm.add("t1", 4); vm.add("t2", 4)
    e(f"v_mov_b32 v{VT+1}, v19")
    e("s_nop 1")
    e(f"v_permlane32_swap_b32 v19, v{VT+1}")
    e(f"v_add_f32 v19, v19, v{VT+1}")
    e("v_rcp_f32 v20, v19")
    e("v_lshlrev_b32 v1, 4, v0")
    e("s_lshl_b32 s3, s51, 12")
    e("s_add_u32 s3, s3, 131072")
    e("v_add_u32 v2, s3, v1")
    e("s_add_u32 s3, s55, 16384")
    e("v_add_u32 v3, s3, v1")
    e("s_nop 7")
    for i in range(64):
        e(f"v_mul_f32 v{VO+i}, v20, v{VO+i}")
    for db in range(4):
        for t in range(2):
            F = VF + 4 * (2*db + t)
            a = VO + 16*db + 8*t
            for j in range(4):
                e(f"v_cvt_pk_bf16_f32 v{F+j}, v{a+2*j}, v{a+2*j+1}")
    e("s_nop 1")
    for sp in range(8):
        F = VF + 4*sp
        e(f"v_permlane32_swap_b32 v{F}, v{F+2}")
        e(f"v_permlane32_swap_b32 v{F+1}, v{F+3}")
    e("s_barrier")
    for k in range(4):
        e(f"ds_write_b128 v2, {vr(VF+4*k,4)} offset:{k*1024}")
        e(f"ds_write_b128 v3, {vr(VF+16+4*k,4)} offset:{k*1024}")
    e("s_add_u32 s3, s44, 131072")
    e("v_add_u32 v2, s3, v1")
    e("s_add_u32 s3, s44, 16384")
    e("v_add_u32 v3, s3, v1")
    e("v_add_u32 v21, 65536, v3")
    e("s_waitcnt lgkmcnt(0)")
    e("s_barrier")
    H = [136, 168]
    for hh in range(2):
        for k in range(4):
            e(f"ds_read_b128 {vr(H[hh]+4*k,4)}, v2 offset:{hh*16384 + k*1024}")
        for k in range(4):
            e(f"ds_read_b128 {vr(H[hh]+16+4*k,4)}, v{3 if hh == 0 else 21} offset:{k*1024}")
        e("s_waitcnt lgkmcnt(0)")
    e("v_xor_b32 v11, 64, v223")
    e("v_mov_b32 v10, v223")
    OF = 88
    PK = 112
    for tau in range(10):
        t = 50 + tau
        slot = (t & 3) * 16384
        ntl = tau >> 1; hh = tau & 1
        acc = 24 + 32 * (ntl & 1)
        vm.wait(f"t{tau}")
        e("s_barrier")
        if tau + 3 < 10:
            issue_static(t + 3)
            vm.add(f"t{tau+3}", 4)
        frs = [(sp, nb) for sp in range(8) for nb in range(2)]
        NB = 6
        def rd(n):
            sp, nb = frs[n]
            f = OF + 4 * (n % NB)
            for u in range(2):
                e(f"ds_read_b64_tr_b16 {vr(f+2*u,2)}, v{10+nb} offset:{slot + sp*2048 + u*512}")
        for n in range(NB - 1):
            rd(n)
        for n in range(16):
            sp, nb = frs[n]
            issued = min(16, n + NB - 1)
            if n + NB - 1 < 16:
                rd(n + NB - 1)
                issued = n + NB
            rem = (issued - (n + 1)) * 2
            e(f"s_waitcnt lgkmcnt({rem})")
            f = OF + 4 * (n % NB)
            c = "0" if (hh == 0 and sp == 0) else vr(acc + 16*nb, 16)
            e(f"v_mfma_f32_32x32x16_bf16 {vr(acc+16*nb,16)}, {vr(f,4)}, {vr(H[hh]+4*sp,4)}, {c}")
        if hh == 1:
            e("s_nop 15")
            for nb in range(2):
                for j in range(8):
                    e(f"v_cvt_pk_bf16_f32 v{PK+8*nb+j}, v{acc+16*nb+2*j}, v{acc+16*nb+2*j+1}")
            e(f"s_lshl_b32 s3, s53, 14")
            e(f"s_add_u32 s3, s3, {ntl*4096}")
            for nb in range(2):
                lab = None
                if (ntl == 4 and nb == 1) or (ntl == 0 and nb == 0):
                    cond = 0 if (ntl == 4) else 1
                    e(f"s_cmp_eq_u32 s53, {cond}")
                    e(f"s_cselect_b32 s47, 0x10000000, s3")
                    sreg = "s47"
                else:
                    sreg = "s3"
                for tt in range(2):
                    e(f"buffer_store_dwordx4 {vr(PK+8*nb+4*tt,4)}, v1, s[24:27], {sreg} offen offset:{nb*2048 + tt*1024}")
                    vm.add("st", 1)
    e("s_waitcnt vmcnt(0)")
    stamp(3)
    stamp_flush(4, 67108864)
    e("L_attn_done:")
    e("s_endpgm")

def gen_reduce():
    e(".globl reduce_kernel")
    e(".p2align 8")
    e(".type reduce_kernel,@function")
    e("reduce_kernel:")
    e("s_cmp_ge_u32 s2, 576")
    e("s_cbranch_scc1 L_rd_done")
    e("s_load_dwordx2 s[38:39], s[0:1], 96")
    e("s_load_dwordx2 s[36:37], s[0:1], 80")
    e("v_lshrrev_b32 v1, 6, v0")
    e("v_and_b32 v0, 63, v0")
    e("s_nop 0")
    e("v_readfirstlane_b32 s7, v1")
    e("s_nop 3")
    e("s_lshl_b32 s3, s2, 2")
    e("s_add_u32 s3, s3, s7")
    e("s_mul_i32 s4, s3, 58255")
    e("s_lshr_b32 s4, s4, 23")
    e("s_mul_i32 s5, s4, 144")
    e("s_sub_u32 s5, s3, s5")
    e("s_mul_i32 s6, s5, 1821")
    e("s_lshr_b32 s6, s6, 16")
    e("s_mul_i32 s8, s6, 36")
    e("s_sub_u32 s8, s5, s8")
    e("v_lshlrev_b32 v1, 4, v0")
    e("s_waitcnt lgkmcnt(0)")
    e("s_mul_i32 s9, s4, 2359296")
    e("s_lshl_b32 s10, s5, 10")
    e("s_add_u32 s9, s9, s10")
    e("s_add_u32 s12, s38, s9")
    e("s_addc_u32 s13, s39, 0")
    e("s_and_b32 s13, s13, 0xffff")
    e("s_mov_b32 s14, 2359296")
    e("s_mov_b32 s15, 0x20000")
    e("s_mov_b32 s16, s36")
    e("s_and_b32 s17, s37, 0xffff")
    e("s_mov_b32 s18, 2359296")
    e("s_mov_b32 s19, 0x20000")
    for p in range(16):
        e(f"s_mov_b32 s20, {p*147456}")
        e(f"buffer_load_dwordx4 {vr(8+4*p,4)}, v1, s[12:15], s20 offen")
    e("s_and_b32 s9, s4, 7")
    e("s_lshr_b32 s10, s4, 3")
    e("s_lshl_b32 s9, s9, 7")
    e("s_lshl_b32 s11, s6, 5")
    e("s_add_u32 s9, s9, s11")
    e("v_and_b32 v2, 31, v0")
    e("v_add_u32 v2, s9, v2")
    e("v_mul_u32_u24 v2, 2304, v2")
    e("v_lshrrev_b32 v3, 5, v0")
    e("v_lshl_add_u32 v2, v3, 4, v2")
    e("s_mul_i32 s10, s10, 1152")
    e("s_lshl_b32 s11, s8, 5")
    e("s_add_u32 s10, s10, s11")
    e("v_add_u32 v2, s10, v2")
    A = 80
    for p in range(16):
        e(f"s_waitcnt vmcnt({15-p})")
        for k in range(4):
            src = 8 + 4*p + k
            if p == 0:
                e(f"v_lshlrev_b32 v{A+2*k}, 16, v{src}")
                e(f"v_and_b32 v{A+2*k+1}, 0xffff0000, v{src}")
            else:
                e(f"v_lshlrev_b32 v{A+8+2*k}, 16, v{src}")
                e(f"v_and_b32 v{A+8+2*k+1}, 0xffff0000, v{src}")
        if p > 0:
            for k in range(8):
                e(f"v_add_f32 v{A+k}, v{A+k}, v{A+8+k}")
    for k in range(4):
        e(f"v_cvt_pk_bf16_f32 v{4+k}, v{A+2*k}, v{A+2*k+1}")
    e("s_nop 1")
    e("v_permlane32_swap_b32 v4, v6")
    e("v_permlane32_swap_b32 v5, v7")
    e("buffer_store_dwordx4 v[4:7], v2, s[16:19], 0 offen")
    e("s_waitcnt vmcnt(0)")
    e("L_rd_done:")
    e("s_endpgm")

def desc(name, vgpr, accum, sgpr=(100 if DIAG else 64)):
    e(f".amdhsa_kernel {name}")
    e(f"  .amdhsa_next_free_vgpr {vgpr}")
    e(f"  .amdhsa_next_free_sgpr {sgpr}")
    e(f"  .amdhsa_accum_offset {accum}")
    e("  .amdhsa_group_segment_fixed_size 0")
    e("  .amdhsa_kernarg_size 104")
    e("  .amdhsa_user_sgpr_count 2")
    e("  .amdhsa_user_sgpr_kernarg_segment_ptr 1")
    e("  .amdhsa_system_sgpr_workgroup_id_x 1")
    e(".end_amdhsa_kernel")

gen_attn()
gen_reduce()
e('.section .rodata,"a"')
e(".p2align 6")
desc("attn_kernel", 256, 256)
e(".p2align 6")
desc("reduce_kernel", 96, 96)

with open(sys.argv[1] if len(sys.argv) > 1 else OUT, "w") as f:
    f.write(HEADER + "\n".join(L) + "\n")
```

```python
import sys, os

NAME = "concat_heads__mha_block_cached__mha_block_cached__near_ridge"
OUT = f"cdna_kernels/{NAME}.s"
DIAG = int(os.environ.get("DIAG", "0"))
NT = " nt" if int(os.environ.get("NT", "0")) else ""
STAG = int(os.environ.get("STAG", "0"))

L = []
def e(s=""):
    L.append(s)

def stamp(idx):
    if not DIAG:
        return
    e(f"s_memrealtime s[{64+2*idx}:{65+2*idx}]")
    e("s_waitcnt lgkmcnt(0)")

def stamp_flush(n, base, wreg="s51"):
    if not DIAG:
        return
    lab = f"L_st_{len(L)}"
    e(f"s_cmp_lg_u32 {wreg}, 0")
    e(f"s_cbranch_scc1 {lab}")
    e("s_mov_b64 exec, 1")
    e("s_lshl_b32 s62, s2, 7")
    e(f"s_add_u32 s62, s62, {base}")
    e("v_mov_b32 v22, s62")
    for i in range(n):
        e(f"v_mov_b32 v20, s{64+2*i}")
        e(f"v_mov_b32 v21, s{65+2*i}")
        e(f"global_store_dwordx2 v22, v[20:21], s[38:39] offset:{8*i}")
        e("s_nop 1")
    e("s_waitcnt vmcnt(0)")
    e(f"{lab}:")

def vr(a, n):
    return f"v[{a}:{a+n-1}]"

HEADER = f"""; Kernarg layout for this problem (104 bytes, ptrs only, base s[0:1]):
; @launch kernel=attn_kernel grid=(256,1,1) block=(512,1,1) lds=163840
; @launch kernel=reduce_kernel grid=(576,1,1) block=(256,1,1) lds=0
.amdgcn_target "amdgcn-amd-amdhsa--gfx950"
.text
"""

class Cnt:
    def __init__(self, name):
        self.name = name
        self.ops = []
    def add(self, tag, n=1):
        self.ops += [tag] * n
        assert len(self.ops) <= (15 if self.name == "lgkmcnt" else 63), (self.name, len(self.ops))
    def wait(self, tag):
        idx = [i for i, t in enumerate(self.ops) if t == tag]
        if not idx:
            return
        last = max(idx)
        n = len(self.ops) - 1 - last
        e(f"s_waitcnt {self.name}({n})")
        self.ops = self.ops[last+1:]
    def wait_all(self):
        if self.ops:
            e(f"s_waitcnt {self.name}(0)")
        self.ops = []

VO = 24; SA = 88; SB = 120; VP = 152; FP = 168; VT = 200; VA = 212; VQ = 224
NFB = 8

def gen_attn():
    e(".globl attn_kernel")
    e(".p2align 8")
    e(".type attn_kernel,@function")
    e("attn_kernel:")
    e("s_cmp_ge_u32 s2, 256")
    e("s_cbranch_scc1 L_attn_done")
    e("s_load_dwordx2 s[38:39], s[0:1], 96")
    e("s_and_b32 s3, s2, 7")
    e("s_and_b32 s4, s3, 1")
    e("s_lshr_b32 s3, s3, 1")
    e("s_lshr_b32 s47, s2, 3")
    e("s_and_b32 s52, s47, 3")
    e("s_lshl_b32 s3, s3, 2")
    e("s_add_u32 s52, s52, s3")
    e("s_lshr_b32 s5, s47, 2")
    e("s_mul_i32 s3, s4, 40")
    e("s_add_u32 s0, s0, s3")
    e("s_addc_u32 s1, s1, 0")
    e("s_load_dwordx8 s[28:35], s[0:1], 0")
    e("s_load_dwordx2 s[36:37], s[0:1], 32")
    e("v_lshrrev_b32 v1, 6, v0")
    e("v_and_b32 v0, 63, v0")
    e("s_nop 0")
    e("v_readfirstlane_b32 s51, v1")
    e("s_nop 3")
    e("s_and_b32 s7, s51, 3")
    e("s_lshr_b32 s53, s51, 2")
    e("s_lshl_b32 s6, s52, 1")
    e("s_add_u32 s6, s6, s53")
    e("s_lshl_b32 s54, s53, 16")
    e("v_lshrrev_b32 v1, 4, v0")
    e("v_and_b32 v2, 15, v0")
    e("v_lshlrev_b32 v3, 2, v1")
    e("v_xor_b32 v3, v3, v2")
    for j in range(4):
        e(f"v_xor_b32 v23, {j}, v3")
        e(f"v_lshlrev_b32 v23, 4, v23")
        e(f"v_lshl_add_u32 v{4+j}, v1, 8, v23")
        e(f"v_lshl_add_u32 v{18+j}, v1, 13, v23")
    e("v_lshrrev_b32 v22, 3, v0")
    e("v_mul_u32_u24 v22, 1152, v22")
    e("v_and_b32 v23, 7, v0")
    e("v_xor_b32 v23, v23, v1")
    e("v_lshl_add_u32 v200, v23, 4, v22")
    e("v_xor_b32 v23, 4, v23")
    e("v_lshl_add_u32 v201, v23, 4, v22")
    e("v_and_b32 v23, 7, v0")
    e("v_bfe_u32 v9, v0, 4, 1")
    e("v_lshlrev_b32 v9, 2, v9")
    e("v_xor_b32 v23, v23, v9")
    e("v_lshl_add_u32 v222, v23, 4, v22")
    e("v_and_b32 v23, 31, v0")
    e("v_lshrrev_b32 v22, 5, v0")
    e("v_and_b32 v8, 3, v23")
    e("v_lshlrev_b32 v8, 2, v8")
    e("v_bfe_u32 v9, v23, 2, 2")
    e("v_or_b32 v8, v8, v9")
    e("v_xor_b32 v8, v8, v22")
    e("v_lshlrev_b32 v8, 4, v8")
    e("v_lshl_add_u32 v8, v23, 8, v8")
    e("v_add_u32 v8, s54, v8")
    e("v_bfe_u32 v9, v23, 1, 3")
    e("v_xor_b32 v9, v9, v22")
    e("v_lshlrev_b32 v9, 4, v9")
    e("v_lshl_add_u32 v9, v23, 7, v9")
    e("s_lshl_b32 s3, s7, 12")
    e("s_add_u32 s3, s3, s54")
    e("v_add_u32 v202, s3, v9")
    for s in range(1, 4):
        e(f"v_xor_b32 v{202+s}, {s<<5}, v202")
    e("v_lshrrev_b32 v10, 2, v2")
    e("v_and_b32 v11, 1, v1")
    e("v_lshlrev_b32 v11, 1, v11")
    e("v_bfe_u32 v12, v2, 1, 1")
    e("v_or_b32 v11, v11, v12")
    e("v_and_b32 v12, 1, v2")
    e("v_lshlrev_b32 v12, 3, v12")
    e("v_add_u32 v12, s54, v12")
    e("v_xor_b32 v13, v11, v22")
    e("v_lshl_add_u32 v13, v10, 2, v13")
    e("v_lshl_add_u32 v13, v13, 4, v12")
    e("v_lshl_add_u32 v14, v22, 2, v10")
    e("v_lshl_add_u32 v9, v14, 8, v13")
    e("v_lshrrev_b32 v13, 1, v10")
    e("v_lshl_add_u32 v13, v13, 2, v11")
    e("v_lshl_add_u32 v13, v13, 4, v12")
    e("v_lshl_add_u32 v14, v22, 3, v10")
    e("v_lshl_add_u32 v223, v14, 7, v13")
    e("v_lshlrev_b32 v14, 1, v22")
    e("v_xor_b32 v13, v11, v14")
    e("v_lshl_add_u32 v13, v10, 2, v13")
    e("v_lshl_add_u32 v13, v13, 4, v12")
    e("v_lshl_add_u32 v14, v22, 3, v10")
    e("v_lshl_add_u32 v3, v14, 8, v13")
    for db in range(4):
        for u in range(2):
            e(f"v_xor_b32 v{VA+2*db+u}, {(db<<6)^(u<<4)}, v3")
    for s in range(8):
        e(f"v_xor_b32 v{10+s}, {s<<5}, v8")
    e("s_waitcnt lgkmcnt(0)")
    e("s_mul_i32 s3, s5, 147456")
    e("s_add_u32 s20, s28, s3")
    e("s_addc_u32 s21, s29, 0")
    e("s_and_b32 s21, s21, 0xffff")
    e("s_mov_b32 s22, 147456")
    e("s_mov_b32 s23, 0x20000")
    e("s_lshl_b32 s3, s5, 5")
    e("s_add_u32 s3, s3, s6")
    e("s_lshl_b32 s3, s3, 18")
    e("s_add_u32 s8, s30, s3")
    e("s_addc_u32 s9, s31, 0")
    e("s_and_b32 s9, s9, 0xffff")
    e("s_mov_b32 s10, 262144")
    e("s_mov_b32 s11, 0x20000")
    e("s_add_u32 s12, s32, s3")
    e("s_addc_u32 s13, s33, 0")
    e("s_and_b32 s13, s13, 0xffff")
    e("s_mov_b32 s14, 262144")
    e("s_mov_b32 s15, 0x20000")
    e("s_mov_b32 s16, s34")
    e("s_and_b32 s17, s35, 0xffff")
    e("s_mov_b32 s18, 4718592")
    e("s_mov_b32 s19, 0x20000")
    e("s_mov_b32 s56, s36")
    e("s_and_b32 s57, s37, 0xffff")
    e("s_mov_b32 s58, 4718592")
    e("s_mov_b32 s59, 0x20000")
    e("s_lshl_b32 s3, s4, 3")
    e("s_add_u32 s3, s3, s5")
    e("s_lshl_b32 s3, s3, 4")
    e("s_add_u32 s3, s3, s52")
    e("s_mul_i32 s3, s3, 147456")
    e("s_mul_i32 s47, s7, 36864")
    e("s_add_u32 s3, s3, s47")
    e("s_add_u32 s24, s38, s3")
    e("s_addc_u32 s25, s39, 0")
    e("s_and_b32 s25, s25, 0xffff")
    e("s_mov_b32 s26, 36864")
    e("s_mov_b32 s27, 0x20000")
    e("s_lshl_b32 s44, s7, 12")
    e("s_add_u32 s55, s44, s54")
    e("s_mov_b32 s46, 0x3e0293ee")
    e("s_lshl_b32 s48, s7, 17")
    e("s_lshl_b32 s3, s6, 8")
    e("s_add_u32 s48, s48, s3")
    e("s_mul_i32 s49, s7, 36864")
    e("s_lshl_b32 s3, s52, 8")
    e("s_lshl_b32 s47, s7, 5")
    e("s_add_u32 s3, s3, s47")
    e("s_mul_i32 s60, s3, 1152")
    e("s_lshl_b32 s3, s53, 9")
    e("s_add_u32 s60, s60, s3")

    lg = Cnt("lgkmcnt")

    def issue_static(t):
        slot = t & 3
        if t < 18:
            T = t >> 1
            for j in range(4):
                e(f"s_add_u32 s3, s55, {slot*16384 + j*1024}")
                e("s_mov_b32 m0, s3")
                if t & 1 == 0:
                    e(f"s_add_u32 s50, s49, {j*9216 + 128*T}")
                    e(f"buffer_load_dwordx4 v{200+(j&1)}, s[20:23], s50 offen lds")
                else:
                    e(f"s_add_u32 s50, s48, {(64*T + 4*j)*8192}")
                    e(f"buffer_load_dwordx4 v{18+j}, s[16:19], s50 offen lds")
        elif t <= 50:
            if t == 18: srd, i = 8, 0
            elif t & 1: srd, i = 8, (t - 19) // 2 + 1
            else: srd, i = 12, (t - 20) // 2
            e(f"s_add_u32 s3, s55, {slot*16384}")
            e("s_mov_b32 m0, s3")
            e(f"s_add_u32 s50, s44, {i*16384}")
            for j in range(4):
                e(f"buffer_load_dwordx4 v{4+j}, s[{srd}:{srd+3}], s50 offen offset:{j*1024}{NT} lds")
        else:
            tau = t - 51
            for j in range(4):
                e(f"s_add_u32 s3, s55, {slot*16384 + j*1024}")
                e("s_mov_b32 m0, s3")
                e(f"s_add_u32 s50, s60, {j*9216 + (tau&1)*128*1152 + (tau>>1)*128}")
                e(f"buffer_load_dwordx4 v222, s[56:59], s50 offen lds")
    def issue_dyn(srd, sreg, slot):
        e(f"s_add_u32 s3, s55, {slot*16384}")
        e("s_mov_b32 m0, s3")
        e("s_nop 0")
        for j in range(4):
            e(f"buffer_load_dwordx4 v{4+j}, s[{srd}:{srd+3}], {sreg} offen offset:{j*1024}{NT} lds")
        e(f"s_add_u32 {sreg}, {sreg}, 16384")

    def sync(issue, vmwait="s_waitcnt vmcnt(8)"):
        lg.wait_all()
        if callable(vmwait): vmwait()
        else: e(vmwait)
        e("s_barrier")
        if issue: issue()

    fcount = [0]
    def run_stream(mf, fillers, events, LA=6, pre=0):
        n_mm = sum(1 for m in mf if m.get('mm'))
        nxt = pre
        fi = 0
        for n in range(n_mm):
            for ev in events.get(n, []):
                ev()
            while nxt < len(mf) and nxt <= n + LA and mf[nxt].get('gate', 0) <= n:
                m = mf[nxt]
                m['buf'] = FP + 4 * (fcount[0] % NFB); fcount[0] += 1
                m['tag'] = f"f{fcount[0]}"
                m['rd'](m['buf'], m['tag'])
                nxt += 1
            m = mf[n]
            lg.wait(m['tag'])
            m['mm'](m['buf'])
            k = fillers.get(n, [])
            for f in k:
                e(f)
        for ev in events.get(n_mm, []):
            ev()
        while nxt < len(mf):
            m = mf[nxt]
            m['buf'] = FP + 4 * (fcount[0] % NFB); fcount[0] += 1
            m['tag'] = f"f{fcount[0]}"
            m['rd'](m['buf'], m['tag'])
            nxt += 1
        return [m for m in mf if not m.get('mm')]

    def w_frag(slot, s, db, T, xf):
        def rd(buf, tag):
            for u in range(2):
                e(f"ds_read_b64_tr_b16 {vr(buf+2*u,2)}, v{VA+2*db+u} offset:{slot*16384 + s*4096 + u*1024}")
            lg.add(tag, 2)
        def mm(buf):
            c = "0" if (T == 0 and s == 0) else vr(VO + 16*db, 16)
            e(f"v_mfma_f32_32x32x16_bf16 {vr(VO+16*db,16)}, {vr(buf,4)}, {vr(xf+4*s,4)}, {c}")
        return dict(rd=rd, mm=mm)
    def k_frag(slot, s, kb, S):
        def rd(buf, tag):
            e(f"ds_read_b128 {vr(buf,4)}, v{10+s} offset:{slot*16384 + kb*8192}")
            lg.add(tag, 1)
        def mm(buf):
            c = "0" if s == 0 else vr(S+16*kb, 16)
            e(f"v_mfma_f32_32x32x16_bf16 {vr(S+16*kb,16)}, {vr(buf,4)}, {vr(VQ+4*s,4)}, {c}")
        return dict(rd=rd, mm=mm)
    def v_frag(slot, kb, t, db):
        def rd(buf, tag):
            for u in range(2):
                e(f"ds_read_b64_tr_b16 {vr(buf+2*u,2)}, v{VA+2*db+u} offset:{slot*16384 + kb*8192+t*4096+u*2048}")
            lg.add(tag, 2)
        def mm(buf):
            p = VP + 4*(2*kb + t)
            e(f"v_mfma_f32_32x32x16_bf16 {vr(VO+16*db,16)}, {vr(buf,4)}, {vr(p,4)}, {vr(VO+16*db,16)}")
        return dict(rd=rd, mm=mm)
    def strip(m):
        m2 = dict(m); m2.pop('mm'); return m2
    def carry(pend, full):
        for a, b in zip(pend, full):
            b['buf'] = a['buf']; b['tag'] = a['tag']
        return len(pend)

    stamp(0)
    if STAG:
        e("s_cmp_eq_u32 s53, 0")
        e("s_cbranch_scc1 L_stag0")
        for _ in range(STAG):
            e("s_barrier")
        e("L_stag0:")
    for t in range(3):
        issue_static(t)
    XFB = [SA, SA + 16]
    def xread(T):
        slot = (2*T) & 3
        for s in range(4):
            e(f"ds_read_b128 {vr(XFB[T&1]+4*s,4)}, v{202+s} offset:{slot*16384}")
        lg.add(f"x{T}", 4)
    sync(lambda: issue_static(3))
    xread(0)
    sync(lambda: issue_static(4))
    pend = []
    for T in range(9):
        wslot = (2*T + 1) & 3
        mf = [w_frag(wslot, s, db, T, XFB[T&1]) for s in range(4) for db in range(4)]
        pre = carry(pend, mf)
        events = {}
        if T < 8:
            events[3] = [lambda T=T: (e("s_waitcnt vmcnt(8)"), e("s_barrier"), xread(T + 1))]
            events[12] = [lambda T=T: sync(lambda: (issue_static(2*T + 5), issue_static(2*T + 6)), vmwait="s_waitcnt vmcnt(4)")]
            nw = (2*T + 3) & 3
            nxtf = [strip(w_frag(nw, 0, db, T + 1, XFB[(T+1)&1])) for db in range(4)]
            for m in nxtf: m['gate'] = 12
            mf += nxtf
        else:
            events[12] = [lambda: sync(lambda: issue_static(21))]
        if T == 0:
            events.setdefault(0, []).append(lambda: lg.wait("x0"))
        pend = run_stream(mf, {}, events, pre=pre, LA=4)
    stamp(1)
    e("s_nop 15")
    for db in range(4):
        for t in range(2):
            F = VQ + 4 * (2*db + t)
            a = VO + 16*db + 8*t
            for j in range(4):
                e(f"v_cvt_pk_bf16_f32 v{F+j}, v{a+2*j}, v{a+2*j+1}")
    e("s_nop 1")
    for sp in range(8):
        F = VQ + 4*sp
        e(f"v_permlane32_swap_b32 v{F}, v{F+2}")
        e(f"v_permlane32_swap_b32 v{F+1}, v{F+3}")
    for k in range(8):
        db, u = k >> 1, k & 1
        e(f"v_xor_b32 v{VA+k}, {(db<<6)^(u<<5)}, v9")
    e("v_mov_b32 v18, 0xff800000")
    e("v_mov_b32 v21, 0xff800000")
    e("v_mov_b32 v19, 0")
    e("s_add_u32 s43, s44, 16384")
    e("s_add_u32 s42, s44, 49152")
    e("s_mov_b32 s45, 0")

    def max_ops(S):
        ops = []
        for c in range(4):
            b0 = S + 8*c
            ops.append(f"v_max3_f32 v{VT+c}, v{b0}, v{b0+1}, v{b0+2}")
        for c in range(4):
            b0 = S + 8*c
            ops.append(f"v_max3_f32 v{VT+c}, v{VT+c}, v{b0+3}, v{b0+4}")
        for c in range(4):
            b0 = S + 8*c
            ops.append(f"v_max3_f32 v{VT+c}, v{VT+c}, v{b0+5}, v{b0+6}")
        for c in range(4):
            b0 = S + 8*c
            ops.append(f"v_max_f32 v{VT+c}, v{VT+c}, v{b0+7}")
        ops.append(f"v_max3_f32 v{VT}, v{VT}, v{VT+1}, v{VT+2}")
        ops.append(f"v_max_f32 v{VT}, v{VT}, v{VT+3}")
        ops.append(f"v_mov_b32 v{VT+1}, v{VT}")
        ops.append("s_nop 1")
        ops.append(f"v_permlane32_swap_b32 v{VT}, v{VT+1}")
        ops.append(f"v_max_f32 v{VT}, v{VT}, v{VT+1}")
        ops.append(f"v_mul_f32 v{VT+4}, s46, v{VT}")
        ops.append(f"v_cmp_gt_f32 vcc, v{VT+4}, v21")
        return ops
    lab_ctr = [0]
    def rescale_check():
        lab = f"L_nors_{lab_ctr[0]}"; lab_ctr[0] += 1
        e(f"s_cbranch_vccz {lab}")
        e("s_nop 15")
        e(f"v_max_f32 v{VT+5}, v18, v{VT+4}")
        e(f"v_sub_f32 v{VT+6}, v18, v{VT+5}")
        e(f"v_exp_f32 v20, v{VT+6}")
        e(f"v_mov_b32 v18, v{VT+5}")
        e(f"v_add_f32 v21, 0x41000000, v{VT+5}")
        e(f"v_mul_f32 v19, v20, v19")
        for i in range(64):
            e(f"v_mul_f32 v{VO+i}, v20, v{VO+i}")
        e(f"{lab}:")
    def exp_ops(S, kb):
        b0 = S + 16*kb
        acc = [VT+8+2*kb, VT+9+2*kb]
        ops = []
        G = 4
        for gidx in range(6):
            if gidx < 4:
                for k in range(G):
                    i = b0 + G*gidx + k
                    ops.append(f"v_fma_f32 v{i}, v{i}, s46, -v18")
            if 1 <= gidx < 5:
                for k in range(G):
                    i = b0 + G*(gidx-1) + k
                    ops.append(f"v_exp_f32 v{i}, v{i}")
            if 2 <= gidx:
                g2 = gidx - 2
                i = b0 + G*g2
                if g2 == 0:
                    ops.append(f"v_add_f32 v{acc[0]}, v{i}, v{i+1}")
                    ops.append(f"v_add_f32 v{acc[1]}, v{i+2}, v{i+3}")
                else:
                    ops.append(f"v_add_f32 v{acc[0]}, v{acc[0]}, v{i}")
                    ops.append(f"v_add_f32 v{acc[1]}, v{acc[1]}, v{i+2}")
                    ops.append(f"v_add_f32 v{acc[0]}, v{acc[0]}, v{i+1}")
                    ops.append(f"v_add_f32 v{acc[1]}, v{acc[1]}, v{i+3}")
                p = VP + 8*kb + 2*g2
                ops.append(f"v_cvt_pk_bf16_f32 v{p}, v{i}, v{i+1}")
                ops.append(f"v_cvt_pk_bf16_f32 v{p+1}, v{i+2}, v{i+3}")
        ops.append(f"v_add_f32 v{acc[0]}, v{acc[0]}, v{acc[1]}")
        ops.append(f"v_add_f32 v19, v19, v{acc[0]}")
        return ops
    def spread(ops, positions):
        d = {}
        n = len(positions)
        per = len(ops) / n
        for k, op in enumerate(ops):
            p = positions[min(n-1, int(k / per))]
            d.setdefault(p, []).append(op)
        return d

    mf = [k_frag(2, s, kb, SA) for s in range(8) for kb in range(2)]
    zero_ops = [f"v_mov_b32 v{VO+i}, 0" for i in range(64)]
    e("s_nop 1")
    nxtf = [strip(k_frag(3, s, kb, SB)) for s in range(2) for kb in range(2)]
    for m in nxtf: m['gate'] = 12
    events = {12: [lambda: sync(lambda: issue_dyn(12, "s43", 2))]}
    pend = run_stream(mf + nxtf, spread(zero_ops, list(range(16))), events)
    e("s_nop 7")
    e("s_nop 7")
    for op in max_ops(SA):
        e(op)

    def iteration(par, pend, issue_mid, issue_end, doS=True, nextS=True, end_sync=True):
        Scur, Snx = (SA, SB) if par == 0 else (SB, SA)
        kslot, vslot, k2slot = (3, 0, 1) if par == 0 else (1, 2, 3)
        rescale_check()
        ex0 = exp_ops(Scur, 0); ex1 = exp_ops(Scur, 1)
        mf = []
        events = {}
        fill = {}
        if doS:
            mf += [k_frag(kslot, s, kb, Snx) for s in range(8) for kb in range(2)]
            pre = carry(pend, mf)
            base = 16
            cut = 24
            fill.update(spread(ex0 + ex1[:cut], list(range(0, 15))))
            events[12] = [lambda: sync(issue_mid)]
            vgate = 12
        else:
            pre = 0
            base = 0
            cut = 24
            sync(issue_mid)
            vgate = 0
        vf = [v_frag(vslot, kb, t, db) for kb in range(2) for t in range(2) for db in range(4)]
        for m in vf: m['gate'] = vgate
        mf += vf
        if not doS:
            events[0] = [lambda: [e(op) for op in ex0 + ex1[:cut]] and None]
        for p, ops in spread(ex1[cut:], list(range(base, base + 7))).items():
            fill.setdefault(p, []).extend(ops)
        if nextS:
            for p, ops in spread(max_ops(Snx), list(range(base + 8, base + 16))).items():
                fill.setdefault(p, []).extend(ops)
        if end_sync:
            events[base + 12] = [lambda: sync(issue_end)]
        if doS and nextS and end_sync == True:
            nx = [strip(k_frag(k2slot, s, kb, Scur)) for s in range(2) for kb in range(2)]
            for m in nx: m['gate'] = base + 12
            mf += nx
        return run_stream(mf, fill, events, pre=pre)

    st0 = (len(lg.ops), fcount[0] % NFB, [ (m['buf']) for m in pend])
    e("L_loop:")
    pend = iteration(0, pend, lambda: issue_dyn(8, "s42", 3), lambda: issue_dyn(12, "s43", 0))
    pend = iteration(1, pend, lambda: issue_dyn(8, "s42", 1), lambda: issue_dyn(12, "s43", 2))
    st1 = (len(lg.ops), fcount[0] % NFB, [ (m['buf']) for m in pend])
    assert st0 == st1, (st0, st1)
    e("s_add_u32 s45, s45, 1")
    e("s_cmp_lt_u32 s45, 7")
    e("s_cbranch_scc1 L_loop")
    pend = iteration(0, pend, lambda: issue_static(51), lambda: issue_static(52), end_sync="nok")
    pend = iteration(1, pend, lambda: issue_static(53), None, doS=False, nextS=False, end_sync=False)
    stamp(2)
    vm = Cnt("vmcnt")
    vm.add("t0", 4); vm.add("t1", 4); vm.add("t2", 4)
    e(f"v_mov_b32 v{VT+1}, v19")
    e("s_nop 1")
    e(f"v_permlane32_swap_b32 v19, v{VT+1}")
    e(f"v_add_f32 v19, v19, v{VT+1}")
    e("v_rcp_f32 v20, v19")
    e("v_lshlrev_b32 v1, 4, v0")
    XS = 2*16384
    e("s_lshl_b32 s3, s51, 12")
    e("s_add_u32 s3, s3, 131072")
    e("v_add_u32 v2, s3, v1")
    e(f"s_add_u32 s3, s55, {XS}")
    e("v_add_u32 v3, s3, v1")
    e("s_nop 7")
    for i in range(64):
        e(f"v_mul_f32 v{VO+i}, v20, v{VO+i}")
    OWN = SA
    for db in range(4):
        for t in range(2):
            F = OWN + 4 * (2*db + t)
            a = VO + 16*db + 8*t
            for j in range(4):
                e(f"v_cvt_pk_bf16_f32 v{F+j}, v{a+2*j}, v{a+2*j+1}")
    e("s_nop 1")
    for sp in range(8):
        F = OWN + 4*sp
        e(f"v_permlane32_swap_b32 v{F}, v{F+2}")
        e(f"v_permlane32_swap_b32 v{F+1}, v{F+3}")
    if STAG:
        e("s_cmp_eq_u32 s53, 1")
        e("s_cbranch_scc1 L_stag1")
        for _ in range(STAG):
            e("s_barrier")
        e("L_stag1:")
    e("s_barrier")
    for k in range(4):
        e(f"ds_write_b128 v2, {vr(OWN+4*k,4)} offset:{k*1024}")
        e(f"ds_write_b128 v3, {vr(OWN+16+4*k,4)} offset:{k*1024}")
    e("s_add_u32 s3, s44, 131072")
    e("v_add_u32 v2, s3, v1")
    e(f"s_add_u32 s3, s44, {XS}")
    e("v_add_u32 v3, s3, v1")
    e("v_add_u32 v21, 65536, v3")
    e("s_waitcnt lgkmcnt(0)")
    e("s_barrier")
    H = [VQ, SB]
    for hh in range(2):
        for k in range(4):
            e(f"ds_read_b128 {vr(H[hh]+4*k,4)}, v2 offset:{hh*16384 + k*1024}")
        for k in range(4):
            e(f"ds_read_b128 {vr(H[hh]+16+4*k,4)}, v{3 if hh == 0 else 21} offset:{k*1024}")
        e("s_waitcnt lgkmcnt(0)")
    e("v_xor_b32 v11, 64, v223")
    e("v_mov_b32 v10, v223")
    PK = SA
    def o_frag(slot, sp, nb, hh, acc):
        def rd(buf, tag):
            for u in range(2):
                e(f"ds_read_b64_tr_b16 {vr(buf+2*u,2)}, v{10+nb} offset:{slot*16384 + sp*2048 + u*512}")
            lg.add(tag, 2)
        def mm(buf):
            c = "0" if (hh == 0 and sp == 0) else vr(acc + 16*nb, 16)
            e(f"v_mfma_f32_32x32x16_bf16 {vr(acc+16*nb,16)}, {vr(buf,4)}, {vr(H[hh]+4*sp,4)}, {c}")
        return dict(rd=rd, mm=mm)
    def store_ops(ntl):
        acc = VO + 32 * (ntl & 1)
        def f():
            for nb in range(2):
                for j in range(8):
                    e(f"v_cvt_pk_bf16_f32 v{PK+8*nb+j}, v{acc+16*nb+2*j}, v{acc+16*nb+2*j+1}")
            e(f"s_lshl_b32 s61, s53, 14")
            e(f"s_add_u32 s61, s61, {ntl*4096}")
            for nb in range(2):
                if (ntl == 4 and nb == 1) or (ntl == 0 and nb == 0):
                    cond = 0 if (ntl == 4) else 1
                    e(f"s_cmp_eq_u32 s53, {cond}")
                    e(f"s_cselect_b32 s47, 0x10000000, s61")
                    sreg = "s47"
                else:
                    sreg = "s61"
                for tt in range(2):
                    e(f"buffer_store_dwordx4 {vr(PK+8*nb+4*tt,4)}, v1, s[24:27], {sreg} offen offset:{nb*2048 + tt*1024}")
                    vm.add("st", 1)
        return f
    def osync(tau):
        def iss():
            if tau + 3 < 10:
                issue_static(51 + tau + 3)
                vm.add(f"t{tau+3}", 4)
        sync(iss, vmwait=lambda: vm.wait(f"t{tau}"))
    osync(0)
    pend = []
    for tau in range(10):
        slot = (51 + tau) & 3
        ntl = tau >> 1; hh = tau & 1
        acc = VO + 32 * (ntl & 1)
        mf = [o_frag(slot, sp, nb, hh, acc) for sp in range(8) for nb in range(2)]
        pre = carry(pend, mf)
        events = {}
        if hh == 0 and ntl > 0:
            events[6] = [store_ops(ntl - 1)]
        if tau < 9:
            events[12] = [lambda tau=tau: osync(tau + 1)]
            nx = [strip(o_frag((52 + tau) & 3, sp, nb, 0, 0)) for sp in range(2) for nb in range(2)]
            for m in nx: m['gate'] = 12
            mf += nx
        pend = run_stream(mf, {}, events, pre=pre)
    e("s_nop 15")
    store_ops(4)()
    e("s_waitcnt vmcnt(0)")
    stamp(3)
    stamp_flush(4, 67108864)
    e("L_attn_done:")
    e("s_endpgm")

def gen_reduce():
    e(".globl reduce_kernel")
    e(".p2align 8")
    e(".type reduce_kernel,@function")
    e("reduce_kernel:")
    e("s_cmp_ge_u32 s2, 576")
    e("s_cbranch_scc1 L_rd_done")
    e("s_load_dwordx2 s[38:39], s[0:1], 96")
    e("s_load_dwordx2 s[36:37], s[0:1], 80")
    e("v_lshrrev_b32 v1, 6, v0")
    e("v_and_b32 v0, 63, v0")
    e("s_nop 0")
    e("v_readfirstlane_b32 s7, v1")
    e("s_nop 3")
    e("s_lshl_b32 s3, s2, 2")
    e("s_add_u32 s3, s3, s7")
    e("s_mul_i32 s4, s3, 58255")
    e("s_lshr_b32 s4, s4, 23")
    e("s_mul_i32 s5, s4, 144")
    e("s_sub_u32 s5, s3, s5")
    e("s_mul_i32 s6, s5, 1821")
    e("s_lshr_b32 s6, s6, 16")
    e("s_mul_i32 s8, s6, 36")
    e("s_sub_u32 s8, s5, s8")
    e("v_lshlrev_b32 v1, 4, v0")
    e("s_waitcnt lgkmcnt(0)")
    e("s_mul_i32 s9, s4, 2359296")
    e("s_lshl_b32 s10, s5, 10")
    e("s_add_u32 s9, s9, s10")
    e("s_add_u32 s12, s38, s9")
    e("s_addc_u32 s13, s39, 0")
    e("s_and_b32 s13, s13, 0xffff")
    e("s_mov_b32 s14, 2359296")
    e("s_mov_b32 s15, 0x20000")
    e("s_mov_b32 s16, s36")
    e("s_and_b32 s17, s37, 0xffff")
    e("s_mov_b32 s18, 2359296")
    e("s_mov_b32 s19, 0x20000")
    for p in range(16):
        e(f"s_mov_b32 s20, {p*147456}")
        e(f"buffer_load_dwordx4 {vr(8+4*p,4)}, v1, s[12:15], s20 offen")
    e("s_and_b32 s9, s4, 7")
    e("s_lshr_b32 s10, s4, 3")
    e("s_lshl_b32 s9, s9, 7")
    e("s_lshl_b32 s11, s6, 5")
    e("s_add_u32 s9, s9, s11")
    e("v_and_b32 v2, 31, v0")
    e("v_add_u32 v2, s9, v2")
    e("v_mul_u32_u24 v2, 2304, v2")
    e("v_lshrrev_b32 v3, 5, v0")
    e("v_lshl_add_u32 v2, v3, 4, v2")
    e("s_mul_i32 s10, s10, 1152")
    e("s_lshl_b32 s11, s8, 5")
    e("s_add_u32 s10, s10, s11")
    e("v_add_u32 v2, s10, v2")
    A = 80
    for p in range(16):
        e(f"s_waitcnt vmcnt({15-p})")
        for k in range(4):
            src = 8 + 4*p + k
            if p == 0:
                e(f"v_lshlrev_b32 v{A+2*k}, 16, v{src}")
                e(f"v_and_b32 v{A+2*k+1}, 0xffff0000, v{src}")
            else:
                e(f"v_lshlrev_b32 v{A+8+2*k}, 16, v{src}")
                e(f"v_and_b32 v{A+8+2*k+1}, 0xffff0000, v{src}")
        if p > 0:
            for k in range(8):
                e(f"v_add_f32 v{A+k}, v{A+k}, v{A+8+k}")
    for k in range(4):
        e(f"v_cvt_pk_bf16_f32 v{4+k}, v{A+2*k}, v{A+2*k+1}")
    e("s_nop 1")
    e("v_permlane32_swap_b32 v4, v6")
    e("v_permlane32_swap_b32 v5, v7")
    e("buffer_store_dwordx4 v[4:7], v2, s[16:19], 0 offen")
    e("s_waitcnt vmcnt(0)")
    e("L_rd_done:")
    e("s_endpgm")

def desc(name, vgpr, accum, sgpr=(100 if DIAG else 64)):
    e(f".amdhsa_kernel {name}")
    e(f"  .amdhsa_next_free_vgpr {vgpr}")
    e(f"  .amdhsa_next_free_sgpr {sgpr}")
    e(f"  .amdhsa_accum_offset {accum}")
    e("  .amdhsa_group_segment_fixed_size 0")
    e("  .amdhsa_kernarg_size 104")
    e("  .amdhsa_user_sgpr_count 2")
    e("  .amdhsa_user_sgpr_kernarg_segment_ptr 1")
    e("  .amdhsa_system_sgpr_workgroup_id_x 1")
    e(".end_amdhsa_kernel")

gen_attn()
gen_reduce()
e('.section .rodata,"a"')
e(".p2align 6")
desc("attn_kernel", 256, 256)
e(".p2align 6")
desc("reduce_kernel", 96, 96)

with open(sys.argv[1] if len(sys.argv) > 1 else OUT, "w") as f:
    f.write(HEADER + "\n".join(L) + "\n")
```

```python
import sys, os

NAME = "concat_heads__mha_block_cached__mha_block_cached__near_ridge"
OUT = f"cdna_kernels/{NAME}.s"
DIAG = int(os.environ.get("DIAG", "0"))
NT = " nt" if int(os.environ.get("NT", "0")) else ""
STF = os.environ.get("STF", "")
STF = (" " + STF) if STF else ""
STAG = int(os.environ.get("STAG", "0"))

L = []
def e(s=""):
    L.append(s)

def stamp(idx):
    if not DIAG:
        return
    e(f"s_memrealtime s[{64+2*idx}:{65+2*idx}]")
    e("s_waitcnt lgkmcnt(0)")

def stamp_flush(n, base, wreg="s51"):
    if not DIAG:
        return
    lab = f"L_st_{len(L)}"
    e(f"s_cmp_lg_u32 {wreg}, 0")
    e(f"s_cbranch_scc1 {lab}")
    e("s_mov_b64 exec, 1")
    e("s_lshl_b32 s62, s2, 7")
    e(f"s_add_u32 s62, s62, {base}")
    e("v_mov_b32 v22, s62")
    for i in range(n):
        e(f"v_mov_b32 v20, s{64+2*i}")
        e(f"v_mov_b32 v21, s{65+2*i}")
        e(f"global_store_dwordx2 v22, v[20:21], s[38:39] offset:{8*i}")
        e("s_nop 1")
    e("s_waitcnt vmcnt(0)")
    e(f"{lab}:")

def vr(a, n):
    return f"v[{a}:{a+n-1}]"

HEADER = f"""; Kernarg layout for this problem (104 bytes, ptrs only, base s[0:1]):
; @launch kernel=attn_kernel grid=(256,1,1) block=(512,1,1) lds=163840
; @launch kernel=reduce_kernel grid=(576,1,1) block=(256,1,1) lds=0
.amdgcn_target "amdgcn-amd-amdhsa--gfx950"
.text
"""

class Cnt:
    def __init__(self, name):
        self.name = name
        self.ops = []
    def add(self, tag, n=1):
        self.ops += [tag] * n
        assert len(self.ops) <= (15 if self.name == "lgkmcnt" else 63), (self.name, len(self.ops))
    def wait(self, tag):
        idx = [i for i, t in enumerate(self.ops) if t == tag]
        if not idx:
            return
        last = max(idx)
        n = len(self.ops) - 1 - last
        e(f"s_waitcnt {self.name}({n})")
        self.ops = self.ops[last+1:]
    def wait_all(self):
        if self.ops:
            e(f"s_waitcnt {self.name}(0)")
        self.ops = []

VO = 24; SA = 88; SB = 120; VP = 152; FP = 168; VT = 200; VA = 212; VQ = 224
NFB = 8

def gen_attn():
    e(".globl attn_kernel")
    e(".p2align 8")
    e(".type attn_kernel,@function")
    e("attn_kernel:")
    e("s_cmp_ge_u32 s2, 256")
    e("s_cbranch_scc1 L_attn_done")
    e("s_load_dwordx2 s[38:39], s[0:1], 96")
    e("s_and_b32 s3, s2, 7")
    e("s_and_b32 s4, s3, 1")
    e("s_lshr_b32 s3, s3, 1")
    e("s_lshr_b32 s47, s2, 3")
    e("s_and_b32 s52, s47, 3")
    e("s_lshl_b32 s3, s3, 2")
    e("s_add_u32 s52, s52, s3")
    e("s_lshr_b32 s5, s47, 2")
    e("s_mul_i32 s3, s4, 40")
    e("s_add_u32 s0, s0, s3")
    e("s_addc_u32 s1, s1, 0")
    e("s_load_dwordx8 s[28:35], s[0:1], 0")
    e("s_load_dwordx2 s[36:37], s[0:1], 32")
    e("v_mov_b32 v221, v0")
    e("v_lshrrev_b32 v1, 6, v0")
    e("v_and_b32 v0, 63, v0")
    e("s_nop 0")
    e("v_readfirstlane_b32 s51, v1")
    e("s_nop 3")
    e("s_and_b32 s7, s51, 3")
    e("s_lshr_b32 s53, s51, 2")
    e("s_lshl_b32 s6, s52, 1")
    e("s_add_u32 s6, s6, s53")
    e("s_lshl_b32 s54, s53, 16")
    e("v_lshrrev_b32 v1, 4, v0")
    e("v_and_b32 v2, 15, v0")
    e("v_lshlrev_b32 v3, 2, v1")
    e("v_xor_b32 v3, v3, v2")
    for j in range(4):
        e(f"v_xor_b32 v23, {j}, v3")
        e(f"v_lshlrev_b32 v23, 4, v23")
        e(f"v_lshl_add_u32 v{4+j}, v1, 8, v23")
        e(f"v_lshl_add_u32 v{18+j}, v1, 13, v23")
    e("v_lshrrev_b32 v22, 3, v0")
    e("v_mul_u32_u24 v22, 1152, v22")
    e("v_and_b32 v23, 7, v0")
    e("v_xor_b32 v23, v23, v1")
    e("v_lshl_add_u32 v200, v23, 4, v22")
    e("v_xor_b32 v23, 4, v23")
    e("v_lshl_add_u32 v201, v23, 4, v22")
    e("v_and_b32 v23, 7, v0")
    e("v_bfe_u32 v9, v0, 4, 1")
    e("v_lshlrev_b32 v9, 2, v9")
    e("v_xor_b32 v23, v23, v9")
    e("v_lshl_add_u32 v222, v23, 4, v22")
    e("v_and_b32 v23, 31, v0")
    e("v_lshrrev_b32 v22, 5, v0")
    e("v_and_b32 v8, 3, v23")
    e("v_lshlrev_b32 v8, 2, v8")
    e("v_bfe_u32 v9, v23, 2, 2")
    e("v_or_b32 v8, v8, v9")
    e("v_xor_b32 v8, v8, v22")
    e("v_lshlrev_b32 v8, 4, v8")
    e("v_lshl_add_u32 v8, v23, 8, v8")
    e("v_add_u32 v8, s54, v8")
    e("v_bfe_u32 v9, v23, 1, 3")
    e("v_xor_b32 v9, v9, v22")
    e("v_lshlrev_b32 v9, 4, v9")
    e("v_lshl_add_u32 v9, v23, 7, v9")
    e("s_lshl_b32 s3, s7, 12")
    e("s_add_u32 s3, s3, 131072")
    e("v_add_u32 v202, s3, v9")
    for s in range(1, 4):
        e(f"v_xor_b32 v{202+s}, {s<<5}, v202")
    e("v_lshrrev_b32 v10, 2, v2")
    e("v_and_b32 v11, 1, v1")
    e("v_lshlrev_b32 v11, 1, v11")
    e("v_bfe_u32 v12, v2, 1, 1")
    e("v_or_b32 v11, v11, v12")
    e("v_and_b32 v12, 1, v2")
    e("v_lshlrev_b32 v12, 3, v12")
    e("v_add_u32 v12, s54, v12")
    e("v_xor_b32 v13, v11, v22")
    e("v_lshl_add_u32 v13, v10, 2, v13")
    e("v_lshl_add_u32 v13, v13, 4, v12")
    e("v_lshl_add_u32 v14, v22, 2, v10")
    e("v_lshl_add_u32 v9, v14, 8, v13")
    e("v_lshrrev_b32 v13, 1, v10")
    e("v_lshl_add_u32 v13, v13, 2, v11")
    e("v_lshl_add_u32 v13, v13, 4, v12")
    e("v_lshl_add_u32 v14, v22, 3, v10")
    e("v_lshl_add_u32 v223, v14, 7, v13")
    e("v_lshlrev_b32 v14, 1, v22")
    e("v_xor_b32 v13, v11, v14")
    e("v_lshl_add_u32 v13, v10, 2, v13")
    e("v_lshl_add_u32 v13, v13, 4, v12")
    e("v_lshl_add_u32 v14, v22, 3, v10")
    e("v_lshl_add_u32 v3, v14, 8, v13")
    for db in range(4):
        for u in range(2):
            e(f"v_xor_b32 v{VA+2*db+u}, {(db<<6)^(u<<4)}, v3")
    for s in range(8):
        e(f"v_xor_b32 v{10+s}, {s<<5}, v8")
    e("s_waitcnt lgkmcnt(0)")
    e("s_mul_i32 s3, s5, 147456")
    e("s_add_u32 s20, s28, s3")
    e("s_addc_u32 s21, s29, 0")
    e("s_and_b32 s21, s21, 0xffff")
    e("s_mov_b32 s22, 147456")
    e("s_mov_b32 s23, 0x20000")
    e("s_lshl_b32 s3, s5, 5")
    e("s_add_u32 s3, s3, s6")
    e("s_lshl_b32 s3, s3, 18")
    e("s_add_u32 s8, s30, s3")
    e("s_addc_u32 s9, s31, 0")
    e("s_and_b32 s9, s9, 0xffff")
    e("s_mov_b32 s10, 262144")
    e("s_mov_b32 s11, 0x20000")
    e("s_add_u32 s12, s32, s3")
    e("s_addc_u32 s13, s33, 0")
    e("s_and_b32 s13, s13, 0xffff")
    e("s_mov_b32 s14, 262144")
    e("s_mov_b32 s15, 0x20000")
    e("s_mov_b32 s16, s34")
    e("s_and_b32 s17, s35, 0xffff")
    e("s_mov_b32 s18, 4718592")
    e("s_mov_b32 s19, 0x20000")
    e("s_mov_b32 s56, s36")
    e("s_and_b32 s57, s37, 0xffff")
    e("s_mov_b32 s58, 4718592")
    e("s_mov_b32 s59, 0x20000")
    e("s_lshl_b32 s3, s4, 3")
    e("s_add_u32 s3, s3, s5")
    e("s_lshl_b32 s3, s3, 4")
    e("s_add_u32 s3, s3, s52")
    e("s_mul_i32 s3, s3, 147456")
    e("s_mul_i32 s47, s7, 36864")
    e("s_add_u32 s3, s3, s47")
    e("s_add_u32 s24, s38, s3")
    e("s_addc_u32 s25, s39, 0")
    e("s_and_b32 s25, s25, 0xffff")
    e("s_mov_b32 s26, 36864")
    e("s_mov_b32 s27, 0x20000")
    e("s_lshl_b32 s44, s7, 12")
    e("s_add_u32 s55, s44, s54")
    e("s_mov_b32 s46, 0x3e0293ee")
    e("s_lshl_b32 s48, s7, 17")
    e("s_lshl_b32 s3, s6, 8")
    e("s_add_u32 s48, s48, s3")
    e("s_mul_i32 s49, s51, 18432")
    e("s_lshl_b32 s40, s51, 11")
    e("s_add_u32 s40, s40, 131072")
    e("s_lshl_b32 s3, s52, 8")
    e("s_lshl_b32 s47, s7, 5")
    e("s_add_u32 s3, s3, s47")
    e("s_mul_i32 s60, s3, 1152")
    e("s_lshl_b32 s3, s53, 9")
    e("s_add_u32 s60, s60, s3")

    lg = Cnt("lgkmcnt")

    dmaq = []
    SPREAD = int(os.environ.get("SPREAD", "1"))
    def push(chunk):
        if SPREAD: dmaq.append(chunk)
        else:
            for x in chunk: e(x)
    def drain(n=None):
        k = 0
        while dmaq and (n is None or k < n):
            for x in dmaq.pop(0): e(x)
            k += 1
    vm = Cnt("vmcnt")
    def issue_x(T):
        for j in range(2):
            push([f"s_add_u32 s3, s40, {(T&1)*16384 + j*1024}", "s_mov_b32 m0, s3",
                  f"s_add_u32 s50, s49, {j*9216 + 128*T}", f"buffer_load_dwordx4 v{200+j}, s[20:23], s50 offen lds"])
        vm.add(f"x{T}", 2)
    def issue_static(u):
        slot = u & 3
        if u < 9:
            for j in range(4):
                push([f"s_add_u32 s3, s55, {slot*16384 + j*1024}", "s_mov_b32 m0, s3",
                      f"s_add_u32 s50, s48, {(64*u + 4*j)*8192}", f"buffer_load_dwordx4 v{18+j}, s[16:19], s50 offen lds"])
        elif u <= 41:
            if u == 9: srd, i = 8, 0
            elif u & 1 == 0: srd, i = 8, (u - 10) // 2 + 1
            else: srd, i = 12, (u - 11) // 2
            for j in range(4):
                c = []
                if j == 0:
                    c = [f"s_add_u32 s3, s55, {slot*16384}", "s_mov_b32 m0, s3", f"s_add_u32 s50, s44, {i*16384}"]
                c += [f"buffer_load_dwordx4 v{4+j}, s[{srd}:{srd+3}], s50 offen offset:{j*1024}{NT} lds"]
                push(c)
        else:
            tau = u - 42
            for j in range(4):
                push([f"s_add_u32 s3, s55, {slot*16384 + j*1024}", "s_mov_b32 m0, s3",
                      f"s_add_u32 s50, s60, {j*9216 + (tau&1)*128*1152 + (tau>>1)*128}",
                      f"buffer_load_dwordx4 v222, s[56:59], s50 offen lds"])
        vm.add(f"u{u}", 4)
    def issue_dyn(srd, sreg, slot):
        for j in range(4):
            c = []
            if j == 0:
                c = [f"s_add_u32 s3, s55, {slot*16384}", "s_mov_b32 m0, s3", "s_nop 0"]
            c += [f"buffer_load_dwordx4 v{4+j}, s[{srd}:{srd+3}], {sreg} offen offset:{j*1024}{NT} lds"]
            if j == 3:
                c += [f"s_add_u32 {sreg}, {sreg}, 16384"]
            push(c)

    def sync(issue, vmwait="s_waitcnt vmcnt(8)"):
        drain()
        lg.wait_all()
        if callable(vmwait): vmwait()
        else: e(vmwait)
        e("s_barrier")
        if issue: issue()

    fcount = [0]
    def run_stream(mf, fillers, events, LA=6, pre=0):
        n_mm = sum(1 for m in mf if m.get('mm'))
        nxt = pre
        fi = 0
        for n in range(n_mm):
            for ev in events.get(n, []):
                ev()
            while nxt < len(mf) and nxt <= n + LA and mf[nxt].get('gate', 0) <= n:
                m = mf[nxt]
                m['buf'] = FP + 4 * (fcount[0] % NFB); fcount[0] += 1
                m['tag'] = f"f{fcount[0]}"
                m['rd'](m['buf'], m['tag'])
                nxt += 1
            m = mf[n]
            lg.wait(m['tag'])
            m['mm'](m['buf'])
            drain(1)
            k = fillers.get(n, [])
            for f in k:
                e(f)
        for ev in events.get(n_mm, []):
            ev()
        while nxt < len(mf):
            m = mf[nxt]
            m['buf'] = FP + 4 * (fcount[0] % NFB); fcount[0] += 1
            m['tag'] = f"f{fcount[0]}"
            m['rd'](m['buf'], m['tag'])
            nxt += 1
        return [m for m in mf if not m.get('mm')]

    def w_frag(slot, s, db, T, xf):
        def rd(buf, tag):
            for u in range(2):
                e(f"ds_read_b64_tr_b16 {vr(buf+2*u,2)}, v{VA+2*db+u} offset:{slot*16384 + s*4096 + u*1024}")
            lg.add(tag, 2)
        def mm(buf):
            c = "0" if (T == 0 and s == 0) else vr(VO + 16*db, 16)
            e(f"v_mfma_f32_32x32x16_bf16 {vr(VO+16*db,16)}, {vr(buf,4)}, {vr(xf+4*s,4)}, {c}")
        return dict(rd=rd, mm=mm)
    def k_frag(slot, s, kb, S):
        def rd(buf, tag):
            e(f"ds_read_b128 {vr(buf,4)}, v{10+s} offset:{slot*16384 + kb*8192}")
            lg.add(tag, 1)
        def mm(buf):
            c = "0" if s == 0 else vr(S+16*kb, 16)
            e(f"v_mfma_f32_32x32x16_bf16 {vr(S+16*kb,16)}, {vr(buf,4)}, {vr(VQ+4*s,4)}, {c}")
        return dict(rd=rd, mm=mm)
    def v_frag(slot, kb, t, db):
        def rd(buf, tag):
            for u in range(2):
                e(f"ds_read_b64_tr_b16 {vr(buf+2*u,2)}, v{VA+2*db+u} offset:{slot*16384 + kb*8192+t*4096+u*2048}")
            lg.add(tag, 2)
        def mm(buf):
            p = VP + 4*(2*kb + t)
            e(f"v_mfma_f32_32x32x16_bf16 {vr(VO+16*db,16)}, {vr(buf,4)}, {vr(p,4)}, {vr(VO+16*db,16)}")
        return dict(rd=rd, mm=mm)
    def strip(m):
        m2 = dict(m); m2.pop('mm'); return m2
    def carry(pend, full):
        for a, b in zip(pend, full):
            b['buf'] = a['buf']; b['tag'] = a['tag']
        return len(pend)

    stamp(0)
    if STAG:
        e("s_cmp_eq_u32 s53, 0")
        e("s_cbranch_scc1 L_stag0")
        for _ in range(STAG):
            e("s_barrier")
        e("L_stag0:")
    WARM = int(os.environ.get("WARM", "1"))
    e("s_lshr_b32 s61, s2, 3")
    e("s_and_b32 s63, s2, 7")
    e("s_lshr_b32 s63, s63, 1")
    e("s_mov_b32 s32, s28")
    e("s_and_b32 s33, s29, 0xffff")
    e("s_mov_b32 s34, 1179648")
    e("s_mov_b32 s35, 0x20000")
    e("s_mul_i32 s3, s61, 288")
    e("v_add_u32 v220, s3, v221")
    e("v_lshlrev_b32 v220, 7, v220")
    e("v_cmp_gt_u32 vcc, 288, v221")
    e("v_mov_b32 v23, 0x40000000")
    e("s_nop 1")
    e("v_cndmask_b32 v220, v23, v220, vcc")
    e("s_mul_i32 s3, s61, 18")
    e("v_lshrrev_b32 v22, 4, v221")
    e("v_add_u32 v22, s3, v22")
    e("v_lshlrev_b32 v22, 13, v22")
    e("v_and_b32 v206, 15, v221")
    e("v_lshl_add_u32 v22, v206, 7, v22")
    e("s_lshl_b32 s3, s63, 11")
    e("v_add_u32 v22, s3, v22")
    e("v_cndmask_b32 v22, v23, v22, vcc")
    if WARM:
        e("s_cmp_ge_u32 s51, 5")
        e("s_cbranch_scc1 L_nowarm")
        e("buffer_load_dword v206, v22, s[16:19], 0 offen")
        e("buffer_load_dword v207, v220, s[32:35], 0 offen")
        e("L_nowarm:")
    issue_x(0); issue_static(0); issue_x(1); issue_static(1); issue_static(2)
    drain()
    XFB = [SA, SA + 16]
    def xread(T):
        for s in range(4):
            e(f"ds_read_b128 {vr(XFB[T&1]+4*s,4)}, v{202+s} offset:{(T&1)*16384}")
        lg.add(f"x{T}", 4)
    def vmw(*tags):
        def f():
            idx = [max([i for i, t in enumerate(vm.ops) if t == tg], default=-1) for tg in tags]
            tg = tags[idx.index(max(idx))]
            if WARM: pass
            vm.wait(tg)
        return f
    sync(None, vmwait=vmw("x0"))
    xread(0)
    sync(lambda: (issue_x(2), issue_static(3)), vmwait=vmw("u0", "x1"))
    pend = []
    for T in range(9):
        mf = [w_frag(T & 3, s, db, T, XFB[T&1]) for s in range(4) for db in range(4)]
        pre = carry(pend, mf)
        events = {}
        if T < 8:
            events[4] = [lambda T=T: xread(T + 1)]
            def iss(T=T):
                if T + 3 <= 8: issue_x(T + 3)
                issue_static(T + 4)
            tags = (f"u{T+1}", f"x{T+2}") if T + 2 <= 8 else (f"u{T+1}",)
            events[12] = [lambda T=T, iss=iss, tags=tags: sync(iss, vmwait=vmw(*tags))]
            nxtf = [strip(w_frag((T + 1) & 3, 0, db, T + 1, XFB[(T+1)&1])) for db in range(4)]
            for m in nxtf: m['gate'] = 12
            mf += nxtf
        else:
            events[12] = [lambda: sync(lambda: issue_static(12), vmwait=vmw("u9"))]
        if DIAG and not os.environ.get("TAILST") and T in (0, 1, 2, 4, 6, 8):
            events.setdefault(13, []).append(lambda T=T: e(f"s_memrealtime s[{64+2*(4+(0,1,2,4,6,8).index(T))}:{65+2*(4+(0,1,2,4,6,8).index(T))}]"))
        pend = run_stream(mf, {}, events, pre=pre, LA=4)
    drain()
    stamp(1)
    e("s_nop 15")
    for db in range(4):
        for t in range(2):
            F = VQ + 4 * (2*db + t)
            a = VO + 16*db + 8*t
            for j in range(4):
                e(f"v_cvt_pk_bf16_f32 v{F+j}, v{a+2*j}, v{a+2*j+1}")
    e("s_nop 1")
    for sp in range(8):
        F = VQ + 4*sp
        e(f"v_permlane32_swap_b32 v{F}, v{F+2}")
        e(f"v_permlane32_swap_b32 v{F+1}, v{F+3}")
    for k in range(8):
        db, u = k >> 1, k & 1
        e(f"v_xor_b32 v{VA+k}, {(db<<6)^(u<<5)}, v9")
    e("v_mov_b32 v18, 0xff800000")
    e("v_mov_b32 v21, 0xff800000")
    e("v_mov_b32 v19, 0")
    e("s_add_u32 s43, s44, 16384")
    e("s_add_u32 s42, s44, 49152")
    e("s_mov_b32 s45, 0")

    def max_ops(S):
        ops = []
        for c in range(4):
            b0 = S + 8*c
            ops.append(f"v_max3_f32 v{VT+c}, v{b0}, v{b0+1}, v{b0+2}")
        for c in range(4):
            b0 = S + 8*c
            ops.append(f"v_max3_f32 v{VT+c}, v{VT+c}, v{b0+3}, v{b0+4}")
        for c in range(4):
            b0 = S + 8*c
            ops.append(f"v_max3_f32 v{VT+c}, v{VT+c}, v{b0+5}, v{b0+6}")
        for c in range(4):
            b0 = S + 8*c
            ops.append(f"v_max_f32 v{VT+c}, v{VT+c}, v{b0+7}")
        ops.append(f"v_max3_f32 v{VT}, v{VT}, v{VT+1}, v{VT+2}")
        ops.append(f"v_max_f32 v{VT}, v{VT}, v{VT+3}")
        ops.append(f"v_mov_b32 v{VT+1}, v{VT}")
        ops.append("s_nop 1")
        ops.append(f"v_permlane32_swap_b32 v{VT}, v{VT+1}")
        ops.append(f"v_max_f32 v{VT}, v{VT}, v{VT+1}")
        ops.append(f"v_mul_f32 v{VT+4}, s46, v{VT}")
        ops.append(f"v_cmp_gt_f32 vcc, v{VT+4}, v21")
        return ops
    lab_ctr = [0]
    def rescale_check():
        lab = f"L_nors_{lab_ctr[0]}"; lab_ctr[0] += 1
        e(f"s_cbranch_vccz {lab}")
        e("s_nop 15")
        e(f"v_max_f32 v{VT+5}, v18, v{VT+4}")
        e(f"v_sub_f32 v{VT+6}, v18, v{VT+5}")
        e(f"v_exp_f32 v20, v{VT+6}")
        e(f"v_mov_b32 v18, v{VT+5}")
        e(f"v_add_f32 v21, 0x41000000, v{VT+5}")
        e(f"v_mul_f32 v19, v20, v19")
        for i in range(64):
            e(f"v_mul_f32 v{VO+i}, v20, v{VO+i}")
        e(f"{lab}:")
    def exp_ops(S, kb):
        b0 = S + 16*kb
        acc = [VT+8+2*kb, VT+9+2*kb]
        ops = []
        G = 4
        for gidx in range(6):
            if gidx < 4:
                for k in range(G):
                    i = b0 + G*gidx + k
                    ops.append(f"v_fma_f32 v{i}, v{i}, s46, -v18")
            if 1 <= gidx < 5:
                for k in range(G):
                    i = b0 + G*(gidx-1) + k
                    ops.append(f"v_exp_f32 v{i}, v{i}")
            if 2 <= gidx:
                g2 = gidx - 2
                i = b0 + G*g2
                if g2 == 0:
                    ops.append(f"v_add_f32 v{acc[0]}, v{i}, v{i+1}")
                    ops.append(f"v_add_f32 v{acc[1]}, v{i+2}, v{i+3}")
                else:
                    ops.append(f"v_add_f32 v{acc[0]}, v{acc[0]}, v{i}")
                    ops.append(f"v_add_f32 v{acc[1]}, v{acc[1]}, v{i+2}")
                    ops.append(f"v_add_f32 v{acc[0]}, v{acc[0]}, v{i+1}")
                    ops.append(f"v_add_f32 v{acc[1]}, v{acc[1]}, v{i+3}")
                p = VP + 8*kb + 2*g2
                ops.append(f"v_cvt_pk_bf16_f32 v{p}, v{i}, v{i+1}")
                ops.append(f"v_cvt_pk_bf16_f32 v{p+1}, v{i+2}, v{i+3}")
        ops.append(f"v_add_f32 v{acc[0]}, v{acc[0]}, v{acc[1]}")
        ops.append(f"v_add_f32 v19, v19, v{acc[0]}")
        return ops
    def spread(ops, positions):
        d = {}
        n = len(positions)
        per = len(ops) / n
        for k, op in enumerate(ops):
            p = positions[min(n-1, int(k / per))]
            d.setdefault(p, []).append(op)
        return d

    mf = [k_frag(1, s, kb, SA) for s in range(8) for kb in range(2)]
    zero_ops = [f"v_mov_b32 v{VO+i}, 0" for i in range(64)]
    e("s_nop 1")
    nxtf = [strip(k_frag(2, s, kb, SB)) for s in range(2) for kb in range(2)]
    for m in nxtf: m['gate'] = 12
    events = {12: [lambda: sync(lambda: issue_dyn(12, "s43", 1))]}
    pend = run_stream(mf + nxtf, spread(zero_ops, list(range(16))), events)
    drain()
    e("s_nop 7")
    e("s_nop 7")
    for op in max_ops(SA):
        e(op)

    def iteration(par, pend, issue_mid, issue_end, doS=True, nextS=True, end_sync=True):
        Scur, Snx = (SA, SB) if par == 0 else (SB, SA)
        kslot, vslot, k2slot = (2, 3, 0) if par == 0 else (0, 1, 2)
        rescale_check()
        ex0 = exp_ops(Scur, 0); ex1 = exp_ops(Scur, 1)
        mf = []
        events = {}
        fill = {}
        if doS:
            mf += [k_frag(kslot, s, kb, Snx) for s in range(8) for kb in range(2)]
            pre = carry(pend, mf)
            base = 16
            cut = 24
            fill.update(spread(ex0 + ex1[:cut], list(range(0, 15))))
            events[12] = [lambda: sync(issue_mid)]
            vgate = 12
        else:
            pre = 0
            base = 0
            cut = 24
            sync(issue_mid)
            vgate = 0
        vf = [v_frag(vslot, kb, t, db) for kb in range(2) for t in range(2) for db in range(4)]
        for m in vf: m['gate'] = vgate
        mf += vf
        if not doS:
            events[0] = [lambda: [e(op) for op in ex0 + ex1[:cut]] and None]
        for p, ops in spread(ex1[cut:], list(range(base, base + 7))).items():
            fill.setdefault(p, []).extend(ops)
        if nextS:
            for p, ops in spread(max_ops(Snx), list(range(base + 8, base + 16))).items():
                fill.setdefault(p, []).extend(ops)
        if end_sync:
            events[base + 12] = [lambda: sync(issue_end)]
        if doS and nextS and end_sync == True:
            nx = [strip(k_frag(k2slot, s, kb, Scur)) for s in range(2) for kb in range(2)]
            for m in nx: m['gate'] = base + 12
            mf += nx
        return run_stream(mf, fill, events, pre=pre)

    st0 = (len(lg.ops), fcount[0] % NFB, [ (m['buf']) for m in pend])
    e("L_loop:")
    pend = iteration(0, pend, lambda: issue_dyn(8, "s42", 2), lambda: issue_dyn(12, "s43", 3))
    pend = iteration(1, pend, lambda: issue_dyn(8, "s42", 0), lambda: issue_dyn(12, "s43", 1))
    st1 = (len(lg.ops), fcount[0] % NFB, [ (m['buf']) for m in pend])
    assert st0 == st1, (st0, st1)
    assert not dmaq
    e("s_add_u32 s45, s45, 1")
    e("s_cmp_lt_u32 s45, 7")
    e("s_cbranch_scc1 L_loop")
    vm.ops = []
    pend = iteration(0, pend, lambda: issue_static(42), lambda: issue_static(43), end_sync="nok")
    drain()
    if WARM:
        e("s_cmp_ge_u32 s51, 5")
        e("s_cbranch_scc1 L_nowarm2")
        e("s_mul_i32 s3, s63, 1179648")
        e("buffer_load_dword v220, v220, s[56:59], s3 offen")
        e("L_nowarm2:")
    pend = iteration(1, pend, lambda: issue_static(44), None, doS=False, nextS=False, end_sync=False)
    drain()
    stamp(2)
    e(f"v_mov_b32 v{VT+1}, v19")
    e("s_nop 1")
    e(f"v_permlane32_swap_b32 v19, v{VT+1}")
    e(f"v_add_f32 v19, v19, v{VT+1}")
    e("v_rcp_f32 v20, v19")
    e("v_lshlrev_b32 v1, 4, v0")
    XS = 1*16384
    e("s_lshl_b32 s3, s51, 12")
    e("s_add_u32 s3, s3, 131072")
    e("v_add_u32 v2, s3, v1")
    e(f"s_add_u32 s3, s55, {XS}")
    e("v_add_u32 v3, s3, v1")
    e("s_nop 7")
    for i in range(64):
        e(f"v_mul_f32 v{VO+i}, v20, v{VO+i}")
    OWN = SA
    for db in range(4):
        for t in range(2):
            F = OWN + 4 * (2*db + t)
            a = VO + 16*db + 8*t
            for j in range(4):
                e(f"v_cvt_pk_bf16_f32 v{F+j}, v{a+2*j}, v{a+2*j+1}")
    e("s_nop 1")
    for sp in range(8):
        F = OWN + 4*sp
        e(f"v_permlane32_swap_b32 v{F}, v{F+2}")
        e(f"v_permlane32_swap_b32 v{F+1}, v{F+3}")
    if STAG:
        e("s_cmp_eq_u32 s53, 1")
        e("s_cbranch_scc1 L_stag1")
        for _ in range(STAG):
            e("s_barrier")
        e("L_stag1:")
    e("s_barrier")
    for k in range(4):
        e(f"ds_write_b128 v2, {vr(OWN+4*k,4)} offset:{k*1024}")
        e(f"ds_write_b128 v3, {vr(OWN+16+4*k,4)} offset:{k*1024}")
    e("s_add_u32 s3, s44, 131072")
    e("v_add_u32 v2, s3, v1")
    e(f"s_add_u32 s3, s44, {XS}")
    e("v_add_u32 v3, s3, v1")
    e("v_add_u32 v21, 65536, v3")
    e("s_waitcnt lgkmcnt(0)")
    e("s_barrier")
    H = [VQ, SB]
    for hh in range(2):
        for k in range(4):
            e(f"ds_read_b128 {vr(H[hh]+4*k,4)}, v2 offset:{hh*16384 + k*1024}")
        for k in range(4):
            e(f"ds_read_b128 {vr(H[hh]+16+4*k,4)}, v{3 if hh == 0 else 21} offset:{k*1024}")
        e("s_waitcnt lgkmcnt(0)")
    e("v_xor_b32 v11, 64, v223")
    e("v_mov_b32 v10, v223")
    PK = SA
    def o_frag(slot, sp, nb, hh, acc):
        def rd(buf, tag):
            for u in range(2):
                e(f"ds_read_b64_tr_b16 {vr(buf+2*u,2)}, v{10+nb} offset:{slot*16384 + sp*2048 + u*512}")
            lg.add(tag, 2)
        def mm(buf):
            c = "0" if (hh == 0 and sp == 0) else vr(acc + 16*nb, 16)
            e(f"v_mfma_f32_32x32x16_bf16 {vr(acc+16*nb,16)}, {vr(buf,4)}, {vr(H[hh]+4*sp,4)}, {c}")
        return dict(rd=rd, mm=mm)
    def store_ops(ntl):
        acc = VO + 32 * (ntl & 1)
        def f():
            drain()
            for nb in range(2):
                for j in range(8):
                    e(f"v_cvt_pk_bf16_f32 v{PK+8*nb+j}, v{acc+16*nb+2*j}, v{acc+16*nb+2*j+1}")
            e(f"s_lshl_b32 s61, s53, 14")
            e(f"s_add_u32 s61, s61, {ntl*4096}")
            for nb in range(2):
                if (ntl == 4 and nb == 1) or (ntl == 0 and nb == 0):
                    cond = 0 if (ntl == 4) else 1
                    e(f"s_cmp_eq_u32 s53, {cond}")
                    e(f"s_cselect_b32 s47, 0x10000000, s61")
                    sreg = "s47"
                else:
                    sreg = "s61"
                for tt in range(2):
                    e(f"buffer_store_dwordx4 {vr(PK+8*nb+4*tt,4)}, v1, s[24:27], {sreg} offen offset:{nb*2048 + tt*1024}{STF}")
                    vm.add("st", 1)
        return f
    def osync(tau):
        def iss():
            if tau + 3 < 10:
                issue_static(42 + tau + 3)
        sync(iss, vmwait=lambda: vm.wait(f"u{42+tau}"))
    if DIAG and os.environ.get("TAILST"): stamp(4)
    osync(0)
    if DIAG and os.environ.get("TAILST"): stamp(5)
    pend = []
    for tau in range(10):
        slot = (42 + tau) & 3
        ntl = tau >> 1; hh = tau & 1
        acc = VO + 32 * (ntl & 1)
        mf = [o_frag(slot, sp, nb, hh, acc) for sp in range(8) for nb in range(2)]
        pre = carry(pend, mf)
        events = {}
        if hh == 0 and ntl > 0:
            events[6] = [store_ops(ntl - 1)]
        if tau < 9:
            events[12] = [lambda tau=tau: osync(tau + 1)]
            nx = [strip(o_frag((43 + tau) & 3, sp, nb, 0, 0)) for sp in range(2) for nb in range(2)]
            for m in nx: m['gate'] = 12
            mf += nx
        if DIAG and os.environ.get("TAILST") and tau in (2, 5, 8):
            events.setdefault(13, []).append(lambda tau=tau: e(f"s_memrealtime s[{64+2*(6+(2,5,8).index(tau))}:{65+2*(6+(2,5,8).index(tau))}]"))
        pend = run_stream(mf, {}, events, pre=pre)
    e("s_nop 15")
    store_ops(4)()
    if DIAG and os.environ.get("TAILST"): stamp(9)
    e("s_waitcnt vmcnt(0)")
    stamp(3)
    stamp_flush(10, 67108864)
    e("L_attn_done:")
    e("s_endpgm")

def gen_reduce():
    e(".globl reduce_kernel")
    e(".p2align 8")
    e(".type reduce_kernel,@function")
    e("reduce_kernel:")
    e("s_cmp_ge_u32 s2, 576")
    e("s_cbranch_scc1 L_rd_done")
    e("s_load_dwordx2 s[38:39], s[0:1], 96")
    e("s_load_dwordx2 s[36:37], s[0:1], 80")
    e("v_lshrrev_b32 v1, 6, v0")
    e("v_and_b32 v0, 63, v0")
    e("s_nop 0")
    e("v_readfirstlane_b32 s7, v1")
    e("s_nop 3")
    e("s_lshl_b32 s3, s2, 2")
    e("s_add_u32 s3, s3, s7")
    e("s_mul_i32 s4, s3, 58255")
    e("s_lshr_b32 s4, s4, 23")
    e("s_mul_i32 s5, s4, 144")
    e("s_sub_u32 s5, s3, s5")
    e("s_mul_i32 s6, s5, 1821")
    e("s_lshr_b32 s6, s6, 16")
    e("s_mul_i32 s8, s6, 36")
    e("s_sub_u32 s8, s5, s8")
    e("v_lshlrev_b32 v1, 4, v0")
    e("s_waitcnt lgkmcnt(0)")
    e("s_mul_i32 s9, s4, 2359296")
    e("s_lshl_b32 s10, s5, 10")
    e("s_add_u32 s9, s9, s10")
    e("s_add_u32 s12, s38, s9")
    e("s_addc_u32 s13, s39, 0")
    e("s_and_b32 s13, s13, 0xffff")
    e("s_mov_b32 s14, 2359296")
    e("s_mov_b32 s15, 0x20000")
    e("s_mov_b32 s16, s36")
    e("s_and_b32 s17, s37, 0xffff")
    e("s_mov_b32 s18, 2359296")
    e("s_mov_b32 s19, 0x20000")
    for p in range(16):
        e(f"s_mov_b32 s20, {p*147456}")
        e(f"buffer_load_dwordx4 {vr(8+4*p,4)}, v1, s[12:15], s20 offen")
    e("s_and_b32 s9, s4, 7")
    e("s_lshr_b32 s10, s4, 3")
    e("s_lshl_b32 s9, s9, 7")
    e("s_lshl_b32 s11, s6, 5")
    e("s_add_u32 s9, s9, s11")
    e("v_and_b32 v2, 31, v0")
    e("v_add_u32 v2, s9, v2")
    e("v_mul_u32_u24 v2, 2304, v2")
    e("v_lshrrev_b32 v3, 5, v0")
    e("v_lshl_add_u32 v2, v3, 4, v2")
    e("s_mul_i32 s10, s10, 1152")
    e("s_lshl_b32 s11, s8, 5")
    e("s_add_u32 s10, s10, s11")
    e("v_add_u32 v2, s10, v2")
    A = 80
    for p in range(16):
        e(f"s_waitcnt vmcnt({15-p})")
        for k in range(4):
            src = 8 + 4*p + k
            if p == 0:
                e(f"v_lshlrev_b32 v{A+2*k}, 16, v{src}")
                e(f"v_and_b32 v{A+2*k+1}, 0xffff0000, v{src}")
            else:
                e(f"v_lshlrev_b32 v{A+8+2*k}, 16, v{src}")
                e(f"v_and_b32 v{A+8+2*k+1}, 0xffff0000, v{src}")
        if p > 0:
            for k in range(8):
                e(f"v_add_f32 v{A+k}, v{A+k}, v{A+8+k}")
    for k in range(4):
        e(f"v_cvt_pk_bf16_f32 v{4+k}, v{A+2*k}, v{A+2*k+1}")
    e("s_nop 1")
    e("v_permlane32_swap_b32 v4, v6")
    e("v_permlane32_swap_b32 v5, v7")
    e("buffer_store_dwordx4 v[4:7], v2, s[16:19], 0 offen")
    e("s_waitcnt vmcnt(0)")
    e("L_rd_done:")
    e("s_endpgm")

def desc(name, vgpr, accum, sgpr=(100 if DIAG else 64)):
    e(f".amdhsa_kernel {name}")
    e(f"  .amdhsa_next_free_vgpr {vgpr}")
    e(f"  .amdhsa_next_free_sgpr {sgpr}")
    e(f"  .amdhsa_accum_offset {accum}")
    e("  .amdhsa_group_segment_fixed_size 0")
    e("  .amdhsa_kernarg_size 104")
    e("  .amdhsa_user_sgpr_count 2")
    e("  .amdhsa_user_sgpr_kernarg_segment_ptr 1")
    e("  .amdhsa_system_sgpr_workgroup_id_x 1")
    e(".end_amdhsa_kernel")

gen_attn()
gen_reduce()
e('.section .rodata,"a"')
e(".p2align 6")
desc("attn_kernel", 256, 256)
e(".p2align 6")
desc("reduce_kernel", 96, 96)

with open(sys.argv[1] if len(sys.argv) > 1 else OUT, "w") as f:
    f.write(HEADER + "\n".join(L) + "\n")
```

```python
import sys, os

NAME = "concat_heads__mha_block_cached__mha_block_cached__near_ridge"
OUT = f"cdna_kernels/{NAME}.s"
DIAG = int(os.environ.get("DIAG", "0"))
NT = " nt" if int(os.environ.get("NT", "0")) else ""
STF = os.environ.get("STF", "")
STF = (" " + STF) if STF else ""
PF = int(os.environ.get("PF", "0"))
STAG = int(os.environ.get("STAG", "0"))

L = []
def e(s=""):
    L.append(s)

def stamp(idx):
    if not DIAG:
        return
    e(f"s_memrealtime s[{64+2*idx}:{65+2*idx}]")
    e("s_waitcnt lgkmcnt(0)")

def stamp_flush(n, base, wreg="s51"):
    if not DIAG:
        return
    lab = f"L_st_{len(L)}"
    e(f"s_cmp_lg_u32 {wreg}, 0")
    e(f"s_cbranch_scc1 {lab}")
    e("s_mov_b64 exec, 1")
    e("s_lshl_b32 s62, s2, 7")
    e(f"s_add_u32 s62, s62, {base}")
    e("v_mov_b32 v22, s62")
    for i in range(n):
        e(f"v_mov_b32 v20, s{64+2*i}")
        e(f"v_mov_b32 v21, s{65+2*i}")
        e(f"global_store_dwordx2 v22, v[20:21], s[38:39] offset:{8*i}")
        e("s_nop 1")
    e("s_waitcnt vmcnt(0)")
    e(f"{lab}:")

def vr(a, n):
    return f"v[{a}:{a+n-1}]"

HEADER = f"""; Kernarg layout for this problem (104 bytes, ptrs only, base s[0:1]):
; @launch kernel=attn_kernel grid=(256,1,1) block=(512,1,1) lds=163840
; @launch kernel=reduce_kernel grid=(576,1,1) block=(256,1,1) lds=0
.amdgcn_target "amdgcn-amd-amdhsa--gfx950"
.text
"""

class Cnt:
    def __init__(self, name):
        self.name = name
        self.ops = []
    def add(self, tag, n=1):
        self.ops += [tag] * n
        assert len(self.ops) <= (15 if self.name == "lgkmcnt" else 63), (self.name, len(self.ops))
    def wait(self, tag):
        idx = [i for i, t in enumerate(self.ops) if t == tag]
        if not idx:
            return
        last = max(idx)
        n = len(self.ops) - 1 - last
        e(f"s_waitcnt {self.name}({n})")
        self.ops = self.ops[last+1:]
    def wait_all(self):
        if self.ops:
            e(f"s_waitcnt {self.name}(0)")
        self.ops = []

VO = 24; SA = 88; SB = 120; VP = 152; FP = 168; VT = 200; VA = 212; VQ = 224
NFB = 8

def gen_attn():
    e(".globl attn_kernel")
    e(".p2align 8")
    e(".type attn_kernel,@function")
    e("attn_kernel:")
    e("s_cmp_ge_u32 s2, 256")
    e("s_cbranch_scc1 L_attn_done")
    e("s_load_dwordx2 s[38:39], s[0:1], 96")
    e("s_and_b32 s3, s2, 7")
    e("s_and_b32 s4, s3, 1")
    e("s_lshr_b32 s3, s3, 1")
    e("s_lshr_b32 s47, s2, 3")
    e("s_and_b32 s52, s47, 3")
    e("s_lshl_b32 s3, s3, 2")
    e("s_add_u32 s52, s52, s3")
    e("s_lshr_b32 s5, s47, 2")
    e("s_mul_i32 s3, s4, 40")
    e("s_add_u32 s0, s0, s3")
    e("s_addc_u32 s1, s1, 0")
    e("s_load_dwordx8 s[28:35], s[0:1], 0")
    e("s_load_dwordx2 s[36:37], s[0:1], 32")
    e("v_mov_b32 v221, v0")
    e("v_lshrrev_b32 v1, 6, v0")
    e("v_and_b32 v0, 63, v0")
    e("s_nop 0")
    e("v_readfirstlane_b32 s51, v1")
    e("s_nop 3")
    e("s_and_b32 s7, s51, 3")
    e("s_lshr_b32 s53, s51, 2")
    e("s_lshl_b32 s6, s52, 1")
    e("s_add_u32 s6, s6, s53")
    e("s_lshl_b32 s54, s53, 16")
    e("v_lshrrev_b32 v1, 4, v0")
    e("v_and_b32 v2, 15, v0")
    e("v_lshlrev_b32 v3, 2, v1")
    e("v_xor_b32 v3, v3, v2")
    for j in range(4):
        e(f"v_xor_b32 v23, {j}, v3")
        e(f"v_lshlrev_b32 v23, 4, v23")
        e(f"v_lshl_add_u32 v{4+j}, v1, 8, v23")
        e(f"v_lshl_add_u32 v{18+j}, v1, 13, v23")
    e("v_lshrrev_b32 v22, 3, v0")
    e("v_mul_u32_u24 v22, 1152, v22")
    e("v_and_b32 v23, 7, v0")
    e("v_xor_b32 v23, v23, v1")
    e("v_lshl_add_u32 v200, v23, 4, v22")
    e("v_xor_b32 v23, 4, v23")
    e("v_lshl_add_u32 v201, v23, 4, v22")
    e("v_and_b32 v23, 7, v0")
    e("v_bfe_u32 v9, v0, 4, 1")
    e("v_lshlrev_b32 v9, 2, v9")
    e("v_xor_b32 v23, v23, v9")
    e("v_lshl_add_u32 v222, v23, 4, v22")
    e("v_and_b32 v23, 31, v0")
    e("v_lshrrev_b32 v22, 5, v0")
    e("v_and_b32 v8, 3, v23")
    e("v_lshlrev_b32 v8, 2, v8")
    e("v_bfe_u32 v9, v23, 2, 2")
    e("v_or_b32 v8, v8, v9")
    e("v_xor_b32 v8, v8, v22")
    e("v_lshlrev_b32 v8, 4, v8")
    e("v_lshl_add_u32 v8, v23, 8, v8")
    e("v_add_u32 v8, s54, v8")
    e("v_bfe_u32 v9, v23, 1, 3")
    e("v_xor_b32 v9, v9, v22")
    e("v_lshlrev_b32 v9, 4, v9")
    e("v_lshl_add_u32 v9, v23, 7, v9")
    e("s_lshl_b32 s3, s7, 12")
    e("v_add_u32 v202, s3, v9")
    for s in range(1, 4):
        e(f"v_xor_b32 v{202+s}, {s<<5}, v202")
    for s in range(4):
        e(f"v_add_u32 v{208+s}, 114688, v{202+s}")
    e("v_lshrrev_b32 v10, 2, v2")
    e("v_and_b32 v11, 1, v1")
    e("v_lshlrev_b32 v11, 1, v11")
    e("v_bfe_u32 v12, v2, 1, 1")
    e("v_or_b32 v11, v11, v12")
    e("v_and_b32 v12, 1, v2")
    e("v_lshlrev_b32 v12, 3, v12")
    e("v_add_u32 v12, s54, v12")
    e("v_xor_b32 v13, v11, v22")
    e("v_lshl_add_u32 v13, v10, 2, v13")
    e("v_lshl_add_u32 v13, v13, 4, v12")
    e("v_lshl_add_u32 v14, v22, 2, v10")
    e("v_lshl_add_u32 v9, v14, 8, v13")
    e("v_lshrrev_b32 v13, 1, v10")
    e("v_lshl_add_u32 v13, v13, 2, v11")
    e("v_lshl_add_u32 v13, v13, 4, v12")
    e("v_lshl_add_u32 v14, v22, 3, v10")
    e("v_lshl_add_u32 v223, v14, 7, v13")
    e("v_lshlrev_b32 v14, 1, v22")
    e("v_xor_b32 v13, v11, v14")
    e("v_lshl_add_u32 v13, v10, 2, v13")
    e("v_lshl_add_u32 v13, v13, 4, v12")
    e("v_lshl_add_u32 v14, v22, 3, v10")
    e("v_lshl_add_u32 v3, v14, 8, v13")
    for db in range(4):
        for u in range(2):
            e(f"v_xor_b32 v{VA+2*db+u}, {(db<<6)^(u<<4)}, v3")
    for s in range(8):
        e(f"v_xor_b32 v{10+s}, {s<<5}, v8")
    e("s_waitcnt lgkmcnt(0)")
    e("s_mul_i32 s3, s5, 147456")
    e("s_add_u32 s20, s28, s3")
    e("s_addc_u32 s21, s29, 0")
    e("s_and_b32 s21, s21, 0xffff")
    e("s_mov_b32 s22, 147456")
    e("s_mov_b32 s23, 0x20000")
    e("s_lshl_b32 s3, s5, 5")
    e("s_add_u32 s3, s3, s6")
    e("s_lshl_b32 s3, s3, 18")
    e("s_add_u32 s8, s30, s3")
    e("s_addc_u32 s9, s31, 0")
    e("s_and_b32 s9, s9, 0xffff")
    e("s_mov_b32 s10, 262144")
    e("s_mov_b32 s11, 0x20000")
    e("s_add_u32 s12, s32, s3")
    e("s_addc_u32 s13, s33, 0")
    e("s_and_b32 s13, s13, 0xffff")
    e("s_mov_b32 s14, 262144")
    e("s_mov_b32 s15, 0x20000")
    e("s_mov_b32 s16, s34")
    e("s_and_b32 s17, s35, 0xffff")
    e("s_mov_b32 s18, 4718592")
    e("s_mov_b32 s19, 0x20000")
    e("s_mov_b32 s56, s36")
    e("s_and_b32 s57, s37, 0xffff")
    e("s_mov_b32 s58, 4718592")
    e("s_mov_b32 s59, 0x20000")
    e("s_lshl_b32 s3, s4, 3")
    e("s_add_u32 s3, s3, s5")
    e("s_lshl_b32 s3, s3, 4")
    e("s_add_u32 s3, s3, s52")
    e("s_mul_i32 s3, s3, 147456")
    e("s_mul_i32 s47, s7, 36864")
    e("s_add_u32 s3, s3, s47")
    e("s_add_u32 s24, s38, s3")
    e("s_addc_u32 s25, s39, 0")
    e("s_and_b32 s25, s25, 0xffff")
    e("s_mov_b32 s26, 36864")
    e("s_mov_b32 s27, 0x20000")
    e("s_lshl_b32 s44, s7, 12")
    e("s_add_u32 s55, s44, s54")
    e("s_mov_b32 s46, 0x3e0293ee")
    e("s_lshl_b32 s48, s7, 17")
    e("s_lshl_b32 s3, s6, 8")
    e("s_add_u32 s48, s48, s3")
    e("s_mul_i32 s49, s51, 18432")
    e("s_lshl_b32 s40, s51, 11")
    e("s_lshl_b32 s3, s52, 8")
    e("s_lshl_b32 s47, s7, 5")
    e("s_add_u32 s3, s3, s47")
    e("s_mul_i32 s60, s3, 1152")
    e("s_lshl_b32 s3, s53, 9")
    e("s_add_u32 s60, s60, s3")

    lg = Cnt("lgkmcnt")

    dmaq = []
    SPREAD = int(os.environ.get("SPREAD", "1"))
    def push(chunk):
        if SPREAD: dmaq.append(chunk)
        else:
            for x in chunk: e(x)
    def drain(n=None):
        k = 0
        while dmaq and (n is None or k < n):
            for x in dmaq.pop(0): e(x)
            k += 1
    vm = Cnt("vmcnt")
    XADDR = [131072, 147456, 49152, 114688]
    def slot_of(u):
        return (u % 3) if u < 9 else ((u - 9 + 3) & 3)
    def issue_x(T):
        for j in range(2):
            push([f"s_add_u32 s3, s40, {XADDR[T&3] + j*1024}", "s_mov_b32 m0, s3",
                  f"s_add_u32 s50, s49, {j*9216 + 128*T}", f"buffer_load_dwordx4 v{200+j}, s[20:23], s50 offen lds"])
        vm.add(f"x{T}", 2)
    def issue_static(u):
        slot = slot_of(u)
        if u < 9:
            for j in range(4):
                push([f"s_add_u32 s3, s55, {slot*16384 + j*1024}", "s_mov_b32 m0, s3",
                      f"s_add_u32 s50, s48, {(64*u + 4*j)*8192}", f"buffer_load_dwordx4 v{18+j}, s[16:19], s50 offen lds"])
        elif u <= 41:
            if u == 9: srd, i = 8, 0
            elif u & 1 == 0: srd, i = 8, (u - 10) // 2 + 1
            else: srd, i = 12, (u - 11) // 2
            for j in range(4):
                c = []
                if j == 0:
                    c = [f"s_add_u32 s3, s55, {slot*16384}", "s_mov_b32 m0, s3", f"s_add_u32 s50, s44, {i*16384}"]
                c += [f"buffer_load_dwordx4 v{4+j}, s[{srd}:{srd+3}], s50 offen offset:{j*1024}{NT} lds"]
                push(c)
        else:
            tau = u - 42
            for j in range(4):
                push([f"s_add_u32 s3, s55, {slot*16384 + j*1024}", "s_mov_b32 m0, s3",
                      f"s_add_u32 s50, s60, {j*9216 + (tau&1)*128*1152 + (tau>>1)*128}",
                      f"buffer_load_dwordx4 v222, s[56:59], s50 offen lds"])
        vm.add(f"u{u}", 4)
    def kv_of(v):
        if v == 0: return 8, 0
        if v & 1: return 8, (v - 1) // 2 + 1
        return 12, (v - 2) // 2
    def touch_static(v):
        if not PF: return
        srd, i = kv_of(v)
        push([f"s_add_u32 s41, s44, {i*16384}", f"buffer_load_dword v23, v221, s[{srd}:{srd+3}], s41 offen"])
        vm.add("pf", 1)
    def touch_dyn(srd, sreg):
        if not PF: return
        push([f"s_add_u32 s41, {sreg}, {(PF//2 - 1)*16384}", f"buffer_load_dword v23, v221, s[{srd}:{srd+3}], s41 offen"])
    def issue_dyn(srd, sreg, slot):
        for j in range(4):
            c = []
            if j == 0:
                c = [f"s_add_u32 s3, s55, {slot*16384}", "s_mov_b32 m0, s3", "s_nop 0"]
            c += [f"buffer_load_dwordx4 v{4+j}, s[{srd}:{srd+3}], {sreg} offen offset:{j*1024}{NT} lds"]
            if j == 3:
                c += [f"s_add_u32 {sreg}, {sreg}, 16384"]
            push(c)
        touch_dyn(srd, sreg)

    def sync(issue, vmwait=("s_waitcnt vmcnt(11)" if PF else "s_waitcnt vmcnt(8)")):
        drain()
        lg.wait_all()
        if callable(vmwait): vmwait()
        else: e(vmwait)
        e("s_barrier")
        if issue: issue()

    fcount = [0]
    def run_stream(mf, fillers, events, LA=6, pre=0):
        n_mm = sum(1 for m in mf if m.get('mm'))
        nxt = pre
        fi = 0
        for n in range(n_mm):
            for ev in events.get(n, []):
                ev()
            while nxt < len(mf) and nxt <= n + LA and mf[nxt].get('gate', 0) <= n:
                m = mf[nxt]
                m['buf'] = FP + 4 * (fcount[0] % NFB); fcount[0] += 1
                m['tag'] = f"f{fcount[0]}"
                m['rd'](m['buf'], m['tag'])
                nxt += 1
            m = mf[n]
            lg.wait(m['tag'])
            m['mm'](m['buf'])
            drain(1)
            k = fillers.get(n, [])
            for f in k:
                e(f)
        for ev in events.get(n_mm, []):
            ev()
        while nxt < len(mf):
            m = mf[nxt]
            m['buf'] = FP + 4 * (fcount[0] % NFB); fcount[0] += 1
            m['tag'] = f"f{fcount[0]}"
            m['rd'](m['buf'], m['tag'])
            nxt += 1
        return [m for m in mf if not m.get('mm')]

    def w_frag(slot, s, db, T, xf):
        def rd(buf, tag):
            for u in range(2):
                e(f"ds_read_b64_tr_b16 {vr(buf+2*u,2)}, v{VA+2*db+u} offset:{slot*16384 + s*4096 + u*1024}")
            lg.add(tag, 2)
        def mm(buf):
            c = "0" if (T == 0 and s == 0) else vr(VO + 16*db, 16)
            e(f"v_mfma_f32_32x32x16_bf16 {vr(VO+16*db,16)}, {vr(buf,4)}, {vr(xf+4*s,4)}, {c}")
        return dict(rd=rd, mm=mm)
    def k_frag(slot, s, kb, S):
        def rd(buf, tag):
            e(f"ds_read_b128 {vr(buf,4)}, v{10+s} offset:{slot*16384 + kb*8192}")
            lg.add(tag, 1)
        def mm(buf):
            c = "0" if s == 0 else vr(S+16*kb, 16)
            e(f"v_mfma_f32_32x32x16_bf16 {vr(S+16*kb,16)}, {vr(buf,4)}, {vr(VQ+4*s,4)}, {c}")
        return dict(rd=rd, mm=mm)
    def v_frag(slot, kb, t, db):
        def rd(buf, tag):
            for u in range(2):
                e(f"ds_read_b64_tr_b16 {vr(buf+2*u,2)}, v{VA+2*db+u} offset:{slot*16384 + kb*8192+t*4096+u*2048}")
            lg.add(tag, 2)
        def mm(buf):
            p = VP + 4*(2*kb + t)
            e(f"v_mfma_f32_32x32x16_bf16 {vr(VO+16*db,16)}, {vr(buf,4)}, {vr(p,4)}, {vr(VO+16*db,16)}")
        return dict(rd=rd, mm=mm)
    def strip(m):
        m2 = dict(m); m2.pop('mm'); return m2
    def carry(pend, full):
        for a, b in zip(pend, full):
            b['buf'] = a['buf']; b['tag'] = a['tag']
        return len(pend)

    stamp(0)
    if STAG:
        e("s_cmp_eq_u32 s53, 0")
        e("s_cbranch_scc1 L_stag0")
        for _ in range(STAG):
            e("s_barrier")
        e("L_stag0:")
    WARM = int(os.environ.get("WARM", "1"))
    e("s_lshr_b32 s61, s2, 3")
    e("s_and_b32 s63, s2, 7")
    e("s_lshr_b32 s63, s63, 1")
    e("s_mov_b32 s32, s28")
    e("s_and_b32 s33, s29, 0xffff")
    e("s_mov_b32 s34, 1179648")
    e("s_mov_b32 s35, 0x20000")
    e("s_mul_i32 s3, s61, 288")
    e("v_add_u32 v220, s3, v221")
    e("v_lshlrev_b32 v220, 7, v220")
    e("v_cmp_gt_u32 vcc, 288, v221")
    e("v_mov_b32 v23, 0x40000000")
    e("s_nop 1")
    e("v_cndmask_b32 v220, v23, v220, vcc")
    e("s_mul_i32 s3, s61, 18")
    e("v_lshrrev_b32 v22, 4, v221")
    e("v_add_u32 v22, s3, v22")
    e("v_lshlrev_b32 v22, 13, v22")
    e("v_and_b32 v206, 15, v221")
    e("v_lshl_add_u32 v22, v206, 7, v22")
    e("s_lshl_b32 s3, s63, 11")
    e("v_add_u32 v22, s3, v22")
    e("v_cndmask_b32 v22, v23, v22, vcc")
    e("v_lshlrev_b32 v221, 6, v0")
    issue_x(0); issue_static(0); issue_x(1); issue_static(1); issue_x(2); issue_x(3)
    drain()
    if WARM:
        e("buffer_load_dword v207, v220, s[32:35], 0 offen")
        e("buffer_load_dword v206, v22, s[16:19], 0 offen")
        vm.add("warm", 2)
    XFB = [SA, SA + 16]
    def xread(T):
        for s in range(4):
            a = XADDR[T&3]
            if a < 65536:
                e(f"ds_read_b128 {vr(XFB[T&1]+4*s,4)}, v{202+s} offset:{a}")
            else:
                e(f"ds_read_b128 {vr(XFB[T&1]+4*s,4)}, v{208+s} offset:{a-114688}")
        lg.add(f"x{T}", 4)
    def vmw(*tags):
        def f():
            idx = [max([i for i, t in enumerate(vm.ops) if t == tg], default=-1) for tg in tags]
            tg = tags[idx.index(max(idx))]
            if WARM: pass
            vm.wait(tg)
        return f
    sync(None, vmwait=vmw("x0"))
    xread(0)
    sync(lambda: (issue_static(2), issue_x(4)), vmwait=vmw("u0", "x1"))
    pend = []
    for T in range(9):
        mf = [w_frag(T % 3, s, db, T, XFB[T&1]) for s in range(4) for db in range(4)]
        pre = carry(pend, mf)
        events = {}
        if T < 8:
            events[4] = [lambda T=T: xread(T + 1)]
            def iss(T=T):
                if T + 3 <= 8: issue_static(T + 3)
                if T + 5 <= 8: issue_x(T + 5)
                if T + 1 == 7: (issue_static(9), issue_static(10))
                if T + 1 == 8: issue_static(11)
            tags = (f"u{T+1}", f"x{T+2}") if T + 2 <= 8 else (f"u{T+1}",)
            events[12] = [lambda T=T, iss=iss, tags=tags: sync(iss, vmwait=vmw(*tags))]
            nxtf = [strip(w_frag((T + 1) % 3, 0, db, T + 1, XFB[(T+1)&1])) for db in range(4)]
            for m in nxtf: m['gate'] = 12
            mf += nxtf
        else:
            events[12] = [lambda: sync(lambda: issue_static(12), vmwait=vmw("u9"))]
        if DIAG and not os.environ.get("TAILST") and T in (0, 1, 2, 4, 6, 8):
            events.setdefault(13, []).append(lambda T=T: e(f"s_memrealtime s[{64+2*(4+(0,1,2,4,6,8).index(T))}:{65+2*(4+(0,1,2,4,6,8).index(T))}]"))
        pend = run_stream(mf, {}, events, pre=pre, LA=4)
    drain()
    stamp(1)
    e("s_nop 15")
    for db in range(4):
        for t in range(2):
            F = VQ + 4 * (2*db + t)
            a = VO + 16*db + 8*t
            for j in range(4):
                e(f"v_cvt_pk_bf16_f32 v{F+j}, v{a+2*j}, v{a+2*j+1}")
    e("s_nop 1")
    for sp in range(8):
        F = VQ + 4*sp
        e(f"v_permlane32_swap_b32 v{F}, v{F+2}")
        e(f"v_permlane32_swap_b32 v{F+1}, v{F+3}")
    for k in range(8):
        db, u = k >> 1, k & 1
        e(f"v_xor_b32 v{VA+k}, {(db<<6)^(u<<5)}, v9")
    e("v_mov_b32 v18, 0xff800000")
    e("v_mov_b32 v21, 0xff800000")
    e("v_mov_b32 v19, 0")
    e("s_add_u32 s43, s44, 16384")
    e("s_add_u32 s42, s44, 49152")
    e("s_mov_b32 s45, 0")

    def max_ops(S):
        ops = []
        for c in range(4):
            b0 = S + 8*c
            ops.append(f"v_max3_f32 v{VT+c}, v{b0}, v{b0+1}, v{b0+2}")
        for c in range(4):
            b0 = S + 8*c
            ops.append(f"v_max3_f32 v{VT+c}, v{VT+c}, v{b0+3}, v{b0+4}")
        for c in range(4):
            b0 = S + 8*c
            ops.append(f"v_max3_f32 v{VT+c}, v{VT+c}, v{b0+5}, v{b0+6}")
        for c in range(4):
            b0 = S + 8*c
            ops.append(f"v_max_f32 v{VT+c}, v{VT+c}, v{b0+7}")
        ops.append(f"v_max3_f32 v{VT}, v{VT}, v{VT+1}, v{VT+2}")
        ops.append(f"v_max_f32 v{VT}, v{VT}, v{VT+3}")
        ops.append(f"v_mov_b32 v{VT+1}, v{VT}")
        ops.append("s_nop 1")
        ops.append(f"v_permlane32_swap_b32 v{VT}, v{VT+1}")
        ops.append(f"v_max_f32 v{VT}, v{VT}, v{VT+1}")
        ops.append(f"v_mul_f32 v{VT+4}, s46, v{VT}")
        ops.append(f"v_cmp_gt_f32 vcc, v{VT+4}, v21")
        return ops
    lab_ctr = [0]
    def rescale_check():
        lab = f"L_nors_{lab_ctr[0]}"; lab_ctr[0] += 1
        e(f"s_cbranch_vccz {lab}")
        e("s_nop 15")
        e(f"v_max_f32 v{VT+5}, v18, v{VT+4}")
        e(f"v_sub_f32 v{VT+6}, v18, v{VT+5}")
        e(f"v_exp_f32 v20, v{VT+6}")
        e(f"v_mov_b32 v18, v{VT+5}")
        e(f"v_add_f32 v21, 0x41000000, v{VT+5}")
        e(f"v_mul_f32 v19, v20, v19")
        for i in range(64):
            e(f"v_mul_f32 v{VO+i}, v20, v{VO+i}")
        e(f"{lab}:")
    def exp_ops(S, kb):
        b0 = S + 16*kb
        acc = [VT+8+2*kb, VT+9+2*kb]
        ops = []
        G = 4
        for gidx in range(6):
            if gidx < 4:
                for k in range(G):
                    i = b0 + G*gidx + k
                    ops.append(f"v_fma_f32 v{i}, v{i}, s46, -v18")
            if 1 <= gidx < 5:
                for k in range(G):
                    i = b0 + G*(gidx-1) + k
                    ops.append(f"v_exp_f32 v{i}, v{i}")
            if 2 <= gidx:
                g2 = gidx - 2
                i = b0 + G*g2
                if g2 == 0:
                    ops.append(f"v_add_f32 v{acc[0]}, v{i}, v{i+1}")
                    ops.append(f"v_add_f32 v{acc[1]}, v{i+2}, v{i+3}")
                else:
                    ops.append(f"v_add_f32 v{acc[0]}, v{acc[0]}, v{i}")
                    ops.append(f"v_add_f32 v{acc[1]}, v{acc[1]}, v{i+2}")
                    ops.append(f"v_add_f32 v{acc[0]}, v{acc[0]}, v{i+1}")
                    ops.append(f"v_add_f32 v{acc[1]}, v{acc[1]}, v{i+3}")
                p = VP + 8*kb + 2*g2
                ops.append(f"v_cvt_pk_bf16_f32 v{p}, v{i}, v{i+1}")
                ops.append(f"v_cvt_pk_bf16_f32 v{p+1}, v{i+2}, v{i+3}")
        ops.append(f"v_add_f32 v{acc[0]}, v{acc[0]}, v{acc[1]}")
        ops.append(f"v_add_f32 v19, v19, v{acc[0]}")
        return ops
    def spread(ops, positions):
        d = {}
        n = len(positions)
        per = len(ops) / n
        for k, op in enumerate(ops):
            p = positions[min(n-1, int(k / per))]
            d.setdefault(p, []).append(op)
        return d

    mf = [k_frag(3, s, kb, SA) for s in range(8) for kb in range(2)]
    zero_ops = [f"v_mov_b32 v{VO+i}, 0" for i in range(64)]
    e("s_nop 1")
    nxtf = [strip(k_frag(0, s, kb, SB)) for s in range(2) for kb in range(2)]
    for m in nxtf: m['gate'] = 12
    events = {12: [lambda: sync(lambda: issue_dyn(12, "s43", 3), vmwait=vmw("u10"))]}
    pend = run_stream(mf + nxtf, spread(zero_ops, list(range(16))), events)
    drain()
    e("s_nop 7")
    e("s_nop 7")
    for op in max_ops(SA):
        e(op)

    def iteration(par, pend, issue_mid, issue_end, doS=True, nextS=True, end_sync=True, wmid=None, wend=None):
        Scur, Snx = (SA, SB) if par == 0 else (SB, SA)
        kslot, vslot, k2slot = (0, 1, 2) if par == 0 else (2, 3, 0)
        rescale_check()
        ex0 = exp_ops(Scur, 0); ex1 = exp_ops(Scur, 1)
        mf = []
        events = {}
        fill = {}
        if doS:
            mf += [k_frag(kslot, s, kb, Snx) for s in range(8) for kb in range(2)]
            pre = carry(pend, mf)
            base = 16
            cut = 24
            fill.update(spread(ex0 + ex1[:cut], list(range(0, 15))))
            events[12] = [lambda: sync(issue_mid, **({'vmwait': wmid} if wmid else {}))]
            vgate = 12
        else:
            pre = 0
            base = 0
            cut = 24
            sync(issue_mid, **({'vmwait': wmid} if wmid else {}))
            vgate = 0
        vf = [v_frag(vslot, kb, t, db) for kb in range(2) for t in range(2) for db in range(4)]
        for m in vf: m['gate'] = vgate
        mf += vf
        if not doS:
            events[0] = [lambda: [e(op) for op in ex0 + ex1[:cut]] and None]
        for p, ops in spread(ex1[cut:], list(range(base, base + 7))).items():
            fill.setdefault(p, []).extend(ops)
        if nextS:
            for p, ops in spread(max_ops(Snx), list(range(base + 8, base + 16))).items():
                fill.setdefault(p, []).extend(ops)
        if end_sync:
            events[base + 12] = [lambda: sync(issue_end, **({'vmwait': wend} if wend else {}))]
        if doS and nextS and end_sync == True:
            nx = [strip(k_frag(k2slot, s, kb, Scur)) for s in range(2) for kb in range(2)]
            for m in nx: m['gate'] = base + 12
            mf += nx
        r = run_stream(mf, fill, events, pre=pre)
        drain()
        return r

    st0 = (len(lg.ops), fcount[0] % NFB, [ (m['buf']) for m in pend])
    e("L_loop:")
    pend = iteration(0, pend, lambda: issue_dyn(8, "s42", 0), lambda: issue_dyn(12, "s43", 1))
    pend = iteration(1, pend, lambda: issue_dyn(8, "s42", 2), lambda: issue_dyn(12, "s43", 3))
    st1 = (len(lg.ops), fcount[0] % NFB, [ (m['buf']) for m in pend])
    assert st0 == st1, (st0, st1)
    assert not dmaq
    e("s_add_u32 s45, s45, 1")
    e("s_cmp_lt_u32 s45, 7")
    e("s_cbranch_scc1 L_loop")
    pfo = ["pf"] if PF else []
    vm.ops = ["v14"]*4 + pfo + ["k16"]*4 + pfo + ["v15"]*4 + pfo
    pend = iteration(0, pend, lambda: issue_static(42), lambda: issue_static(43), end_sync="nok", wmid=vmw("v14"), wend=vmw("k16"))
    drain()
    if WARM:
        e("s_cmp_ge_u32 s51, 5")
        e("s_cbranch_scc1 L_nowarm2")
        e("s_mul_i32 s3, s63, 1179648")
        e("buffer_load_dword v220, v220, s[56:59], s3 offen")
        e("L_nowarm2:")
    pend = iteration(1, pend, lambda: issue_static(44), None, doS=False, nextS=False, end_sync=False, wmid=vmw("v15"))
    drain()
    stamp(2)
    e(f"v_mov_b32 v{VT+1}, v19")
    e("s_nop 1")
    e(f"v_permlane32_swap_b32 v19, v{VT+1}")
    e(f"v_add_f32 v19, v19, v{VT+1}")
    e("v_rcp_f32 v20, v19")
    e("v_lshlrev_b32 v1, 4, v0")
    XS = slot_of(41)*16384
    e("s_lshl_b32 s3, s51, 12")
    e("s_add_u32 s3, s3, 131072")
    e("v_add_u32 v2, s3, v1")
    e(f"s_add_u32 s3, s55, {XS}")
    e("v_add_u32 v3, s3, v1")
    e("s_nop 7")
    for i in range(64):
        e(f"v_mul_f32 v{VO+i}, v20, v{VO+i}")
    OWN = SA
    for db in range(4):
        for t in range(2):
            F = OWN + 4 * (2*db + t)
            a = VO + 16*db + 8*t
            for j in range(4):
                e(f"v_cvt_pk_bf16_f32 v{F+j}, v{a+2*j}, v{a+2*j+1}")
    e("s_nop 1")
    for sp in range(8):
        F = OWN + 4*sp
        e(f"v_permlane32_swap_b32 v{F}, v{F+2}")
        e(f"v_permlane32_swap_b32 v{F+1}, v{F+3}")
    if STAG:
        e("s_cmp_eq_u32 s53, 1")
        e("s_cbranch_scc1 L_stag1")
        for _ in range(STAG):
            e("s_barrier")
        e("L_stag1:")
    e("s_barrier")
    for k in range(4):
        e(f"ds_write_b128 v2, {vr(OWN+4*k,4)} offset:{k*1024}")
        e(f"ds_write_b128 v3, {vr(OWN+16+4*k,4)} offset:{k*1024}")
    e("s_add_u32 s3, s44, 131072")
    e("v_add_u32 v2, s3, v1")
    e(f"s_add_u32 s3, s44, {XS}")
    e("v_add_u32 v3, s3, v1")
    e("v_add_u32 v21, 65536, v3")
    e("s_waitcnt lgkmcnt(0)")
    e("s_barrier")
    H = [VQ, SB]
    for hh in range(2):
        for k in range(4):
            e(f"ds_read_b128 {vr(H[hh]+4*k,4)}, v2 offset:{hh*16384 + k*1024}")
        for k in range(4):
            e(f"ds_read_b128 {vr(H[hh]+16+4*k,4)}, v{3 if hh == 0 else 21} offset:{k*1024}")
        e("s_waitcnt lgkmcnt(0)")
    e("v_xor_b32 v11, 64, v223")
    e("v_mov_b32 v10, v223")
    PK = SA
    def o_frag(slot, sp, nb, hh, acc):
        def rd(buf, tag):
            for u in range(2):
                e(f"ds_read_b64_tr_b16 {vr(buf+2*u,2)}, v{10+nb} offset:{slot*16384 + sp*2048 + u*512}")
            lg.add(tag, 2)
        def mm(buf):
            c = "0" if (hh == 0 and sp == 0) else vr(acc + 16*nb, 16)
            e(f"v_mfma_f32_32x32x16_bf16 {vr(acc+16*nb,16)}, {vr(buf,4)}, {vr(H[hh]+4*sp,4)}, {c}")
        return dict(rd=rd, mm=mm)
    def store_ops(ntl):
        acc = VO + 32 * (ntl & 1)
        def f():
            drain()
            for nb in range(2):
                for j in range(8):
                    e(f"v_cvt_pk_bf16_f32 v{PK+8*nb+j}, v{acc+16*nb+2*j}, v{acc+16*nb+2*j+1}")
            e(f"s_lshl_b32 s61, s53, 14")
            e(f"s_add_u32 s61, s61, {ntl*4096}")
            for nb in range(2):
                if (ntl == 4 and nb == 1) or (ntl == 0 and nb == 0):
                    cond = 0 if (ntl == 4) else 1
                    e(f"s_cmp_eq_u32 s53, {cond}")
                    e(f"s_cselect_b32 s47, 0x10000000, s61")
                    sreg = "s47"
                else:
                    sreg = "s61"
                for tt in range(2):
                    e(f"buffer_store_dwordx4 {vr(PK+8*nb+4*tt,4)}, v1, s[24:27], {sreg} offen offset:{nb*2048 + tt*1024}{STF}")
                    vm.add("st", 1)
        return f
    def osync(tau):
        def iss():
            if tau + 3 < 10:
                issue_static(42 + tau + 3)
        sync(iss, vmwait=lambda: vm.wait(f"u{42+tau}"))
    if DIAG and os.environ.get("TAILST"): stamp(4)
    osync(0)
    if DIAG and os.environ.get("TAILST"): stamp(5)
    pend = []
    for tau in range(10):
        slot = slot_of(42 + tau)
        ntl = tau >> 1; hh = tau & 1
        acc = VO + 32 * (ntl & 1)
        mf = [o_frag(slot, sp, nb, hh, acc) for sp in range(8) for nb in range(2)]
        pre = carry(pend, mf)
        events = {}
        if hh == 0 and ntl > 0:
            events[6] = [store_ops(ntl - 1)]
        if tau < 9:
            events[12] = [lambda tau=tau: osync(tau + 1)]
            nx = [strip(o_frag(slot_of(43 + tau), sp, nb, 0, 0)) for sp in range(2) for nb in range(2)]
            for m in nx: m['gate'] = 12
            mf += nx
        if DIAG and os.environ.get("TAILST") and tau in (2, 5, 8):
            events.setdefault(13, []).append(lambda tau=tau: e(f"s_memrealtime s[{64+2*(6+(2,5,8).index(tau))}:{65+2*(6+(2,5,8).index(tau))}]"))
        pend = run_stream(mf, {}, events, pre=pre)
    e("s_nop 15")
    store_ops(4)()
    if DIAG and os.environ.get("TAILST"): stamp(9)
    e("s_waitcnt vmcnt(0)")
    stamp(3)
    stamp_flush(10, 67108864)
    e("L_attn_done:")
    e("s_endpgm")

def gen_reduce():
    e(".globl reduce_kernel")
    e(".p2align 8")
    e(".type reduce_kernel,@function")
    e("reduce_kernel:")
    e("s_cmp_ge_u32 s2, 576")
    e("s_cbranch_scc1 L_rd_done")
    e("s_load_dwordx2 s[38:39], s[0:1], 96")
    e("s_load_dwordx2 s[36:37], s[0:1], 80")
    e("v_lshrrev_b32 v1, 6, v0")
    e("v_and_b32 v0, 63, v0")
    e("s_nop 0")
    e("v_readfirstlane_b32 s7, v1")
    e("s_nop 3")
    e("s_lshl_b32 s3, s2, 2")
    e("s_add_u32 s3, s3, s7")
    e("s_mul_i32 s4, s3, 58255")
    e("s_lshr_b32 s4, s4, 23")
    e("s_mul_i32 s5, s4, 144")
    e("s_sub_u32 s5, s3, s5")
    e("s_mul_i32 s6, s5, 1821")
    e("s_lshr_b32 s6, s6, 16")
    e("s_mul_i32 s8, s6, 36")
    e("s_sub_u32 s8, s5, s8")
    e("v_lshlrev_b32 v1, 4, v0")
    e("s_waitcnt lgkmcnt(0)")
    e("s_mul_i32 s9, s4, 2359296")
    e("s_lshl_b32 s10, s5, 10")
    e("s_add_u32 s9, s9, s10")
    e("s_add_u32 s12, s38, s9")
    e("s_addc_u32 s13, s39, 0")
    e("s_and_b32 s13, s13, 0xffff")
    e("s_mov_b32 s14, 2359296")
    e("s_mov_b32 s15, 0x20000")
    e("s_mov_b32 s16, s36")
    e("s_and_b32 s17, s37, 0xffff")
    e("s_mov_b32 s18, 2359296")
    e("s_mov_b32 s19, 0x20000")
    for p in range(16):
        e(f"s_mov_b32 s20, {p*147456}")
        e(f"buffer_load_dwordx4 {vr(8+4*p,4)}, v1, s[12:15], s20 offen")
    e("s_and_b32 s9, s4, 7")
    e("s_lshr_b32 s10, s4, 3")
    e("s_lshl_b32 s9, s9, 7")
    e("s_lshl_b32 s11, s6, 5")
    e("s_add_u32 s9, s9, s11")
    e("v_and_b32 v2, 31, v0")
    e("v_add_u32 v2, s9, v2")
    e("v_mul_u32_u24 v2, 2304, v2")
    e("v_lshrrev_b32 v3, 5, v0")
    e("v_lshl_add_u32 v2, v3, 4, v2")
    e("s_mul_i32 s10, s10, 1152")
    e("s_lshl_b32 s11, s8, 5")
    e("s_add_u32 s10, s10, s11")
    e("v_add_u32 v2, s10, v2")
    A = 80
    for p in range(16):
        e(f"s_waitcnt vmcnt({15-p})")
        for k in range(4):
            src = 8 + 4*p + k
            if p == 0:
                e(f"v_lshlrev_b32 v{A+2*k}, 16, v{src}")
                e(f"v_and_b32 v{A+2*k+1}, 0xffff0000, v{src}")
            else:
                e(f"v_lshlrev_b32 v{A+8+2*k}, 16, v{src}")
                e(f"v_and_b32 v{A+8+2*k+1}, 0xffff0000, v{src}")
        if p > 0:
            for k in range(8):
                e(f"v_add_f32 v{A+k}, v{A+k}, v{A+8+k}")
    for k in range(4):
        e(f"v_cvt_pk_bf16_f32 v{4+k}, v{A+2*k}, v{A+2*k+1}")
    e("s_nop 1")
    e("v_permlane32_swap_b32 v4, v6")
    e("v_permlane32_swap_b32 v5, v7")
    e("buffer_store_dwordx4 v[4:7], v2, s[16:19], 0 offen")
    e("s_waitcnt vmcnt(0)")
    e("L_rd_done:")
    e("s_endpgm")

def desc(name, vgpr, accum, sgpr=(100 if DIAG else 64)):
    e(f".amdhsa_kernel {name}")
    e(f"  .amdhsa_next_free_vgpr {vgpr}")
    e(f"  .amdhsa_next_free_sgpr {sgpr}")
    e(f"  .amdhsa_accum_offset {accum}")
    e("  .amdhsa_group_segment_fixed_size 0")
    e("  .amdhsa_kernarg_size 104")
    e("  .amdhsa_user_sgpr_count 2")
    e("  .amdhsa_user_sgpr_kernarg_segment_ptr 1")
    e("  .amdhsa_system_sgpr_workgroup_id_x 1")
    e(".end_amdhsa_kernel")

gen_attn()
gen_reduce()
e('.section .rodata,"a"')
e(".p2align 6")
desc("attn_kernel", 256, 256)
e(".p2align 6")
desc("reduce_kernel", 96, 96)

with open(sys.argv[1] if len(sys.argv) > 1 else OUT, "w") as f:
    f.write(HEADER + "\n".join(L) + "\n")
```

```python
import sys, os

NAME = "concat_heads__mha_block_cached__mha_block_cached__near_ridge"
OUT = f"cdna_kernels/{NAME}.s"
DIAG = int(os.environ.get("DIAG", "0"))
NT = " nt" if int(os.environ.get("NT", "0")) else ""
NSLOT = 8
SCR = NSLOT * 16384
NO1 = int(os.environ.get("NO1", "4"))
X0 = int(os.environ.get("X0", "2"))

L = []
def e(s=""):
    L.append(s)

def stamp(idx):
    if not DIAG:
        return
    e(f"s_memrealtime s[{64+2*idx}:{65+2*idx}]")

def stamp_flush(n, base, wreg="s51"):
    if not DIAG:
        return
    lab = f"L_st_{len(L)}"
    e("s_waitcnt lgkmcnt(0)")
    e(f"s_cmp_lg_u32 {wreg}, 0")
    e(f"s_cbranch_scc1 {lab}")
    e("s_mov_b64 exec, 1")
    e("s_lshl_b32 s62, s2, 7")
    e(f"s_add_u32 s62, s62, {base}")
    e("v_mov_b32 v22, s62")
    for i in range(n):
        e(f"v_mov_b32 v20, s{64+2*i}")
        e(f"v_mov_b32 v21, s{65+2*i}")
        e(f"global_store_dwordx2 v22, v[20:21], s[38:39] offset:{8*i}")
        e("s_nop 1")
    e("s_waitcnt vmcnt(0)")
    e(f"{lab}:")

def vr(a, n):
    return f"v[{a}:{a+n-1}]"

HEADER = f"""; Kernarg layout for this problem (104 bytes, ptrs only, base s[0:1]):
; @launch kernel=attn_kernel grid=(256,1,1) block=(512,1,1) lds=163840
; @launch kernel=reduce_kernel grid=(576,1,1) block=(256,1,1) lds=0
.amdgcn_target "amdgcn-amd-amdhsa--gfx950"
.text
"""

class Cnt:
    def __init__(self, name):
        self.name = name
        self.ops = []
    def add(self, tag, n=1):
        self.ops += [tag] * n
        assert len(self.ops) <= (15 if self.name == "lgkmcnt" else 63), (self.name, len(self.ops))
    def wait(self, *tags):
        idx = [i for i, t in enumerate(self.ops) if t in tags]
        if not idx:
            return
        last = max(idx)
        n = len(self.ops) - 1 - last
        e(f"s_waitcnt {self.name}({n})")
        self.ops = self.ops[last+1:]
    def wait_all(self):
        if self.ops:
            e(f"s_waitcnt {self.name}(0)")
        self.ops = []

R_DK, R_DV, R_DW, R_DO = 4, 6, 8, 9
R_XO = 11
R_BK, R_BV, R_BW, R_BO = 12, 16, 24, 32
R_WA = 36
R_M, R_THR, R_L, R_AL = 44, 45, 46, 47
VT = 48
R_SW, R_SR, R_ST = 56, 57, 58
VQ = 64; VO = 80; SA = 112; SB = 128; VP = 144; FP = 152; NFB = 8
QA = 184
XF = 216
OF1 = 232
OAC = 60
O1P = 184

def gen_attn():
    OAC = 248 - 0
    e(".globl attn_kernel")
    e(".p2align 8")
    e(".type attn_kernel,@function")
    e("attn_kernel:")
    e("s_cmp_ge_u32 s2, 256")
    e("s_cbranch_scc1 L_attn_done")
    e("s_load_dwordx2 s[38:39], s[0:1], 96")
    e("s_and_b32 s3, s2, 7")
    e("s_and_b32 s4, s3, 1")
    e("s_lshr_b32 s3, s3, 1")
    e("s_lshr_b32 s47, s2, 3")
    e("s_and_b32 s52, s47, 3")
    e("s_lshl_b32 s3, s3, 2")
    e("s_add_u32 s52, s52, s3")
    e("s_lshr_b32 s5, s47, 2")
    e("s_mul_i32 s3, s4, 40")
    e("s_add_u32 s0, s0, s3")
    e("s_addc_u32 s1, s1, 0")
    e("s_load_dwordx8 s[28:35], s[0:1], 0")
    e("s_load_dwordx2 s[36:37], s[0:1], 32")
    e("v_lshrrev_b32 v1, 6, v0")
    e("v_and_b32 v0, 63, v0")
    e("s_nop 0")
    e("v_readfirstlane_b32 s51, v1")
    e("s_nop 3")
    e("s_and_b32 s53, s51, 1")
    e("v_lshrrev_b32 v1, 4, v0")
    e("v_and_b32 v2, 15, v0")
    e("s_lshl_b32 s3, s53, 3")
    e("v_add_u32 v3, s3, v1")
    for j in range(2):
        e(f"v_add_u32 v48, {4*j}, v3")
        e("v_xor_b32 v48, v48, v2")
        e("v_lshlrev_b32 v48, 4, v48")
        e(f"v_lshl_add_u32 v{R_DK+j}, v1, 8, v48")
    for j in range(2):
        e(f"v_add_u32 v48, {4*j}, v1")
        e("v_lshlrev_b32 v48, 1, v48")
        e("v_xor_b32 v48, v48, v2")
        e("v_lshlrev_b32 v48, 4, v48")
        e(f"v_lshl_add_u32 v{R_DV+j}, v1, 8, v48")
    e("s_lshl_b32 s3, s53, 2")
    e("v_or_b32 v48, s3, v1")
    e("v_lshlrev_b32 v48, 1, v48")
    e("v_xor_b32 v48, v48, v2")
    e("v_lshlrev_b32 v48, 4, v48")
    e(f"v_lshl_add_u32 v{R_DW}, v1, 13, v48")
    e("v_lshrrev_b32 v48, 3, v0")
    e("v_mul_u32_u24 v48, 1152, v48")
    e("v_and_b32 v49, 7, v0")
    e("v_and_b32 v50, 1, v1")
    e("v_lshlrev_b32 v50, 1, v50")
    e("v_xor_b32 v49, v49, v50")
    e(f"v_lshl_add_u32 v{R_DO}, v49, 4, v48")
    e("v_xor_b32 v49, 4, v49")
    e(f"v_lshl_add_u32 v{R_DO+1}, v49, 4, v48")
    e("s_lshl_b32 s3, s51, 4")
    e("v_add_u32 v48, s3, v2")
    e("v_mul_u32_u24 v48, 1152, v48")
    e(f"v_lshl_add_u32 v{R_XO}, v1, 4, v48")
    e("v_xor_b32 v48, v1, v2")
    e("v_lshlrev_b32 v48, 4, v48")
    e(f"v_lshl_add_u32 v{R_BK}, v2, 8, v48")
    for ks in range(1, 4):
        e(f"v_xor_b32 v{R_BK+ks}, {ks<<6}, v{R_BK}")
    e("v_lshrrev_b32 v48, 2, v2")
    e("v_bfe_u32 v49, v2, 1, 1")
    e("v_and_b32 v50, 1, v2")
    e("v_lshlrev_b32 v50, 3, v50")
    e("v_and_b32 v51, 1, v1")
    e("v_lshl_add_u32 v52, v51, 2, v48")
    e("v_lshl_add_u32 v53, v52, 1, v49")
    e("v_lshl_add_u32 v53, v53, 4, v50")
    e("v_lshl_add_u32 v54, v1, 2, v48")
    e(f"v_lshl_add_u32 v{R_BV}, v54, 8, v53")
    for db in range(1, 8):
        e(f"v_xor_b32 v{R_BV+db}, {db<<5}, v{R_BV}")
    e("v_lshl_add_u32 v54, v1, 3, v48")
    e(f"v_lshl_add_u32 v{R_BW}, v54, 8, v53")
    for db in range(1, 8):
        e(f"v_xor_b32 v{R_BW+db}, {db<<5}, v{R_BW}")
    e("v_lshrrev_b32 v52, 1, v48")
    e("v_lshl_add_u32 v52, v51, 1, v52")
    e("v_lshl_add_u32 v53, v52, 1, v49")
    e("v_lshl_add_u32 v53, v53, 4, v50")
    e(f"v_lshl_add_u32 v{R_BO}, v54, 7, v53")
    for nb in range(1, 4):
        e(f"v_xor_b32 v{R_BO+nb}, {nb<<5}, v{R_BO}")
    e("s_lshl_b32 s3, s51, 12")
    e(f"s_add_u32 s3, s3, {SCR}")
    e("v_lshlrev_b32 v48, 8, v2")
    e("v_add_u32 v48, s3, v48")
    e(f"v_lshl_add_u32 v{R_SW}, v1, 3, v48")
    e(f"v_lshl_add_u32 v{R_SR}, v1, 4, v48")
    e(f"v_lshlrev_b32 v{R_ST}, 4, v0")
    e("s_waitcnt lgkmcnt(0)")
    e("s_mul_i32 s3, s5, 147456")
    e("s_add_u32 s20, s28, s3")
    e("s_addc_u32 s21, s29, 0")
    e("s_and_b32 s21, s21, 0xffff")
    e("s_mov_b32 s22, 147456")
    e("s_mov_b32 s23, 0x20000")
    e("s_lshl_b32 s3, s5, 4")
    e("s_add_u32 s3, s3, s52")
    e("s_lshl_b32 s3, s3, 19")
    e("s_add_u32 s8, s30, s3")
    e("s_addc_u32 s9, s31, 0")
    e("s_and_b32 s9, s9, 0xffff")
    e("s_mov_b32 s10, 524288")
    e("s_mov_b32 s11, 0x20000")
    e("s_add_u32 s12, s32, s3")
    e("s_addc_u32 s13, s33, 0")
    e("s_and_b32 s13, s13, 0xffff")
    e("s_mov_b32 s14, 524288")
    e("s_mov_b32 s15, 0x20000")
    e("s_mov_b32 s16, s34")
    e("s_and_b32 s17, s35, 0xffff")
    e("s_mov_b32 s18, 4718592")
    e("s_mov_b32 s19, 0x20000")
    e("s_mov_b32 s56, s36")
    e("s_and_b32 s57, s37, 0xffff")
    e("s_mov_b32 s58, 4718592")
    e("s_mov_b32 s59, 0x20000")
    e("s_lshl_b32 s3, s4, 3")
    e("s_add_u32 s3, s3, s5")
    e("s_lshl_b32 s3, s3, 4")
    e("s_add_u32 s3, s3, s52")
    e("s_mul_i32 s3, s3, 147456")
    e("s_mul_i32 s47, s51, 18432")
    e("s_add_u32 s3, s3, s47")
    e("s_add_u32 s24, s38, s3")
    e("s_addc_u32 s25, s39, 0")
    e("s_and_b32 s25, s25, 0xffff")
    e("s_mov_b32 s26, 18432")
    e("s_mov_b32 s27, 0x20000")
    e("s_lshl_b32 s44, s51, 11")
    e("s_mov_b32 s46, 0x3e0293ee")
    e("s_lshl_b32 s48, s51, 16")
    e("s_lshl_b32 s3, s52, 9")
    e("s_add_u32 s48, s48, s3")
    e("s_lshl_b32 s3, s52, 8")
    e("s_lshl_b32 s47, s51, 4")
    e("s_add_u32 s3, s3, s47")
    e("s_mul_i32 s60, s3, 1152")

    lg = Cnt("lgkmcnt"); vm = Cnt("vmcnt")
    dmaq = []
    def push(chunk): dmaq.append(chunk)
    def drain(n=None):
        k = 0
        while dmaq and (n is None or k < n):
            for x in dmaq.pop(0): e(x)
            k += 1

    tiles = []
    for T in range(9): tiles.append(("W", 0, T))
    for hd in range(2):
        tiles.append(("K", hd, 0))
        for i in range(16):
            if i < 15: tiles.append(("K", hd, i + 1))
            tiles.append(("V", hd, i))
            ex = i - X0
            if hd == 0 and 0 <= ex < 9: tiles.append(("W", 1, ex))
            if hd == 1 and 0 <= ex < NO1: tiles.append(("O", 0, ex))
    for nt in range(9):
        if nt >= NO1: tiles.append(("O", 0, nt))
        tiles.append(("O", 1, nt))
    NTILE = len(tiles)
    def issue(n):
        if n >= NTILE: return
        ty, hd, ix = tiles[n]
        slot = (n % NSLOT) * 16384
        for j in range(2):
            if ty in "KV":
                srd = 8 if ty == "K" else 12
                c = []
                if j == 0:
                    c = [f"s_add_u32 s3, s44, {slot}", "s_mov_b32 m0, s3", f"s_add_u32 s50, s44, {hd*262144 + ix*16384}"]
                r = (R_DK if ty == "K" else R_DV) + j
                c += [f"buffer_load_dwordx4 v{r}, s[{srd}:{srd+3}], s50 offen offset:{j*1024}{NT} lds"]
            elif ty == "W":
                c = [f"s_add_u32 s3, s44, {slot + j*1024}", "s_mov_b32 m0, s3",
                     f"s_add_u32 s50, s48, {(64*ix + 4*j)*8192 + hd*256}", f"buffer_load_dwordx4 v{R_DW}, s[16:19], s50 offen lds"]
            else:
                c = [f"s_add_u32 s3, s44, {slot + j*1024}", "s_mov_b32 m0, s3",
                     f"s_add_u32 s50, s60, {(hd*128 + 8*j)*1152 + ix*128}", f"buffer_load_dwordx4 v{R_DO+j}, s[56:59], s50 offen lds"]
            push(c)
        vm.add(f"t{n}", 2)
    def xload(hd, T):
        for ks in range(2):
            push([f"buffer_load_dwordx4 {vr(XF+8*(T&1)+4*ks,4)}, v{R_XO}, s[20:23], 0 offen offset:{128*T + 64*ks}"])
        vm.add(f"x{hd}_{T}", 2)
    cur = [0]
    def open_tile(expect, extra_wait=()):
        n = cur[0]
        assert tiles[n] == expect, (tiles[n], expect)
        drain()
        lg.wait_all()
        vm.wait(f"t{n}", *extra_wait)
        e("s_barrier")
        issue(n + NSLOT - 1)
        cur[0] += 1
        return (n % NSLOT) * 16384
    wa_sel = [0]
    def set_addr(base, cnt, slot):
        for k in range(cnt):
            e(f"v_add_u32 v{R_WA+k}, {slot}, v{base+k}")

    fcount = [0]
    class Seg:
        def __init__(self, kind, expect, frags, naddr, base, extra_wait=()):
            self.kind, self.expect, self.frags, self.naddr, self.base, self.extra_wait = kind, expect, frags, naddr, base, extra_wait
    def run(segs, fillers, pre_events=None, LA=5, OPEN_AT=11):
        flat = []
        for si, sg in enumerate(segs):
            for k, f in enumerate(sg.frags):
                flat.append((si, k, f))
        opened = [False] * len(segs)
        def do_open(si):
            sg = segs[si]
            slot = open_tile(sg.expect, sg.extra_wait)
            set_addr(sg.base, sg.naddr, slot)
            opened[si] = True
        nxt = 0
        bufs = {}
        for n, (si, k, f) in enumerate(flat):
            if pre_events and n in pre_events:
                for ev in pre_events[n]: ev()
            if not opened[si]:
                do_open(si)
            if k == OPEN_AT and si + 1 < len(segs):
                while nxt < len(flat) and flat[nxt][0] == si:
                    issue_rd(flat, nxt, bufs); nxt += 1
                do_open(si + 1)
            while nxt < len(flat) and nxt <= n + LA and opened[flat[nxt][0]]:
                issue_rd(flat, nxt, bufs); nxt += 1
            buf, tag = bufs[n]
            lg.wait(tag)
            f['mm'](buf)
            drain(1)
            for x in fillers.get(n, []): e(x)
        drain()
    def issue_rd(flat, idx, bufs):
        buf = FP + 4 * (fcount[0] % NFB); fcount[0] += 1
        tag = f"f{fcount[0]}"
        flat[idx][2]['rd'](buf, tag)
        bufs[idx] = (buf, tag)

    def seg_W(hd, T):
        fr = []
        for ks in range(2):
            for db in range(8):
                def rd(buf, tag, ks=ks, db=db):
                    for u in range(2):
                        e(f"ds_read_b64_tr_b16 {vr(buf+2*u,2)}, v{R_WA+db} offset:{ks*8192 + u*1024}")
                    lg.add(tag, 2)
                def mm(buf, ks=ks, db=db):
                    c = "0" if (T == 0 and ks == 0) else vr(QA+4*db, 4)
                    e(f"v_mfma_f32_16x16x32_bf16 {vr(QA+4*db,4)}, {vr(buf,4)}, {vr(XF+8*(T&1)+4*ks,4)}, {c}")
                fr.append(dict(rd=rd, mm=mm))
        return Seg("W", ("W", hd, T), fr, 8, R_BW, extra_wait=(f"x{hd}_{T}",))
    def seg_K(hd, i, S):
        fr = []
        for ks in range(4):
            for kb in range(4):
                def rd(buf, tag, ks=ks, kb=kb):
                    e(f"ds_read_b128 {vr(buf,4)}, v{R_WA+ks} offset:{kb*4096}")
                    lg.add(tag, 1)
                def mm(buf, ks=ks, kb=kb):
                    c = "0" if ks == 0 else vr(S+4*kb, 4)
                    e(f"v_mfma_f32_16x16x32_bf16 {vr(S+4*kb,4)}, {vr(buf,4)}, {vr(VQ+4*ks,4)}, {c}")
                fr.append(dict(rd=rd, mm=mm))
        return Seg("K", ("K", hd, i), fr, 4, R_BK)
    def seg_V(hd, i):
        fr = []
        for t in range(2):
            for db in range(8):
                def rd(buf, tag, t=t, db=db):
                    for u in range(2):
                        e(f"ds_read_b64_tr_b16 {vr(buf+2*u,2)}, v{R_WA+db} offset:{t*8192 + u*4096}")
                    lg.add(tag, 2)
                def mm(buf, t=t, db=db):
                    e(f"v_mfma_f32_16x16x32_bf16 {vr(VO+4*db,4)}, {vr(buf,4)}, {vr(VP+4*t,4)}, {vr(VO+4*db,4)}")
                fr.append(dict(rd=rd, mm=mm))
        return Seg("V", ("V", hd, i), fr, 8, R_BV)
    def seg_O(hd, nt, acc, ofr, zero):
        fr = []
        for ks in range(4):
            for nb in range(4):
                def rd(buf, tag, ks=ks, nb=nb):
                    for u in range(2):
                        e(f"ds_read_b64_tr_b16 {vr(buf+2*u,2)}, v{R_WA+nb} offset:{ks*4096 + u*512}")
                    lg.add(tag, 2)
                def mm(buf, ks=ks, nb=nb):
                    c = "0" if (zero and ks == 0) else vr(acc+4*nb, 4)
                    e(f"v_mfma_f32_16x16x32_bf16 {vr(acc+4*nb,4)}, {vr(buf,4)}, {vr(ofr+4*ks,4)}, {c}")
                fr.append(dict(rd=rd, mm=mm))
        return Seg("O", ("O", hd, nt), fr, 4, R_BO)

    def transpose_to_frags(src, dst, scale=None):
        for db in range(8):
            a = src + 4*db
            if scale is not None:
                for r in range(4):
                    e(f"v_mul_f32 v{a+r}, v{scale}, v{a+r}")
            e(f"v_cvt_pk_bf16_f32 v{a}, v{a}, v{a+1}")
            e(f"v_cvt_pk_bf16_f32 v{a+1}, v{a+2}, v{a+3}")
        lg.wait_all()
        for db in range(8):
            e(f"ds_write_b64 v{R_SW}, {vr(src+4*db,2)} offset:{32*db}")
        e("s_waitcnt lgkmcnt(0)")
        for ks in range(4):
            e(f"ds_read_b128 {vr(dst+4*ks,4)}, v{R_SR} offset:{64*ks}")
        e("s_waitcnt lgkmcnt(0)")

    def max_ops(S):
        ops = []
        ops.append(f"v_max3_f32 v{VT}, v{S}, v{S+1}, v{S+2}")
        ops.append(f"v_max3_f32 v{VT+1}, v{S+8}, v{S+9}, v{S+10}")
        ops.append(f"v_max3_f32 v{VT}, v{VT}, v{S+3}, v{S+4}")
        ops.append(f"v_max3_f32 v{VT+1}, v{VT+1}, v{S+11}, v{S+12}")
        ops.append(f"v_max3_f32 v{VT}, v{VT}, v{S+5}, v{S+6}")
        ops.append(f"v_max3_f32 v{VT+1}, v{VT+1}, v{S+13}, v{S+14}")
        ops.append(f"v_max3_f32 v{VT}, v{VT}, v{S+7}, v{S+15}")
        ops.append(f"v_max_f32 v{VT}, v{VT}, v{VT+1}")
        ops.append(f"v_mov_b32 v{VT+1}, v{VT}")
        ops.append("s_nop 1")
        ops.append(f"v_permlane32_swap_b32 v{VT}, v{VT+1}")
        ops.append(f"v_max_f32 v{VT}, v{VT}, v{VT+1}")
        ops.append(f"v_mov_b32 v{VT+1}, v{VT}")
        ops.append("s_nop 1")
        ops.append(f"v_permlane16_swap_b32 v{VT}, v{VT+1}")
        ops.append(f"v_max_f32 v{VT}, v{VT}, v{VT+1}")
        ops.append(f"v_mul_f32 v{VT+4}, s46, v{VT}")
        ops.append(f"v_cmp_gt_f32 vcc, v{VT+4}, v{R_THR}")
        return ops
    lab_ctr = [0]
    def rescale_check():
        lab = f"L_nors_{lab_ctr[0]}"; lab_ctr[0] += 1
        e(f"s_cbranch_vccz {lab}")
        e("s_nop 15")
        e(f"v_max_f32 v{VT+5}, v{R_M}, v{VT+4}")
        e(f"v_sub_f32 v{VT+6}, v{R_M}, v{VT+5}")
        e(f"v_exp_f32 v{R_AL}, v{VT+6}")
        e(f"v_mov_b32 v{R_M}, v{VT+5}")
        e(f"v_add_f32 v{R_THR}, 0x41000000, v{VT+5}")
        e(f"v_mul_f32 v{R_L}, v{R_AL}, v{R_L}")
        for i in range(32):
            e(f"v_mul_f32 v{VO+i}, v{R_AL}, v{VO+i}")
        e("s_nop 1")
        e(f"{lab}:")
    def exp_ops(S):
        acc = [VT+2, VT+3]
        ops = []
        for gidx in range(6):
            if gidx < 4:
                for k in range(4):
                    i = S + 4*gidx + k
                    ops.append(f"v_fma_f32 v{i}, v{i}, s46, -v{R_M}")
            if 1 <= gidx < 5:
                for k in range(4):
                    i = S + 4*(gidx-1) + k
                    ops.append(f"v_exp_f32 v{i}, v{i}")
            if 2 <= gidx:
                g2 = gidx - 2
                i = S + 4*g2
                p = VP + 2*g2
                ops.append(f"v_cvt_pk_bf16_f32 v{p}, v{i}, v{i+1}")
                ops.append(f"v_cvt_pk_bf16_f32 v{p+1}, v{i+2}, v{i+3}")
                if g2 == 0:
                    ops.append(f"v_add_f32 v{acc[0]}, v{i}, v{i+1}")
                    ops.append(f"v_add_f32 v{acc[1]}, v{i+2}, v{i+3}")
                else:
                    ops.append(f"v_add_f32 v{acc[0]}, v{acc[0]}, v{i}")
                    ops.append(f"v_add_f32 v{acc[1]}, v{acc[1]}, v{i+2}")
                    ops.append(f"v_add_f32 v{acc[0]}, v{acc[0]}, v{i+1}")
                    ops.append(f"v_add_f32 v{acc[1]}, v{acc[1]}, v{i+3}")
        ops.append(f"v_add_f32 v{acc[0]}, v{acc[0]}, v{acc[1]}")
        ops.append(f"v_add_f32 v{R_L}, v{R_L}, v{acc[0]}")
        return ops
    def spread(ops, positions, d=None):
        d = {} if d is None else d
        n = len(positions)
        per = len(ops) / n
        for k, op in enumerate(ops):
            p = positions[min(n-1, int(k / per))]
            d.setdefault(p, []).append(op)
        return d

    stamp(0)
    xload(0, 0); issue(0); xload(0, 1)
    for n in range(1, NSLOT - 1): issue(n)
    drain()
    segs = [seg_W(0, T) for T in range(9)]
    pe = {}
    for T in range(7):
        pe[16*(T+1)] = [lambda T=T: xload(0, T + 2)]
    run(segs, {}, pre_events=pe)
    stamp(1)
    OACC = [SA, SA]
    for hd in range(2):
        pass
    OA = 216 if NO1 <= 4 else None
    assert NO1 <= 4, "register budget: O1P 184..215 (4 tiles), OA 216..231"
    for hd in range(2):
        e("s_nop 7")
        transpose_to_frags(QA, VQ)
        e(f"v_mov_b32 v{R_M}, 0xff800000")
        e(f"v_mov_b32 v{R_THR}, 0xff800000")
        e(f"v_mov_b32 v{R_L}, 0")
        zero_ops = [f"v_mov_b32 v{VO+i}, 0" for i in range(32)]
        if hd == 0:
            xload(1, 0); xload(1, 1)
        segs = [seg_K(hd, 0, SA)]
        fill = spread(zero_ops, list(range(16)))
        pe = {}
        pos = 16
        def addpe(p, f): pe.setdefault(p, []).append(f)
        addpe(pos, lambda: (e("s_nop 7"), [e(op) for op in max_ops(SA)]))
        for i in range(16):
            Scur, Snx = (SA, SB) if i % 2 == 0 else (SB, SA)
            addpe(pos, rescale_check)
            ex = exp_ops(Scur)
            cut = 40
            if i < 15:
                segs.append(seg_K(hd, i + 1, Snx))
                spread(ex[:cut], list(range(pos, pos + 15)), fill)
                pos += 16
            else:
                addpe(pos, lambda ex=ex, cut=cut: [e(op) for op in ex[:cut]])
            base = pos
            segs.append(seg_V(hd, i)); pos += 16
            spread(ex[cut:], list(range(base, base + 6)), fill)
            if i < 15:
                spread(max_ops(Snx), list(range(base + 8, base + 16)), fill)
            xi = i - X0
            if hd == 0 and 0 <= xi < 9:
                segs.append(seg_W(1, xi)); pos += 16
                if xi + 2 < 9:
                    addpe(pos, lambda xi=xi: xload(1, xi + 2))
            if hd == 1 and 0 <= xi < NO1:
                segs.append(seg_O(0, xi, OA, OF1, True)); pos += 16
            if hd == 1 and 1 <= xi <= NO1:
                pk = []
                for nb in range(4):
                    pk.append(f"v_cvt_pk_bf16_f32 v{O1P+8*(xi-1)+2*nb}, v{OA+4*nb}, v{OA+4*nb+1}")
                    pk.append(f"v_cvt_pk_bf16_f32 v{O1P+8*(xi-1)+2*nb+1}, v{OA+4*nb+2}, v{OA+4*nb+3}")
                spread(pk, list(range(base + 6, base + 8)), fill)
        run(segs, fill, pre_events=pe)
        e(f"v_mov_b32 v{VT+1}, v{R_L}")
        e("s_nop 1")
        e(f"v_permlane32_swap_b32 v{R_L}, v{VT+1}")
        e(f"v_add_f32 v{R_L}, v{R_L}, v{VT+1}")
        e(f"v_mov_b32 v{VT+1}, v{R_L}")
        e("s_nop 1")
        e(f"v_permlane16_swap_b32 v{R_L}, v{VT+1}")
        e(f"v_add_f32 v{R_L}, v{R_L}, v{VT+1}")
        e(f"v_rcp_f32 v{R_AL}, v{R_L}")
        e("s_nop 7")
        transpose_to_frags(VO, OF1 if hd == 0 else VQ, scale=R_AL)
        stamp(2 + hd)
    ACC2 = [SA, SB, VO]
    PK = VO + 16
    segs = []
    fill = {}
    pe = {}
    pos = 0
    fin = []
    for nt in range(9):
        acc = ACC2[nt % 3]
        if nt < NO1:
            ini = []
            for nb in range(4):
                for hlf in range(2):
                    src = O1P + 8*nt + 2*nb + hlf
                    ini.append(f"v_lshlrev_b32 v{acc+4*nb+2*hlf}, 16, v{src}")
                    ini.append(f"v_and_b32 v{acc+4*nb+2*hlf+1}, 0xffff0000, v{src}")
            if pos == 0:
                for x in ini: e(x)
                e("s_nop 1")
            else:
                spread(ini, list(range(pos - 8, pos - 2)), fill)
            segs.append(seg_O(1, nt, acc, VQ, False)); pos += 16
        else:
            segs.append(seg_O(0, nt, acc, OF1, True)); pos += 16
            segs.append(seg_O(1, nt, acc, VQ, False)); pos += 16
        def st(nt=nt, acc=acc):
            drain()
            for nb in range(4):
                e(f"v_cvt_pk_bf16_f32 v{PK+2*nb}, v{acc+4*nb}, v{acc+4*nb+1}")
                e(f"v_cvt_pk_bf16_f32 v{PK+2*nb+1}, v{acc+4*nb+2}, v{acc+4*nb+3}")
            e(f"s_mov_b32 s61, {nt*2048}")
            for hf in range(2):
                e(f"buffer_store_dwordx4 {vr(PK+4*hf,4)}, v{R_ST}, s[24:27], s61 offen offset:{hf*1024}")
                vm.add("st", 1)
        if nt < 8: pe[pos + 5] = [st]
        else: fin.append(st)
    run(segs, fill, pre_events=pe)
    e("s_nop 7")
    fin[0]()
    e("s_waitcnt vmcnt(0)")
    stamp(4)
    stamp_flush(5, 67108864)
    e("L_attn_done:")
    e("s_endpgm")

def gen_reduce():
    e(".globl reduce_kernel")
    e(".p2align 8")
    e(".type reduce_kernel,@function")
    e("reduce_kernel:")
    e("s_cmp_ge_u32 s2, 576")
    e("s_cbranch_scc1 L_rd_done")
    e("s_load_dwordx2 s[38:39], s[0:1], 96")
    e("s_load_dwordx2 s[36:37], s[0:1], 80")
    e("v_lshrrev_b32 v1, 6, v0")
    e("v_and_b32 v0, 63, v0")
    e("s_nop 0")
    e("v_readfirstlane_b32 s7, v1")
    e("s_nop 3")
    e("s_lshl_b32 s3, s2, 2")
    e("s_add_u32 s3, s3, s7")
    e("s_mul_i32 s4, s3, 58255")
    e("s_lshr_b32 s4, s4, 23")
    e("s_mul_i32 s5, s4, 144")
    e("s_sub_u32 s5, s3, s5")
    e("s_mul_i32 s6, s5, 3641")
    e("s_lshr_b32 s6, s6, 16")
    e("s_mul_i32 s8, s6, 18")
    e("s_sub_u32 s8, s5, s8")
    e("v_lshlrev_b32 v1, 4, v0")
    e("s_waitcnt lgkmcnt(0)")
    e("s_mul_i32 s9, s4, 2359296")
    e("s_lshl_b32 s10, s5, 10")
    e("s_add_u32 s9, s9, s10")
    e("s_add_u32 s12, s38, s9")
    e("s_addc_u32 s13, s39, 0")
    e("s_and_b32 s13, s13, 0xffff")
    e("s_mov_b32 s14, 2359296")
    e("s_mov_b32 s15, 0x20000")
    e("s_mov_b32 s16, s36")
    e("s_and_b32 s17, s37, 0xffff")
    e("s_mov_b32 s18, 2359296")
    e("s_mov_b32 s19, 0x20000")
    for p in range(16):
        e(f"s_mov_b32 s20, {p*147456}")
        e(f"buffer_load_dwordx4 {vr(8+4*p,4)}, v1, s[12:15], s20 offen")
    e("s_and_b32 s9, s4, 7")
    e("s_lshr_b32 s10, s4, 3")
    e("s_lshl_b32 s9, s9, 7")
    e("s_lshl_b32 s11, s6, 4")
    e("s_add_u32 s9, s9, s11")
    e("v_and_b32 v2, 15, v0")
    e("v_add_u32 v2, s9, v2")
    e("v_mul_u32_u24 v2, 2304, v2")
    e("v_lshrrev_b32 v3, 4, v0")
    e("v_lshl_add_u32 v2, v3, 3, v2")
    e("s_mul_i32 s10, s10, 1152")
    e("s_lshl_b32 s11, s8, 6")
    e("s_add_u32 s10, s10, s11")
    e("v_add_u32 v2, s10, v2")
    A = 80
    for p in range(16):
        e(f"s_waitcnt vmcnt({15-p})")
        for k in range(4):
            src = 8 + 4*p + k
            if p == 0:
                e(f"v_lshlrev_b32 v{A+2*k}, 16, v{src}")
                e(f"v_and_b32 v{A+2*k+1}, 0xffff0000, v{src}")
            else:
                e(f"v_lshlrev_b32 v{A+8+2*k}, 16, v{src}")
                e(f"v_and_b32 v{A+8+2*k+1}, 0xffff0000, v{src}")
        if p > 0:
            for k in range(8):
                e(f"v_add_f32 v{A+k}, v{A+k}, v{A+8+k}")
    for k in range(4):
        e(f"v_cvt_pk_bf16_f32 v{4+k}, v{A+2*k}, v{A+2*k+1}")
    e("buffer_store_dwordx2 v[4:5], v2, s[16:19], 0 offen")
    e("buffer_store_dwordx2 v[6:7], v2, s[16:19], 0 offen offset:32")
    e("s_waitcnt vmcnt(0)")
    e("L_rd_done:")
    e("s_endpgm")

def desc(name, vgpr, accum, sgpr=(100 if DIAG else 64)):
    e(f".amdhsa_kernel {name}")
    e(f"  .amdhsa_next_free_vgpr {vgpr}")
    e(f"  .amdhsa_next_free_sgpr {sgpr}")
    e(f"  .amdhsa_accum_offset {accum}")
    e("  .amdhsa_group_segment_fixed_size 0")
    e("  .amdhsa_kernarg_size 104")
    e("  .amdhsa_user_sgpr_count 2")
    e("  .amdhsa_user_sgpr_kernarg_segment_ptr 1")
    e("  .amdhsa_system_sgpr_workgroup_id_x 1")
    e(".end_amdhsa_kernel")

gen_attn()
gen_reduce()
e('.section .rodata,"a"')
e(".p2align 6")
desc("attn_kernel", 256, 256)
e(".p2align 6")
desc("reduce_kernel", 96, 96)

with open(sys.argv[1] if len(sys.argv) > 1 else OUT, "w") as f:
    f.write(HEADER + "\n".join(L) + "\n")
```

```python
import sys, os

NAME = "concat_heads__mha_block_cached__mha_block_cached__near_ridge"
OUT = f"cdna_kernels/{NAME}.s"
DIAG = int(os.environ.get("DIAG", "0"))
NT = " nt" if int(os.environ.get("NT", "0")) else ""
STF = os.environ.get("STF", "sc1")
STF = (" " + STF) if STF else ""
PF = int(os.environ.get("PF", "0"))
STAG = int(os.environ.get("STAG", "0"))

L = []
def e(s=""):
    L.append(s)

def stamp(idx):
    if not DIAG:
        return
    e(f"s_memrealtime s[{64+2*idx}:{65+2*idx}]")
    e("s_waitcnt lgkmcnt(0)")

def stamp_flush(n, base, wreg="s51"):
    if not DIAG:
        return
    lab = f"L_st_{len(L)}"
    e(f"s_cmp_lg_u32 {wreg}, 0")
    e(f"s_cbranch_scc1 {lab}")
    e("s_mov_b64 exec, 1")
    e("s_lshl_b32 s62, s2, 7")
    e(f"s_add_u32 s62, s62, {base}")
    e("v_mov_b32 v22, s62")
    for i in range(n):
        e(f"v_mov_b32 v20, s{64+2*i}")
        e(f"v_mov_b32 v21, s{65+2*i}")
        e(f"global_store_dwordx2 v22, v[20:21], s[38:39] offset:{8*i}")
        e("s_nop 1")
    e("s_waitcnt vmcnt(0)")
    e(f"{lab}:")

def vr(a, n):
    return f"v[{a}:{a+n-1}]"

HEADER = f"""; Kernarg layout for this problem (104 bytes, ptrs only, base s[0:1]):
; @launch kernel=attn_kernel grid=(256,1,1) block=(512,1,1) lds=163840
.amdgcn_target "amdgcn-amd-amdhsa--gfx950"
.text
"""

class Cnt:
    def __init__(self, name):
        self.name = name
        self.ops = []
    def add(self, tag, n=1):
        self.ops += [tag] * n
        assert len(self.ops) <= (15 if self.name == "lgkmcnt" else 63), (self.name, len(self.ops))
    def wait(self, tag):
        idx = [i for i, t in enumerate(self.ops) if t == tag]
        if not idx:
            return
        last = max(idx)
        n = len(self.ops) - 1 - last
        e(f"s_waitcnt {self.name}({n})")
        self.ops = self.ops[last+1:]
    def wait_all(self):
        if self.ops:
            e(f"s_waitcnt {self.name}(0)")
        self.ops = []

VO = 24; SA = 88; SB = 120; VP = 152; FP = 168; VT = 200; VA = 212; VQ = 224
NFB = 8

def gen_attn():
    e(".globl attn_kernel")
    e(".p2align 8")
    e(".type attn_kernel,@function")
    e("attn_kernel:")
    e("s_cmp_ge_u32 s2, 256")
    e("s_cbranch_scc1 L_attn_done")
    e("s_load_dwordx2 s[38:39], s[0:1], 96")
    e("s_load_dwordx4 s[92:95], s[0:1], 80")
    e("s_and_b32 s3, s2, 7")
    e("s_and_b32 s4, s3, 1")
    e("s_lshr_b32 s3, s3, 1")
    e("s_lshr_b32 s47, s2, 3")
    e("s_and_b32 s52, s47, 3")
    e("s_lshl_b32 s3, s3, 2")
    e("s_add_u32 s52, s52, s3")
    e("s_lshr_b32 s5, s47, 2")
    e("s_mul_i32 s3, s4, 40")
    e("s_add_u32 s0, s0, s3")
    e("s_addc_u32 s1, s1, 0")
    e("s_load_dwordx8 s[28:35], s[0:1], 0")
    e("s_load_dwordx2 s[36:37], s[0:1], 32")
    e("v_mov_b32 v221, v0")
    e("v_lshrrev_b32 v1, 6, v0")
    e("v_and_b32 v0, 63, v0")
    e("s_nop 0")
    e("v_readfirstlane_b32 s51, v1")
    e("s_nop 3")
    e("s_and_b32 s7, s51, 3")
    e("s_lshr_b32 s53, s51, 2")
    e("s_lshl_b32 s6, s52, 1")
    e("s_add_u32 s6, s6, s53")
    e("s_lshl_b32 s54, s53, 16")
    e("v_lshrrev_b32 v1, 4, v0")
    e("v_and_b32 v2, 15, v0")
    e("v_lshlrev_b32 v3, 2, v1")
    e("v_xor_b32 v3, v3, v2")
    for j in range(4):
        e(f"v_xor_b32 v23, {j}, v3")
        e(f"v_lshlrev_b32 v23, 4, v23")
        e(f"v_lshl_add_u32 v{4+j}, v1, 8, v23")
        e(f"v_lshl_add_u32 v{18+j}, v1, 13, v23")
    e("v_lshrrev_b32 v22, 3, v0")
    e("v_mul_u32_u24 v22, 1152, v22")
    e("v_and_b32 v23, 7, v0")
    e("v_xor_b32 v23, v23, v1")
    e("v_lshl_add_u32 v200, v23, 4, v22")
    e("v_xor_b32 v23, 4, v23")
    e("v_lshl_add_u32 v201, v23, 4, v22")
    e("v_and_b32 v23, 7, v0")
    e("v_bfe_u32 v9, v0, 4, 1")
    e("v_lshlrev_b32 v9, 2, v9")
    e("v_xor_b32 v23, v23, v9")
    e("v_lshl_add_u32 v222, v23, 4, v22")
    e("v_and_b32 v23, 31, v0")
    e("v_lshrrev_b32 v22, 5, v0")
    e("v_and_b32 v8, 3, v23")
    e("v_lshlrev_b32 v8, 2, v8")
    e("v_bfe_u32 v9, v23, 2, 2")
    e("v_or_b32 v8, v8, v9")
    e("v_xor_b32 v8, v8, v22")
    e("v_lshlrev_b32 v8, 4, v8")
    e("v_lshl_add_u32 v8, v23, 8, v8")
    e("v_add_u32 v8, s54, v8")
    e("v_bfe_u32 v9, v23, 1, 3")
    e("v_xor_b32 v9, v9, v22")
    e("v_lshlrev_b32 v9, 4, v9")
    e("v_lshl_add_u32 v9, v23, 7, v9")
    e("s_lshl_b32 s3, s7, 12")
    e("v_add_u32 v202, s3, v9")
    for s in range(1, 4):
        e(f"v_xor_b32 v{202+s}, {s<<5}, v202")
    for s in range(4):
        e(f"v_add_u32 v{208+s}, 114688, v{202+s}")
    e("v_lshrrev_b32 v10, 2, v2")
    e("v_and_b32 v11, 1, v1")
    e("v_lshlrev_b32 v11, 1, v11")
    e("v_bfe_u32 v12, v2, 1, 1")
    e("v_or_b32 v11, v11, v12")
    e("v_and_b32 v12, 1, v2")
    e("v_lshlrev_b32 v12, 3, v12")
    e("v_add_u32 v12, s54, v12")
    e("v_xor_b32 v13, v11, v22")
    e("v_lshl_add_u32 v13, v10, 2, v13")
    e("v_lshl_add_u32 v13, v13, 4, v12")
    e("v_lshl_add_u32 v14, v22, 2, v10")
    e("v_lshl_add_u32 v9, v14, 8, v13")
    e("v_lshrrev_b32 v13, 1, v10")
    e("v_lshl_add_u32 v13, v13, 2, v11")
    e("v_lshl_add_u32 v13, v13, 4, v12")
    e("v_lshl_add_u32 v14, v22, 3, v10")
    e("v_lshl_add_u32 v223, v14, 7, v13")
    e("v_lshlrev_b32 v14, 1, v22")
    e("v_xor_b32 v13, v11, v14")
    e("v_lshl_add_u32 v13, v10, 2, v13")
    e("v_lshl_add_u32 v13, v13, 4, v12")
    e("v_lshl_add_u32 v14, v22, 3, v10")
    e("v_lshl_add_u32 v3, v14, 8, v13")
    for db in range(4):
        for u in range(2):
            e(f"v_xor_b32 v{VA+2*db+u}, {(db<<6)^(u<<4)}, v3")
    for s in range(8):
        e(f"v_xor_b32 v{10+s}, {s<<5}, v8")
    e("s_waitcnt lgkmcnt(0)")
    e("s_mul_i32 s3, s5, 147456")
    e("s_add_u32 s20, s28, s3")
    e("s_addc_u32 s21, s29, 0")
    e("s_and_b32 s21, s21, 0xffff")
    e("s_mov_b32 s22, 0" if os.environ.get("NOXW") else "s_mov_b32 s22, 147456")
    e("s_mov_b32 s23, 0x20000")
    e("s_lshl_b32 s3, s5, 5")
    e("s_add_u32 s3, s3, s6")
    e("s_lshl_b32 s3, s3, 18")
    e("s_add_u32 s8, s30, s3")
    e("s_addc_u32 s9, s31, 0")
    e("s_and_b32 s9, s9, 0xffff")
    e("s_mov_b32 s10, 262144")
    e("s_mov_b32 s11, 0x20000")
    e("s_add_u32 s12, s32, s3")
    e("s_addc_u32 s13, s33, 0")
    e("s_and_b32 s13, s13, 0xffff")
    e("s_mov_b32 s14, 262144")
    e("s_mov_b32 s15, 0x20000")
    e("s_mov_b32 s16, s34")
    e("s_and_b32 s17, s35, 0xffff")
    e("s_mov_b32 s18, 0" if os.environ.get("NOXW") else "s_mov_b32 s18, 4718592")
    e("s_mov_b32 s19, 0x20000")
    e("s_mov_b32 s56, s36")
    e("s_and_b32 s57, s37, 0xffff")
    e("s_mov_b32 s58, 0" if os.environ.get("NOXW") else "s_mov_b32 s58, 4718592")
    e("s_mov_b32 s59, 0x20000")
    e("s_lshl_b32 s3, s4, 3")
    e("s_add_u32 s3, s3, s5")
    e("s_lshl_b32 s3, s3, 4")
    e("s_add_u32 s3, s3, s52")
    e("s_mul_i32 s3, s3, 147456")
    e("s_mul_i32 s47, s7, 36864")
    e("s_add_u32 s3, s3, s47")
    e("s_add_u32 s24, s38, s3")
    e("s_addc_u32 s25, s39, 0")
    e("s_and_b32 s25, s25, 0xffff")
    e("s_mov_b32 s26, 36864")
    e("s_mov_b32 s27, 0x20000")
    e("s_lshl_b32 s44, s7, 12")
    e("s_add_u32 s55, s44, s54")
    e("s_mov_b32 s46, 0x3e0293ee")
    e("s_lshl_b32 s48, s7, 17")
    e("s_lshl_b32 s3, s6, 8")
    e("s_add_u32 s48, s48, s3")
    e("s_mul_i32 s49, s51, 18432")
    e("s_lshl_b32 s40, s51, 11")
    e("s_lshl_b32 s3, s52, 8")
    e("s_lshl_b32 s47, s7, 5")
    e("s_add_u32 s3, s3, s47")
    e("s_mul_i32 s60, s3, 1152")
    e("s_lshl_b32 s3, s53, 9")
    e("s_add_u32 s60, s60, s3")

    lg = Cnt("lgkmcnt")

    dmaq = []
    SPREAD = int(os.environ.get("SPREAD", "1"))
    def push(chunk):
        if os.environ.get("NODMA") and ("s[20:23]" in chunk[-1] or "s[16:19]" in chunk[-1] or "s[56:59]" in chunk[-1]): return
        if SPREAD: dmaq.append(chunk)
        else:
            for x in chunk: e(x)
    def drain(n=None):
        k = 0
        while dmaq and (n is None or k < n):
            for x in dmaq.pop(0): e(x)
            k += 1
    vm = Cnt("vmcnt")
    XADDR = [131072, 147456, 49152, 114688]
    def slot_of(u):
        return (u % 3) if u < 9 else ((u - 9 + 3) & 3)
    def issue_x(T):
        for j in range(2):
            push([f"s_add_u32 s3, s40, {XADDR[T&3] + j*1024}", "s_mov_b32 m0, s3",
                  f"s_add_u32 s50, s49, {j*9216 + 128*T}", f"buffer_load_dwordx4 v{200+j}, s[20:23], s50 offen lds"])
        vm.add(f"x{T}", 2)
    def issue_static(u):
        slot = slot_of(u)
        if u < 9:
            for j in range(4):
                push([f"s_add_u32 s3, s55, {slot*16384 + j*1024}", "s_mov_b32 m0, s3",
                      f"s_add_u32 s50, s48, {(64*u + 4*j)*8192}", f"buffer_load_dwordx4 v{18+j}, s[16:19], s50 offen lds"])
        elif u <= 41:
            if u == 9: srd, i = 8, 0
            elif u & 1 == 0: srd, i = 8, (u - 10) // 2 + 1
            else: srd, i = 12, (u - 11) // 2
            for j in range(4):
                c = []
                if j == 0:
                    c = [f"s_add_u32 s3, s55, {slot*16384}", "s_mov_b32 m0, s3", f"s_add_u32 s50, s44, {i*16384}"]
                c += [f"buffer_load_dwordx4 v{4+j}, s[{srd}:{srd+3}], s50 offen offset:{j*1024}{NT} lds"]
                push(c)
        else:
            tau = u - 42
            for j in range(4):
                push([f"s_add_u32 s3, s55, {slot*16384 + j*1024}", "s_mov_b32 m0, s3",
                      f"s_add_u32 s50, s60, {j*9216 + (tau&1)*128*1152 + (tau>>1)*128}",
                      f"buffer_load_dwordx4 v222, s[56:59], s50 offen lds"])
        vm.add(f"u{u}", 4)
    def kv_of(v):
        if v == 0: return 8, 0
        if v & 1: return 8, (v - 1) // 2 + 1
        return 12, (v - 2) // 2
    def touch_static(v):
        if not PF: return
        srd, i = kv_of(v)
        push([f"s_add_u32 s41, s44, {i*16384}", f"buffer_load_dword v23, v221, s[{srd}:{srd+3}], s41 offen"])
        vm.add("pf", 1)
    def touch_dyn(srd, sreg):
        if not PF: return
        push([f"s_add_u32 s41, {sreg}, {(PF//2 - 1)*16384}", f"buffer_load_dword v23, v221, s[{srd}:{srd+3}], s41 offen"])
    def issue_dyn(srd, sreg, slot):
        for j in range(4):
            c = []
            if j == 0:
                c = [f"s_add_u32 s3, s55, {slot*16384}", "s_mov_b32 m0, s3", "s_nop 0"]
            c += [f"buffer_load_dwordx4 v{4+j}, s[{srd}:{srd+3}], {sreg} offen offset:{j*1024}{NT} lds"]
            if j == 3:
                c += [f"s_add_u32 {sreg}, {sreg}, 16384"]
            push(c)
        touch_dyn(srd, sreg)

    def sync(issue, vmwait=("s_waitcnt vmcnt(11)" if PF else "s_waitcnt vmcnt(8)")):
        drain()
        lg.wait_all()
        if callable(vmwait): vmwait()
        else: e(vmwait)
        e("s_barrier")
        if issue: issue()

    fcount = [0]
    def run_stream(mf, fillers, events, LA=6, pre=0):
        n_mm = sum(1 for m in mf if m.get('mm'))
        nxt = pre
        fi = 0
        for n in range(n_mm):
            for ev in events.get(n, []):
                ev()
            while nxt < len(mf) and nxt <= n + LA and mf[nxt].get('gate', 0) <= n:
                m = mf[nxt]
                m['buf'] = FP + 4 * (fcount[0] % NFB); fcount[0] += 1
                m['tag'] = f"f{fcount[0]}"
                m['rd'](m['buf'], m['tag'])
                nxt += 1
            m = mf[n]
            lg.wait(m['tag'])
            m['mm'](m['buf'])
            drain(1)
            k = fillers.get(n, [])
            for f in k:
                e(f)
        for ev in events.get(n_mm, []):
            ev()
        while nxt < len(mf):
            m = mf[nxt]
            m['buf'] = FP + 4 * (fcount[0] % NFB); fcount[0] += 1
            m['tag'] = f"f{fcount[0]}"
            m['rd'](m['buf'], m['tag'])
            nxt += 1
        return [m for m in mf if not m.get('mm')]

    def w_frag(slot, s, db, T, xf):
        def rd(buf, tag):
            for u in range(2):
                e(f"ds_read_b64_tr_b16 {vr(buf+2*u,2)}, v{VA+2*db+u} offset:{slot*16384 + s*4096 + u*1024}")
            lg.add(tag, 2)
        def mm(buf):
            c = "0" if (T == 0 and s == 0) else vr(VO + 16*db, 16)
            e(f"v_mfma_f32_32x32x16_bf16 {vr(VO+16*db,16)}, {vr(buf,4)}, {vr(xf+4*s,4)}, {c}")
        return dict(rd=rd, mm=mm)
    def k_frag(slot, s, kb, S):
        def rd(buf, tag):
            e(f"ds_read_b128 {vr(buf,4)}, v{10+s} offset:{slot*16384 + kb*8192}")
            lg.add(tag, 1)
        def mm(buf):
            c = "0" if s == 0 else vr(S+16*kb, 16)
            e(f"v_mfma_f32_32x32x16_bf16 {vr(S+16*kb,16)}, {vr(buf,4)}, {vr(VQ+4*s,4)}, {c}")
        return dict(rd=rd, mm=mm)
    def v_frag(slot, kb, t, db):
        def rd(buf, tag):
            for u in range(2):
                e(f"ds_read_b64_tr_b16 {vr(buf+2*u,2)}, v{VA+2*db+u} offset:{slot*16384 + kb*8192+t*4096+u*2048}")
            lg.add(tag, 2)
        def mm(buf):
            p = VP + 4*(2*kb + t)
            e(f"v_mfma_f32_32x32x16_bf16 {vr(VO+16*db,16)}, {vr(buf,4)}, {vr(p,4)}, {vr(VO+16*db,16)}")
        return dict(rd=rd, mm=mm)
    def strip(m):
        m2 = dict(m); m2.pop('mm'); return m2
    def carry(pend, full):
        for a, b in zip(pend, full):
            b['buf'] = a['buf']; b['tag'] = a['tag']
        return len(pend)

    stamp(0)
    if STAG:
        e("s_cmp_eq_u32 s53, 0")
        e("s_cbranch_scc1 L_stag0")
        for _ in range(STAG):
            e("s_barrier")
        e("L_stag0:")
    WARM = int(os.environ.get("WARM", "1"))
    e("s_lshr_b32 s61, s2, 3")
    e("s_and_b32 s63, s2, 7")
    e("s_lshr_b32 s63, s63, 1")
    e("s_mov_b32 s32, s28")
    e("s_and_b32 s33, s29, 0xffff")
    e("s_mov_b32 s34, 1179648")
    e("s_mov_b32 s35, 0x20000")
    e("s_mul_i32 s3, s61, 288")
    e("v_add_u32 v220, s3, v221")
    e("v_lshlrev_b32 v220, 7, v220")
    e("v_cmp_gt_u32 vcc, 288, v221")
    e("v_mov_b32 v23, 0x40000000")
    e("s_nop 1")
    e("v_cndmask_b32 v220, v23, v220, vcc")
    e("s_mul_i32 s3, s61, 18")
    e("v_lshrrev_b32 v22, 4, v221")
    e("v_add_u32 v22, s3, v22")
    e("v_lshlrev_b32 v22, 13, v22")
    e("v_and_b32 v206, 15, v221")
    e("v_lshl_add_u32 v22, v206, 7, v22")
    e("s_lshl_b32 s3, s63, 11")
    e("v_add_u32 v22, s3, v22")
    e("v_cndmask_b32 v22, v23, v22, vcc")
    e("v_lshlrev_b32 v221, 6, v0")
    issue_x(0); issue_static(0); issue_x(1); issue_static(1); issue_x(2); issue_x(3)
    drain()
    if False:
        e("buffer_load_dword v207, v220, s[32:35], 0 offen")
        e("buffer_load_dword v206, v22, s[16:19], 0 offen")
        vm.add("warm", 2)
    XFB = [SA, SA + 16]
    def xread(T):
        for s in range(4):
            a = XADDR[T&3]
            if a < 65536:
                e(f"ds_read_b128 {vr(XFB[T&1]+4*s,4)}, v{202+s} offset:{a}")
            else:
                e(f"ds_read_b128 {vr(XFB[T&1]+4*s,4)}, v{208+s} offset:{a-114688}")
        lg.add(f"x{T}", 4)
    def vmw(*tags):
        def f():
            idx = [max([i for i, t in enumerate(vm.ops) if t == tg], default=-1) for tg in tags]
            tg = tags[idx.index(max(idx))]
            if WARM: pass
            vm.wait(tg)
        return f
    sync(None, vmwait=vmw("x0"))
    xread(0)
    sync(lambda: (issue_static(2), issue_x(4)), vmwait=vmw("u0", "x1"))
    pend = []
    for T in range(9):
        mf = [w_frag(T % 3, s, db, T, XFB[T&1]) for s in range(4) for db in range(4)]
        pre = carry(pend, mf)
        events = {}
        if T < 8:
            events[4] = [lambda T=T: xread(T + 1)]
            def iss(T=T):
                if T + 3 <= 8: issue_static(T + 3)
                if T + 5 <= 8: issue_x(T + 5)
                if T + 1 == 7: (issue_static(9), issue_static(10))
                if T + 1 == 8: issue_static(11)
            tags = (f"u{T+1}", f"x{T+2}") if T + 2 <= 8 else (f"u{T+1}",)
            events[12] = [lambda T=T, iss=iss, tags=tags: sync(iss, vmwait=vmw(*tags))]
            nxtf = [strip(w_frag((T + 1) % 3, 0, db, T + 1, XFB[(T+1)&1])) for db in range(4)]
            for m in nxtf: m['gate'] = 12
            mf += nxtf
        else:
            events[12] = [lambda: sync(lambda: issue_static(12), vmwait=vmw("u9"))]
        if False:
            events.setdefault(13, []).append(lambda T=T: e(f"s_memrealtime s[{64+2*(4+(0,1,2,4,6,8).index(T))}:{65+2*(4+(0,1,2,4,6,8).index(T))}]"))
        pend = run_stream(mf, {}, events, pre=pre, LA=int(os.environ.get('QLA','4')))
    drain()
    stamp(1)
    e("s_nop 15")
    for db in range(4):
        for t in range(2):
            F = VQ + 4 * (2*db + t)
            a = VO + 16*db + 8*t
            for j in range(4):
                e(f"v_cvt_pk_bf16_f32 v{F+j}, v{a+2*j}, v{a+2*j+1}")
    e("s_nop 1")
    for sp in range(8):
        F = VQ + 4*sp
        e(f"v_permlane32_swap_b32 v{F}, v{F+2}")
        e(f"v_permlane32_swap_b32 v{F+1}, v{F+3}")
    for k in range(8):
        db, u = k >> 1, k & 1
        e(f"v_xor_b32 v{VA+k}, {(db<<6)^(u<<5)}, v9")
    e("v_mov_b32 v18, 0xff800000")
    e("v_mov_b32 v21, 0xff800000")
    e("v_mov_b32 v19, 0")
    e("s_add_u32 s43, s44, 16384")
    e("s_add_u32 s42, s44, 49152")
    e("s_mov_b32 s45, 0")

    def max_ops(S):
        ops = []
        for c in range(4):
            b0 = S + 8*c
            ops.append(f"v_max3_f32 v{VT+c}, v{b0}, v{b0+1}, v{b0+2}")
        for c in range(4):
            b0 = S + 8*c
            ops.append(f"v_max3_f32 v{VT+c}, v{VT+c}, v{b0+3}, v{b0+4}")
        for c in range(4):
            b0 = S + 8*c
            ops.append(f"v_max3_f32 v{VT+c}, v{VT+c}, v{b0+5}, v{b0+6}")
        for c in range(4):
            b0 = S + 8*c
            ops.append(f"v_max_f32 v{VT+c}, v{VT+c}, v{b0+7}")
        ops.append(f"v_max3_f32 v{VT}, v{VT}, v{VT+1}, v{VT+2}")
        ops.append(f"v_max_f32 v{VT}, v{VT}, v{VT+3}")
        ops.append(f"v_mov_b32 v{VT+1}, v{VT}")
        ops.append("s_nop 1")
        ops.append(f"v_permlane32_swap_b32 v{VT}, v{VT+1}")
        ops.append(f"v_max_f32 v{VT}, v{VT}, v{VT+1}")
        ops.append(f"v_mul_f32 v{VT+4}, s46, v{VT}")
        ops.append(f"v_cmp_gt_f32 vcc, v{VT+4}, v21")
        return ops
    lab_ctr = [0]
    def rescale_check():
        lab = f"L_nors_{lab_ctr[0]}"; lab_ctr[0] += 1
        e(f"s_cbranch_vccz {lab}")
        e("s_nop 15")
        e(f"v_max_f32 v{VT+5}, v18, v{VT+4}")
        e(f"v_sub_f32 v{VT+6}, v18, v{VT+5}")
        e(f"v_exp_f32 v20, v{VT+6}")
        e(f"v_mov_b32 v18, v{VT+5}")
        e(f"v_add_f32 v21, 0x41000000, v{VT+5}")
        e(f"v_mul_f32 v19, v20, v19")
        for i in range(64):
            e(f"v_mul_f32 v{VO+i}, v20, v{VO+i}")
        e(f"{lab}:")
    def exp_ops(S, kb):
        b0 = S + 16*kb
        acc = [VT+8+2*kb, VT+9+2*kb]
        ops = []
        G = 4
        for gidx in range(6):
            if gidx < 4:
                for k in range(G):
                    i = b0 + G*gidx + k
                    ops.append(f"v_fma_f32 v{i}, v{i}, s46, -v18")
            if 1 <= gidx < 5:
                for k in range(G):
                    i = b0 + G*(gidx-1) + k
                    ops.append(f"v_exp_f32 v{i}, v{i}")
            if 2 <= gidx:
                g2 = gidx - 2
                i = b0 + G*g2
                if g2 == 0:
                    ops.append(f"v_add_f32 v{acc[0]}, v{i}, v{i+1}")
                    ops.append(f"v_add_f32 v{acc[1]}, v{i+2}, v{i+3}")
                else:
                    ops.append(f"v_add_f32 v{acc[0]}, v{acc[0]}, v{i}")
                    ops.append(f"v_add_f32 v{acc[1]}, v{acc[1]}, v{i+2}")
                    ops.append(f"v_add_f32 v{acc[0]}, v{acc[0]}, v{i+1}")
                    ops.append(f"v_add_f32 v{acc[1]}, v{acc[1]}, v{i+3}")
                p = VP + 8*kb + 2*g2
                ops.append(f"v_cvt_pk_bf16_f32 v{p}, v{i}, v{i+1}")
                ops.append(f"v_cvt_pk_bf16_f32 v{p+1}, v{i+2}, v{i+3}")
        ops.append(f"v_add_f32 v{acc[0]}, v{acc[0]}, v{acc[1]}")
        ops.append(f"v_add_f32 v19, v19, v{acc[0]}")
        return ops
    def spread(ops, positions):
        d = {}
        n = len(positions)
        per = len(ops) / n
        for k, op in enumerate(ops):
            p = positions[min(n-1, int(k / per))]
            d.setdefault(p, []).append(op)
        return d

    mf = [k_frag(3, s, kb, SA) for s in range(8) for kb in range(2)]
    zero_ops = [f"v_mov_b32 v{VO+i}, 0" for i in range(64)]
    e("s_nop 1")
    nxtf = [strip(k_frag(0, s, kb, SB)) for s in range(2) for kb in range(2)]
    for m in nxtf: m['gate'] = 12
    events = {12: [lambda: sync(lambda: issue_dyn(12, "s43", 3), vmwait=vmw("u10"))]}
    pend = run_stream(mf + nxtf, spread(zero_ops, list(range(16))), events)
    drain()
    e("s_nop 7")
    e("s_nop 7")
    for op in max_ops(SA):
        e(op)

    def iteration(par, pend, issue_mid, issue_end, doS=True, nextS=True, end_sync=True, wmid=None, wend=None):
        Scur, Snx = (SA, SB) if par == 0 else (SB, SA)
        kslot, vslot, k2slot = (0, 1, 2) if par == 0 else (2, 3, 0)
        rescale_check()
        ex0 = exp_ops(Scur, 0); ex1 = exp_ops(Scur, 1)
        mf = []
        events = {}
        fill = {}
        if doS:
            mf += [k_frag(kslot, s, kb, Snx) for s in range(8) for kb in range(2)]
            pre = carry(pend, mf)
            base = 16
            cut = 24
            fill.update(spread(ex0 + ex1[:cut], list(range(0, 15))))
            events[12] = [lambda: sync(issue_mid, **({'vmwait': wmid} if wmid else {}))]
            vgate = 12
        else:
            pre = 0
            base = 0
            cut = 24
            sync(issue_mid, **({'vmwait': wmid} if wmid else {}))
            vgate = 0
        vf = [v_frag(vslot, kb, t, db) for kb in range(2) for t in range(2) for db in range(4)]
        for m in vf: m['gate'] = vgate
        mf += vf
        if not doS:
            events[0] = [lambda: [e(op) for op in ex0 + ex1[:cut]] and None]
        for p, ops in spread(ex1[cut:], list(range(base, base + 7))).items():
            fill.setdefault(p, []).extend(ops)
        if nextS:
            for p, ops in spread(max_ops(Snx), list(range(base + 8, base + 16))).items():
                fill.setdefault(p, []).extend(ops)
        if end_sync:
            events[base + 12] = [lambda: sync(issue_end, **({'vmwait': wend} if wend else {}))]
        if doS and nextS and end_sync == True:
            nx = [strip(k_frag(k2slot, s, kb, Scur)) for s in range(2) for kb in range(2)]
            for m in nx: m['gate'] = base + 12
            mf += nx
        r = run_stream(mf, fill, events, pre=pre)
        drain()
        return r

    st0 = (len(lg.ops), fcount[0] % NFB, [ (m['buf']) for m in pend])
    e("L_loop:")
    pend = iteration(0, pend, lambda: issue_dyn(8, "s42", 0), lambda: issue_dyn(12, "s43", 1))
    pend = iteration(1, pend, lambda: issue_dyn(8, "s42", 2), lambda: issue_dyn(12, "s43", 3))
    st1 = (len(lg.ops), fcount[0] % NFB, [ (m['buf']) for m in pend])
    assert st0 == st1, (st0, st1)
    assert not dmaq
    e("s_add_u32 s45, s45, 1")
    e("s_cmp_lt_u32 s45, 7")
    e("s_cbranch_scc1 L_loop")
    pfo = ["pf"] if PF else []
    vm.ops = ["v14"]*4 + pfo + ["k16"]*4 + pfo + ["v15"]*4 + pfo
    pend = iteration(0, pend, lambda: issue_static(42), lambda: issue_static(43), end_sync="nok", wmid=vmw("v14"), wend=vmw("k16"))
    drain()
    if WARM:
        e("s_cmp_ge_u32 s51, 5")
        e("s_cbranch_scc1 L_nowarm2")
        e("s_mul_i32 s3, s63, 1179648")
        e("buffer_load_dword v220, v220, s[56:59], s3 offen")
        e("L_nowarm2:")
    pend = iteration(1, pend, lambda: issue_static(44), None, doS=False, nextS=False, end_sync=False, wmid=vmw("v15"))
    drain()
    stamp(2)
    e(f"v_mov_b32 v{VT+1}, v19")
    e("s_nop 1")
    e(f"v_permlane32_swap_b32 v19, v{VT+1}")
    e(f"v_add_f32 v19, v19, v{VT+1}")
    e("v_rcp_f32 v20, v19")
    e("v_lshlrev_b32 v1, 4, v0")
    XS = slot_of(41)*16384
    e("s_lshl_b32 s3, s51, 12")
    e("s_add_u32 s3, s3, 131072")
    e("v_add_u32 v2, s3, v1")
    e(f"s_add_u32 s3, s55, {XS}")
    e("v_add_u32 v3, s3, v1")
    e("s_nop 7")
    for i in range(64):
        e(f"v_mul_f32 v{VO+i}, v20, v{VO+i}")
    OWN = SA
    for db in range(4):
        for t in range(2):
            F = OWN + 4 * (2*db + t)
            a = VO + 16*db + 8*t
            for j in range(4):
                e(f"v_cvt_pk_bf16_f32 v{F+j}, v{a+2*j}, v{a+2*j+1}")
    e("s_nop 1")
    for sp in range(8):
        F = OWN + 4*sp
        e(f"v_permlane32_swap_b32 v{F}, v{F+2}")
        e(f"v_permlane32_swap_b32 v{F+1}, v{F+3}")
    if STAG:
        e("s_cmp_eq_u32 s53, 1")
        e("s_cbranch_scc1 L_stag1")
        for _ in range(STAG):
            e("s_barrier")
        e("L_stag1:")
    e("s_barrier")
    for k in range(4):
        e(f"ds_write_b128 v2, {vr(OWN+4*k,4)} offset:{k*1024}")
        e(f"ds_write_b128 v3, {vr(OWN+16+4*k,4)} offset:{k*1024}")
    e("s_add_u32 s3, s44, 131072")
    e("v_add_u32 v2, s3, v1")
    e(f"s_add_u32 s3, s44, {XS}")
    e("v_add_u32 v3, s3, v1")
    e("v_add_u32 v21, 65536, v3")
    e("s_waitcnt lgkmcnt(0)")
    e("s_barrier")
    H = [VQ, SB]
    for hh in range(2):
        for k in range(4):
            e(f"ds_read_b128 {vr(H[hh]+4*k,4)}, v2 offset:{hh*16384 + k*1024}")
        for k in range(4):
            e(f"ds_read_b128 {vr(H[hh]+16+4*k,4)}, v{3 if hh == 0 else 21} offset:{k*1024}")
        e("s_waitcnt lgkmcnt(0)")
    e("v_xor_b32 v11, 64, v223")
    e("v_mov_b32 v10, v223")
    PK = SA
    def o_frag(slot, sp, nb, hh, acc):
        def rd(buf, tag):
            for u in range(2):
                e(f"ds_read_b64_tr_b16 {vr(buf+2*u,2)}, v{10+nb} offset:{slot*16384 + sp*2048 + u*512}")
            lg.add(tag, 2)
        def mm(buf):
            c = "0" if (hh == 0 and sp == 0) else vr(acc + 16*nb, 16)
            e(f"v_mfma_f32_32x32x16_bf16 {vr(acc+16*nb,16)}, {vr(buf,4)}, {vr(H[hh]+4*sp,4)}, {c}")
        return dict(rd=rd, mm=mm)
    def store_ops(ntl):
        acc = VO + 32 * (ntl & 1)
        def f():
            drain()
            for nb in range(2):
                for j in range(8):
                    e(f"v_cvt_pk_bf16_f32 v{PK+8*nb+j}, v{acc+16*nb+2*j}, v{acc+16*nb+2*j+1}")
            e(f"s_lshl_b32 s61, s53, 14")
            e(f"s_add_u32 s61, s61, {ntl*4096}")
            for nb in range(2):
                if (ntl == 4 and nb == 1) or (ntl == 0 and nb == 0):
                    cond = 0 if (ntl == 4) else 1
                    e(f"s_cmp_eq_u32 s53, {cond}")
                    e(f"s_cselect_b32 s47, 0x10000000, s61")
                    sreg = "s47"
                else:
                    sreg = "s61"
                for tt in range(2):
                    e(f"buffer_store_dwordx4 {vr(PK+8*nb+4*tt,4)}, v1, s[24:27], {sreg} offen offset:{nb*2048 + tt*1024}{STF}")
                    vm.add("st", 1)
        return f
    def osync(tau):
        def iss():
            if tau + 3 < 10:
                issue_static(42 + tau + 3)
        sync(iss, vmwait=lambda: vm.wait(f"u{42+tau}"))
    if DIAG and os.environ.get("TAILST"): stamp(4)
    osync(0)
    if DIAG and os.environ.get("TAILST"): stamp(5)
    pend = []
    for tau in range(10):
        slot = slot_of(42 + tau)
        ntl = tau >> 1; hh = tau & 1
        acc = VO + 32 * (ntl & 1)
        mf = [o_frag(slot, sp, nb, hh, acc) for sp in range(8) for nb in range(2)]
        pre = carry(pend, mf)
        events = {}
        if hh == 0 and ntl > 0:
            events[6] = [store_ops(ntl - 1)]
        if tau < 9:
            events[12] = [lambda tau=tau: osync(tau + 1)]
            nx = [strip(o_frag(slot_of(43 + tau), sp, nb, 0, 0)) for sp in range(2) for nb in range(2)]
            for m in nx: m['gate'] = 12
            mf += nx
        if DIAG and os.environ.get("TAILST") and tau in (2, 5, 8):
            events.setdefault(13, []).append(lambda tau=tau: e(f"s_memrealtime s[{64+2*(6+(2,5,8).index(tau))}:{65+2*(6+(2,5,8).index(tau))}]"))
        pend = run_stream(mf, {}, events, pre=pre)
    e("s_nop 15")
    store_ops(4)()
    if DIAG and os.environ.get("TAILST"): stamp(9)
    e("s_waitcnt vmcnt(0)")
    stamp(3)
    e("s_barrier")
    e("s_lshl_b32 s3, s4, 3")
    e("s_add_u32 s3, s3, s5")
    e("s_lshl_b32 s41, s3, 2")
    e("v_mov_b32 v2, s41")
    e("v_mov_b32 v3, 1")
    e("s_cmp_lg_u32 s51, 0")
    e("s_cbranch_scc1 L_red_wait")
    e("s_mov_b64 exec, 1")
    e("global_atomic_add v2, v3, s[94:95] sc1")
    e("s_waitcnt vmcnt(0)")
    e("L_red_poll:")
    e("global_load_dword v4, v2, s[94:95] sc1")
    e("s_waitcnt vmcnt(0)")
    e("v_readfirstlane_b32 s47, v4")
    e("s_nop 3")
    e("s_cmp_ge_u32 s47, 16")
    e("s_cbranch_scc1 L_red_go")
    e("s_sleep 2")
    e("s_branch L_red_poll")
    e("L_red_go:")
    e("s_mov_b64 exec, -1")
    e("L_red_wait:")
    e("s_barrier")
    e("s_mul_i32 s47, s3, 2359296")
    e("s_add_u32 s8, s38, s47")
    e("s_addc_u32 s9, s39, 0")
    e("s_and_b32 s9, s9, 0xffff")
    e("s_mov_b32 s10, 2359296")
    e("s_mov_b32 s11, 0x20000")
    e("s_mov_b32 s12, s92")
    e("s_and_b32 s13, s93, 0xffff")
    e("s_mov_b32 s14, 2359296")
    e("s_mov_b32 s15, 0x20000")
    e("s_mul_i32 s40, s52, 9")
    e("s_add_u32 s40, s40, s51")
    e("s_mov_b32 s45, 0")
    e("L_red_blk:")
    e("s_lshl_b32 s41, s40, 10")
    for pidx in range(16):
        e(f"s_add_u32 s42, s41, {pidx*147456}")
        e(f"buffer_load_dwordx4 {vr(24+4*pidx,4)}, v1, s[8:11], s42 offen sc1")
    e("s_mul_i32 s6, s40, 1821")
    e("s_lshr_b32 s6, s6, 16")
    e("s_mul_i32 s47, s6, 36")
    e("s_sub_u32 s47, s40, s47")
    e("s_lshl_b32 s42, s5, 7")
    e("s_lshl_b32 s43, s6, 5")
    e("s_add_u32 s42, s42, s43")
    e("v_and_b32 v2, 31, v0")
    e("v_add_u32 v2, s42, v2")
    e("v_mul_u32_u24 v2, 2304, v2")
    e("v_lshrrev_b32 v3, 5, v0")
    e("v_lshl_add_u32 v2, v3, 4, v2")
    e("s_mul_i32 s42, s4, 1152")
    e("s_lshl_b32 s43, s47, 5")
    e("s_add_u32 s42, s42, s43")
    e("v_add_u32 v2, s42, v2")
    A = 96
    for pidx in range(16):
        e(f"s_waitcnt vmcnt({15-pidx})")
        for k in range(4):
            src = 24 + 4*pidx + k
            if pidx == 0:
                e(f"v_lshlrev_b32 v{A+2*k}, 16, v{src}")
                e(f"v_and_b32 v{A+2*k+1}, 0xffff0000, v{src}")
            else:
                e(f"v_lshlrev_b32 v{A+8+2*k}, 16, v{src}")
                e(f"v_and_b32 v{A+8+2*k+1}, 0xffff0000, v{src}")
        if pidx > 0:
            for k in range(8):
                e(f"v_add_f32 v{A+k}, v{A+k}, v{A+8+k}")
    for k in range(4):
        e(f"v_cvt_pk_bf16_f32 v{4+k}, v{A+2*k}, v{A+2*k+1}")
    e("s_nop 1")
    e("v_permlane32_swap_b32 v4, v6")
    e("v_permlane32_swap_b32 v5, v7")
    e("buffer_store_dwordx4 v[4:7], v2, s[12:15], 0 offen")
    e("s_cmp_lg_u32 s51, 0")
    e("s_cbranch_scc1 L_red_end")
    e("s_cmp_lg_u32 s45, 0")
    e("s_cbranch_scc1 L_red_end")
    e("s_mov_b32 s45, 1")
    e("s_add_u32 s40, s40, 8")
    e("s_waitcnt vmcnt(0)")
    e("s_branch L_red_blk")
    e("L_red_end:")
    e("s_waitcnt vmcnt(0)")
    stamp(4)
    stamp_flush(5, 67108864)
    e("L_attn_done:")
    e("s_endpgm")

def gen_reduce():
    e(".globl reduce_kernel")
    e(".p2align 8")
    e(".type reduce_kernel,@function")
    e("reduce_kernel:")
    e("s_cmp_ge_u32 s2, 576")
    e("s_cbranch_scc1 L_rd_done")
    e("s_load_dwordx2 s[38:39], s[0:1], 96")
    e("s_load_dwordx2 s[36:37], s[0:1], 80")
    e("v_lshrrev_b32 v1, 6, v0")
    e("v_and_b32 v0, 63, v0")
    e("s_nop 0")
    e("v_readfirstlane_b32 s7, v1")
    e("s_nop 3")
    e("s_lshl_b32 s3, s2, 2")
    e("s_add_u32 s3, s3, s7")
    e("s_mul_i32 s4, s3, 58255")
    e("s_lshr_b32 s4, s4, 23")
    e("s_mul_i32 s5, s4, 144")
    e("s_sub_u32 s5, s3, s5")
    e("s_mul_i32 s6, s5, 1821")
    e("s_lshr_b32 s6, s6, 16")
    e("s_mul_i32 s8, s6, 36")
    e("s_sub_u32 s8, s5, s8")
    e("v_lshlrev_b32 v1, 4, v0")
    e("s_waitcnt lgkmcnt(0)")
    e("s_mul_i32 s9, s4, 2359296")
    e("s_lshl_b32 s10, s5, 10")
    e("s_add_u32 s9, s9, s10")
    e("s_add_u32 s12, s38, s9")
    e("s_addc_u32 s13, s39, 0")
    e("s_and_b32 s13, s13, 0xffff")
    e("s_mov_b32 s14, 2359296")
    e("s_mov_b32 s15, 0x20000")
    e("s_mov_b32 s16, s36")
    e("s_and_b32 s17, s37, 0xffff")
    e("s_mov_b32 s18, 2359296")
    e("s_mov_b32 s19, 0x20000")
    for p in range(16):
        e(f"s_mov_b32 s20, {p*147456}")
        e(f"buffer_load_dwordx4 {vr(8+4*p,4)}, v1, s[12:15], s20 offen")
    e("s_and_b32 s9, s4, 7")
    e("s_lshr_b32 s10, s4, 3")
    e("s_lshl_b32 s9, s9, 7")
    e("s_lshl_b32 s11, s6, 5")
    e("s_add_u32 s9, s9, s11")
    e("v_and_b32 v2, 31, v0")
    e("v_add_u32 v2, s9, v2")
    e("v_mul_u32_u24 v2, 2304, v2")
    e("v_lshrrev_b32 v3, 5, v0")
    e("v_lshl_add_u32 v2, v3, 4, v2")
    e("s_mul_i32 s10, s10, 1152")
    e("s_lshl_b32 s11, s8, 5")
    e("s_add_u32 s10, s10, s11")
    e("v_add_u32 v2, s10, v2")
    A = 80
    for p in range(16):
        e(f"s_waitcnt vmcnt({15-p})")
        for k in range(4):
            src = 8 + 4*p + k
            if p == 0:
                e(f"v_lshlrev_b32 v{A+2*k}, 16, v{src}")
                e(f"v_and_b32 v{A+2*k+1}, 0xffff0000, v{src}")
            else:
                e(f"v_lshlrev_b32 v{A+8+2*k}, 16, v{src}")
                e(f"v_and_b32 v{A+8+2*k+1}, 0xffff0000, v{src}")
        if p > 0:
            for k in range(8):
                e(f"v_add_f32 v{A+k}, v{A+k}, v{A+8+k}")
    for k in range(4):
        e(f"v_cvt_pk_bf16_f32 v{4+k}, v{A+2*k}, v{A+2*k+1}")
    e("s_nop 1")
    e("v_permlane32_swap_b32 v4, v6")
    e("v_permlane32_swap_b32 v5, v7")
    e("buffer_store_dwordx4 v[4:7], v2, s[16:19], 0 offen")
    e("s_waitcnt vmcnt(0)")
    e("L_rd_done:")
    e("s_endpgm")

def desc(name, vgpr, accum, sgpr=100):
    e(f".amdhsa_kernel {name}")
    e(f"  .amdhsa_next_free_vgpr {vgpr}")
    e(f"  .amdhsa_next_free_sgpr {sgpr}")
    e(f"  .amdhsa_accum_offset {accum}")
    e("  .amdhsa_group_segment_fixed_size 0")
    e("  .amdhsa_kernarg_size 104")
    e("  .amdhsa_user_sgpr_count 2")
    e("  .amdhsa_user_sgpr_kernarg_segment_ptr 1")
    e("  .amdhsa_system_sgpr_workgroup_id_x 1")
    e(".end_amdhsa_kernel")

gen_attn()
e('.section .rodata,"a"')
e(".p2align 6")
desc("attn_kernel", 256, 256)

with open(sys.argv[1] if len(sys.argv) > 1 else OUT, "w") as f:
    f.write(HEADER + "\n".join(L) + "\n")
```

```python
import sys, os

NAME = "concat_heads__mha_block_cached__mha_block_cached__near_ridge"
OUT = f"cdna_kernels/{NAME}.s"
DIAG = int(os.environ.get("DIAG", "0"))
NT = " nt" if int(os.environ.get("NT", "0")) else ""
STF = os.environ.get("STF", "")
STF = (" " + STF) if STF else ""
PF = int(os.environ.get("PF", "0"))
STAG = int(os.environ.get("STAG", "0"))

L = []
def e(s=""):
    L.append(s)

def stamp(idx):
    if not DIAG:
        return
    e(f"s_memrealtime s[{64+2*idx}:{65+2*idx}]")
    e("s_waitcnt lgkmcnt(0)")

def stamp_flush(n, base, wreg="s51"):
    if not DIAG:
        return
    lab = f"L_st_{len(L)}"
    e(f"s_cmp_lg_u32 {wreg}, 0")
    e(f"s_cbranch_scc1 {lab}")
    e("s_mov_b64 exec, 1")
    e("s_lshl_b32 s62, s2, 7")
    e(f"s_add_u32 s62, s62, {base}")
    e("v_mov_b32 v22, s62")
    for i in range(n):
        e(f"v_mov_b32 v20, s{64+2*i}")
        e(f"v_mov_b32 v21, s{65+2*i}")
        e(f"global_store_dwordx2 v22, v[20:21], s[38:39] offset:{8*i}")
        e("s_nop 1")
    e("s_waitcnt vmcnt(0)")
    e(f"{lab}:")

def vr(a, n):
    return f"v[{a}:{a+n-1}]"

HEADER = f"""; Kernarg layout for this problem (104 bytes, ptrs only, base s[0:1]):
; @launch kernel=attn_kernel grid=(256,1,1) block=(512,1,1) lds=163840
; @launch kernel=reduce_kernel grid=(576,1,1) block=(256,1,1) lds=0
.amdgcn_target "amdgcn-amd-amdhsa--gfx950"
.text
"""

class Cnt:
    def __init__(self, name):
        self.name = name
        self.ops = []
    def add(self, tag, n=1):
        self.ops += [tag] * n
        assert len(self.ops) <= (15 if self.name == "lgkmcnt" else 63), (self.name, len(self.ops))
    def wait(self, tag):
        idx = [i for i, t in enumerate(self.ops) if t == tag]
        if not idx:
            return
        last = max(idx)
        n = len(self.ops) - 1 - last
        e(f"s_waitcnt {self.name}({n})")
        self.ops = self.ops[last+1:]
    def wait_all(self):
        if self.ops:
            e(f"s_waitcnt {self.name}(0)")
        self.ops = []

VO = 24; SA = 88; SB = 120; VP = 152; FP = 168; VT = 200; VA = 212; VQ = 224
NFB = 8

def gen_attn():
    e(".globl attn_kernel")
    e(".p2align 8")
    e(".type attn_kernel,@function")
    e("attn_kernel:")
    e("s_cmp_ge_u32 s2, 256")
    e("s_cbranch_scc1 L_attn_done")
    e("s_load_dwordx2 s[38:39], s[0:1], 96")
    e("s_and_b32 s3, s2, 7")
    e("s_and_b32 s4, s3, 1")
    e("s_lshr_b32 s3, s3, 1")
    e("s_lshr_b32 s47, s2, 3")
    e("s_and_b32 s52, s47, 3")
    e("s_lshl_b32 s3, s3, 2")
    e("s_add_u32 s52, s52, s3")
    e("s_lshr_b32 s5, s47, 2")
    e("s_mul_i32 s3, s4, 40")
    e("s_add_u32 s0, s0, s3")
    e("s_addc_u32 s1, s1, 0")
    e("s_load_dwordx8 s[28:35], s[0:1], 0")
    e("s_load_dwordx2 s[36:37], s[0:1], 32")
    e("v_mov_b32 v221, v0")
    e("v_lshrrev_b32 v1, 6, v0")
    e("v_and_b32 v0, 63, v0")
    e("s_nop 0")
    e("v_readfirstlane_b32 s51, v1")
    e("s_nop 3")
    e("s_and_b32 s7, s51, 3")
    e("s_lshr_b32 s53, s51, 2")
    e("s_lshl_b32 s6, s52, 1")
    e("s_add_u32 s6, s6, s53")
    e("s_lshl_b32 s54, s53, 16")
    e("v_lshrrev_b32 v1, 4, v0")
    e("v_and_b32 v2, 15, v0")
    e("v_lshlrev_b32 v3, 2, v1")
    e("v_xor_b32 v3, v3, v2")
    for j in range(4):
        e(f"v_xor_b32 v23, {j}, v3")
        e(f"v_lshlrev_b32 v23, 4, v23")
        e(f"v_lshl_add_u32 v{4+j}, v1, 8, v23")
        e(f"v_lshl_add_u32 v{18+j}, v1, 13, v23")
    e("v_lshrrev_b32 v22, 3, v0")
    e("v_mul_u32_u24 v22, 1152, v22")
    e("v_and_b32 v23, 7, v0")
    e("v_xor_b32 v23, v23, v1")
    e("v_lshl_add_u32 v200, v23, 4, v22")
    e("v_xor_b32 v23, 4, v23")
    e("v_lshl_add_u32 v201, v23, 4, v22")
    e("v_and_b32 v23, 7, v0")
    e("v_bfe_u32 v9, v0, 4, 1")
    e("v_lshlrev_b32 v9, 2, v9")
    e("v_xor_b32 v23, v23, v9")
    e("v_lshl_add_u32 v222, v23, 4, v22")
    e("v_and_b32 v23, 31, v0")
    e("v_lshrrev_b32 v22, 5, v0")
    e("v_and_b32 v8, 3, v23")
    e("v_lshlrev_b32 v8, 2, v8")
    e("v_bfe_u32 v9, v23, 2, 2")
    e("v_or_b32 v8, v8, v9")
    e("v_xor_b32 v8, v8, v22")
    e("v_lshlrev_b32 v8, 4, v8")
    e("v_lshl_add_u32 v8, v23, 8, v8")
    e("v_add_u32 v8, s54, v8")
    e("v_bfe_u32 v9, v23, 1, 3")
    e("v_xor_b32 v9, v9, v22")
    e("v_lshlrev_b32 v9, 4, v9")
    e("v_lshl_add_u32 v9, v23, 7, v9")
    e("s_lshl_b32 s3, s7, 12")
    e("v_add_u32 v202, s3, v9")
    for s in range(1, 4):
        e(f"v_xor_b32 v{202+s}, {s<<5}, v202")
    for s in range(4):
        e(f"v_add_u32 v{208+s}, 114688, v{202+s}")
    e("v_lshrrev_b32 v10, 2, v2")
    e("v_and_b32 v11, 1, v1")
    e("v_lshlrev_b32 v11, 1, v11")
    e("v_bfe_u32 v12, v2, 1, 1")
    e("v_or_b32 v11, v11, v12")
    e("v_and_b32 v12, 1, v2")
    e("v_lshlrev_b32 v12, 3, v12")
    e("v_add_u32 v12, s54, v12")
    e("v_xor_b32 v13, v11, v22")
    e("v_lshl_add_u32 v13, v10, 2, v13")
    e("v_lshl_add_u32 v13, v13, 4, v12")
    e("v_lshl_add_u32 v14, v22, 2, v10")
    e("v_lshl_add_u32 v9, v14, 8, v13")
    e("v_lshrrev_b32 v13, 1, v10")
    e("v_lshl_add_u32 v13, v13, 2, v11")
    e("v_lshl_add_u32 v13, v13, 4, v12")
    e("v_lshl_add_u32 v14, v22, 3, v10")
    e("v_lshl_add_u32 v223, v14, 7, v13")
    e("v_lshlrev_b32 v14, 1, v22")
    e("v_xor_b32 v13, v11, v14")
    e("v_lshl_add_u32 v13, v10, 2, v13")
    e("v_lshl_add_u32 v13, v13, 4, v12")
    e("v_lshl_add_u32 v14, v22, 3, v10")
    e("v_lshl_add_u32 v3, v14, 8, v13")
    for db in range(4):
        for u in range(2):
            e(f"v_xor_b32 v{VA+2*db+u}, {(db<<6)^(u<<4)}, v3")
    for s in range(8):
        e(f"v_xor_b32 v{10+s}, {s<<5}, v8")
    e("s_waitcnt lgkmcnt(0)")
    e("s_mul_i32 s3, s5, 147456")
    e("s_add_u32 s20, s28, s3")
    e("s_addc_u32 s21, s29, 0")
    e("s_and_b32 s21, s21, 0xffff")
    e("s_mov_b32 s22, 0" if os.environ.get("NOXW") else "s_mov_b32 s22, 147456")
    e("s_mov_b32 s23, 0x20000")
    e("s_lshl_b32 s3, s5, 5")
    e("s_add_u32 s3, s3, s6")
    e("s_lshl_b32 s3, s3, 18")
    e("s_add_u32 s8, s30, s3")
    e("s_addc_u32 s9, s31, 0")
    e("s_and_b32 s9, s9, 0xffff")
    e("s_mov_b32 s10, 262144")
    e("s_mov_b32 s11, 0x20000")
    e("s_add_u32 s12, s32, s3")
    e("s_addc_u32 s13, s33, 0")
    e("s_and_b32 s13, s13, 0xffff")
    e("s_mov_b32 s14, 262144")
    e("s_mov_b32 s15, 0x20000")
    e("s_mov_b32 s16, s34")
    e("s_and_b32 s17, s35, 0xffff")
    e("s_mov_b32 s18, 0" if os.environ.get("NOXW") else "s_mov_b32 s18, 4718592")
    e("s_mov_b32 s19, 0x20000")
    e("s_mov_b32 s56, s36")
    e("s_and_b32 s57, s37, 0xffff")
    e("s_mov_b32 s58, 0" if os.environ.get("NOXW") else "s_mov_b32 s58, 4718592")
    e("s_mov_b32 s59, 0x20000")
    e("s_lshl_b32 s3, s4, 3")
    e("s_add_u32 s3, s3, s5")
    e("s_lshl_b32 s3, s3, 4")
    e("s_add_u32 s3, s3, s52")
    e("s_mul_i32 s3, s3, 147456")
    e("s_mul_i32 s47, s7, 36864")
    e("s_add_u32 s3, s3, s47")
    e("s_add_u32 s24, s38, s3")
    e("s_addc_u32 s25, s39, 0")
    e("s_and_b32 s25, s25, 0xffff")
    e("s_mov_b32 s26, 36864")
    e("s_mov_b32 s27, 0x20000")
    e("s_lshl_b32 s44, s7, 12")
    e("s_add_u32 s55, s44, s54")
    e("s_mov_b32 s46, 0x3e0293ee")
    e("s_lshl_b32 s48, s7, 17")
    e("s_lshl_b32 s3, s6, 8")
    e("s_add_u32 s48, s48, s3")
    e("s_mul_i32 s49, s51, 18432")
    e("s_lshl_b32 s40, s51, 11")
    e("s_lshl_b32 s3, s52, 8")
    e("s_lshl_b32 s47, s7, 5")
    e("s_add_u32 s3, s3, s47")
    e("s_mul_i32 s60, s3, 1152")
    e("s_lshl_b32 s3, s53, 9")
    e("s_add_u32 s60, s60, s3")

    lg = Cnt("lgkmcnt")

    dmaq = []
    SPREAD = int(os.environ.get("SPREAD", "1"))
    def push(chunk):
        if os.environ.get("NODMA") and ("s[20:23]" in chunk[-1] or "s[16:19]" in chunk[-1] or "s[56:59]" in chunk[-1]): return
        if SPREAD: dmaq.append(chunk)
        else:
            for x in chunk: e(x)
    def drain(n=None):
        k = 0
        while dmaq and (n is None or k < n):
            for x in dmaq.pop(0): e(x)
            k += 1
    vm = Cnt("vmcnt")
    XADDR = [131072, 147456, 49152, 114688]
    def slot_of(u):
        return (u % 3) if u < 9 else ((u - 9 + 3) & 3)
    def issue_x(T):
        for j in range(2):
            push([f"s_add_u32 s3, s40, {XADDR[T&3] + j*1024}", "s_mov_b32 m0, s3",
                  f"s_add_u32 s50, s49, {j*9216 + 128*T}", f"buffer_load_dwordx4 v{200+j}, s[20:23], s50 offen lds"])
        vm.add(f"x{T}", 2)
    def issue_static(u):
        slot = slot_of(u)
        if u < 9:
            for j in range(4):
                push([f"s_add_u32 s3, s55, {slot*16384 + j*1024}", "s_mov_b32 m0, s3",
                      f"s_add_u32 s50, s48, {(64*u + 4*j)*8192}", f"buffer_load_dwordx4 v{18+j}, s[16:19], s50 offen lds"])
        elif u <= 41:
            if u == 9: srd, i = 8, 0
            elif u & 1 == 0: srd, i = 8, (u - 10) // 2 + 1
            else: srd, i = 12, (u - 11) // 2
            for j in range(4):
                c = []
                if j == 0:
                    c = [f"s_add_u32 s3, s55, {slot*16384}", "s_mov_b32 m0, s3", f"s_add_u32 s50, s44, {i*16384}"]
                c += [f"buffer_load_dwordx4 v{4+j}, s[{srd}:{srd+3}], s50 offen offset:{j*1024}{NT} lds"]
                push(c)
        else:
            tau = u - 42
            for j in range(4):
                push([f"s_add_u32 s3, s55, {slot*16384 + j*1024}", "s_mov_b32 m0, s3",
                      f"s_add_u32 s50, s60, {j*9216 + (tau&1)*128*1152 + (tau>>1)*128}",
                      f"buffer_load_dwordx4 v222, s[56:59], s50 offen lds"])
        vm.add(f"u{u}", 4)
    def kv_of(v):
        if v == 0: return 8, 0
        if v & 1: return 8, (v - 1) // 2 + 1
        return 12, (v - 2) // 2
    def touch_static(v):
        if not PF: return
        srd, i = kv_of(v)
        push([f"s_add_u32 s41, s44, {i*16384}", f"buffer_load_dword v23, v221, s[{srd}:{srd+3}], s41 offen"])
        vm.add("pf", 1)
    def touch_dyn(srd, sreg):
        if not PF: return
        push([f"s_add_u32 s41, {sreg}, {(PF//2 - 1)*16384}", f"buffer_load_dword v23, v221, s[{srd}:{srd+3}], s41 offen"])
    def issue_dyn(srd, sreg, slot):
        for j in range(4):
            c = []
            if j == 0:
                c = [f"s_add_u32 s3, s55, {slot*16384}", "s_mov_b32 m0, s3", "s_nop 0"]
            c += [f"buffer_load_dwordx4 v{4+j}, s[{srd}:{srd+3}], {sreg} offen offset:{j*1024}{NT} lds"]
            if j == 3:
                c += [f"s_add_u32 {sreg}, {sreg}, 16384"]
            push(c)
        touch_dyn(srd, sreg)

    def sync(issue, vmwait=("s_waitcnt vmcnt(11)" if PF else "s_waitcnt vmcnt(8)")):
        drain()
        lg.wait_all()
        if callable(vmwait): vmwait()
        else: e(vmwait)
        e("s_barrier")
        if issue: issue()

    fcount = [0]
    def run_stream(mf, fillers, events, LA=6, pre=0):
        n_mm = sum(1 for m in mf if m.get('mm'))
        nxt = pre
        fi = 0
        for n in range(n_mm):
            for ev in events.get(n, []):
                ev()
            while nxt < len(mf) and nxt <= n + LA and mf[nxt].get('gate', 0) <= n:
                m = mf[nxt]
                m['buf'] = FP + 4 * (fcount[0] % NFB); fcount[0] += 1
                m['tag'] = f"f{fcount[0]}"
                m['rd'](m['buf'], m['tag'])
                nxt += 1
            m = mf[n]
            lg.wait(m['tag'])
            m['mm'](m['buf'])
            drain(1)
            k = fillers.get(n, [])
            for f in k:
                e(f)
        for ev in events.get(n_mm, []):
            ev()
        while nxt < len(mf):
            m = mf[nxt]
            m['buf'] = FP + 4 * (fcount[0] % NFB); fcount[0] += 1
            m['tag'] = f"f{fcount[0]}"
            m['rd'](m['buf'], m['tag'])
            nxt += 1
        return [m for m in mf if not m.get('mm')]

    def w_frag(slot, s, db, T, xf):
        def rd(buf, tag):
            for u in range(2):
                e(f"ds_read_b64_tr_b16 {vr(buf+2*u,2)}, v{VA+2*db+u} offset:{slot*16384 + s*4096 + u*1024}")
            lg.add(tag, 2)
        def mm(buf):
            c = "0" if (T == 0 and s == 0) else vr(VO + 16*db, 16)
            e(f"v_mfma_f32_32x32x16_bf16 {vr(VO+16*db,16)}, {vr(buf,4)}, {vr(xf+4*s,4)}, {c}")
        return dict(rd=rd, mm=mm)
    def k_frag(slot, s, kb, S):
        def rd(buf, tag):
            e(f"ds_read_b128 {vr(buf,4)}, v{10+s} offset:{slot*16384 + kb*8192}")
            lg.add(tag, 1)
        def mm(buf):
            c = "0" if s == 0 else vr(S+16*kb, 16)
            e(f"v_mfma_f32_32x32x16_bf16 {vr(S+16*kb,16)}, {vr(buf,4)}, {vr(VQ+4*s,4)}, {c}")
        return dict(rd=rd, mm=mm)
    def v_frag(slot, kb, t, db):
        def rd(buf, tag):
            for u in range(2):
                e(f"ds_read_b64_tr_b16 {vr(buf+2*u,2)}, v{VA+2*db+u} offset:{slot*16384 + kb*8192+t*4096+u*2048}")
            lg.add(tag, 2)
        def mm(buf):
            p = VP + 4*(2*kb + t)
            e(f"v_mfma_f32_32x32x16_bf16 {vr(VO+16*db,16)}, {vr(buf,4)}, {vr(p,4)}, {vr(VO+16*db,16)}")
        return dict(rd=rd, mm=mm)
    def strip(m):
        m2 = dict(m); m2.pop('mm'); return m2
    def carry(pend, full):
        for a, b in zip(pend, full):
            b['buf'] = a['buf']; b['tag'] = a['tag']
        return len(pend)

    stamp(0)
    if STAG:
        e("s_cmp_eq_u32 s53, 0")
        e("s_cbranch_scc1 L_stag0")
        for _ in range(STAG):
            e("s_barrier")
        e("L_stag0:")
    WARM = int(os.environ.get("WARM", "1"))
    e("s_lshr_b32 s61, s2, 3")
    e("s_and_b32 s63, s2, 7")
    e("s_lshr_b32 s63, s63, 1")
    e("s_mov_b32 s32, s28")
    e("s_and_b32 s33, s29, 0xffff")
    e("s_mov_b32 s34, 1179648")
    e("s_mov_b32 s35, 0x20000")
    e("s_mul_i32 s3, s61, 288")
    e("v_add_u32 v220, s3, v221")
    e("v_lshlrev_b32 v220, 7, v220")
    e("v_cmp_gt_u32 vcc, 288, v221")
    e("v_mov_b32 v23, 0x40000000")
    e("s_nop 1")
    e("v_cndmask_b32 v220, v23, v220, vcc")
    e("s_mul_i32 s3, s61, 18")
    e("v_lshrrev_b32 v22, 4, v221")
    e("v_add_u32 v22, s3, v22")
    e("v_lshlrev_b32 v22, 13, v22")
    e("v_and_b32 v206, 15, v221")
    e("v_lshl_add_u32 v22, v206, 7, v22")
    e("s_lshl_b32 s3, s63, 11")
    e("v_add_u32 v22, s3, v22")
    e("v_cndmask_b32 v22, v23, v22, vcc")
    e("v_lshlrev_b32 v221, 6, v0")
    issue_x(0); issue_static(0); issue_x(1); issue_static(1); issue_x(2); issue_x(3)
    drain()
    if int(os.environ.get("WARMQ", "0")):
        e("buffer_load_dword v207, v220, s[32:35], 0 offen")
        e("buffer_load_dword v206, v22, s[16:19], 0 offen")
        vm.add("warm", 2)
    XFB = [SA, SA + 16]
    def xread(T):
        for s in range(4):
            a = XADDR[T&3]
            if a < 65536:
                e(f"ds_read_b128 {vr(XFB[T&1]+4*s,4)}, v{202+s} offset:{a}")
            else:
                e(f"ds_read_b128 {vr(XFB[T&1]+4*s,4)}, v{208+s} offset:{a-114688}")
        lg.add(f"x{T}", 4)
    def vmw(*tags):
        def f():
            idx = [max([i for i, t in enumerate(vm.ops) if t == tg], default=-1) for tg in tags]
            tg = tags[idx.index(max(idx))]
            if WARM: pass
            vm.wait(tg)
        return f
    sync(None, vmwait=vmw("x0"))
    xread(0)
    sync(lambda: (issue_static(2), issue_x(4)), vmwait=vmw("u0", "x1"))
    pend = []
    for T in range(9):
        mf = [w_frag(T % 3, s, db, T, XFB[T&1]) for s in range(4) for db in range(4)]
        pre = carry(pend, mf)
        events = {}
        if T < 8:
            events[4] = [lambda T=T: xread(T + 1)]
            def iss(T=T):
                if T + 3 <= 8: issue_static(T + 3)
                if T + 5 <= 8: issue_x(T + 5)
                if T + 1 == 7: (issue_static(9), issue_static(10))
                if T + 1 == 8: issue_static(11)
            tags = (f"u{T+1}", f"x{T+2}") if T + 2 <= 8 else (f"u{T+1}",)
            events[12] = [lambda T=T, iss=iss, tags=tags: sync(iss, vmwait=vmw(*tags))]
            nxtf = [strip(w_frag((T + 1) % 3, 0, db, T + 1, XFB[(T+1)&1])) for db in range(4)]
            for m in nxtf: m['gate'] = 12
            mf += nxtf
        else:
            events[12] = [lambda: sync(lambda: issue_static(12), vmwait=vmw("u9"))]
        if False:
            events.setdefault(13, []).append(lambda T=T: e(f"s_memrealtime s[{64+2*(4+(0,1,2,4,6,8).index(T))}:{65+2*(4+(0,1,2,4,6,8).index(T))}]"))
        pend = run_stream(mf, {}, events, pre=pre, LA=int(os.environ.get('QLA','4')))
    drain()
    stamp(1)
    e("s_nop 15")
    for db in range(4):
        for t in range(2):
            F = VQ + 4 * (2*db + t)
            a = VO + 16*db + 8*t
            for j in range(4):
                e(f"v_cvt_pk_bf16_f32 v{F+j}, v{a+2*j}, v{a+2*j+1}")
    e("s_nop 1")
    for sp in range(8):
        F = VQ + 4*sp
        e(f"v_permlane32_swap_b32 v{F}, v{F+2}")
        e(f"v_permlane32_swap_b32 v{F+1}, v{F+3}")
    for k in range(8):
        db, u = k >> 1, k & 1
        e(f"v_xor_b32 v{VA+k}, {(db<<6)^(u<<5)}, v9")
    e("v_mov_b32 v18, 0xff800000")
    e("v_mov_b32 v21, 0xff800000")
    e("v_mov_b32 v19, 0")
    e("s_add_u32 s43, s44, 16384")
    e("s_add_u32 s42, s44, 49152")
    e("s_mov_b32 s45, 0")

    def max_ops(S):
        ops = []
        for c in range(4):
            b0 = S + 8*c
            ops.append(f"v_max3_f32 v{VT+c}, v{b0}, v{b0+1}, v{b0+2}")
        for c in range(4):
            b0 = S + 8*c
            ops.append(f"v_max3_f32 v{VT+c}, v{VT+c}, v{b0+3}, v{b0+4}")
        for c in range(4):
            b0 = S + 8*c
            ops.append(f"v_max3_f32 v{VT+c}, v{VT+c}, v{b0+5}, v{b0+6}")
        for c in range(4):
            b0 = S + 8*c
            ops.append(f"v_max_f32 v{VT+c}, v{VT+c}, v{b0+7}")
        ops.append(f"v_max3_f32 v{VT}, v{VT}, v{VT+1}, v{VT+2}")
        ops.append(f"v_max_f32 v{VT}, v{VT}, v{VT+3}")
        ops.append(f"v_mov_b32 v{VT+1}, v{VT}")
        ops.append("s_nop 1")
        ops.append(f"v_permlane32_swap_b32 v{VT}, v{VT+1}")
        ops.append(f"v_max_f32 v{VT}, v{VT}, v{VT+1}")
        ops.append(f"v_mul_f32 v{VT+4}, s46, v{VT}")
        ops.append(f"v_cmp_gt_f32 vcc, v{VT+4}, v21")
        return ops
    lab_ctr = [0]
    def rescale_check():
        lab = f"L_nors_{lab_ctr[0]}"; lab_ctr[0] += 1
        e(f"s_cbranch_vccz {lab}")
        e("s_nop 15")
        e(f"v_max_f32 v{VT+5}, v18, v{VT+4}")
        e(f"v_sub_f32 v{VT+6}, v18, v{VT+5}")
        e(f"v_exp_f32 v20, v{VT+6}")
        e(f"v_mov_b32 v18, v{VT+5}")
        e(f"v_add_f32 v21, 0x41000000, v{VT+5}")
        e(f"v_mul_f32 v19, v20, v19")
        for i in range(64):
            e(f"v_mul_f32 v{VO+i}, v20, v{VO+i}")
        e(f"{lab}:")
    def exp_ops(S, kb):
        b0 = S + 16*kb
        acc = [VT+8+2*kb, VT+9+2*kb]
        ops = []
        G = 4
        for gidx in range(6):
            if gidx < 4:
                for k in range(G):
                    i = b0 + G*gidx + k
                    ops.append(f"v_fma_f32 v{i}, v{i}, s46, -v18")
            if 1 <= gidx < 5:
                for k in range(G):
                    i = b0 + G*(gidx-1) + k
                    ops.append(f"v_exp_f32 v{i}, v{i}")
            if 2 <= gidx:
                g2 = gidx - 2
                i = b0 + G*g2
                if g2 == 0:
                    ops.append(f"v_add_f32 v{acc[0]}, v{i}, v{i+1}")
                    ops.append(f"v_add_f32 v{acc[1]}, v{i+2}, v{i+3}")
                else:
                    ops.append(f"v_add_f32 v{acc[0]}, v{acc[0]}, v{i}")
                    ops.append(f"v_add_f32 v{acc[1]}, v{acc[1]}, v{i+2}")
                    ops.append(f"v_add_f32 v{acc[0]}, v{acc[0]}, v{i+1}")
                    ops.append(f"v_add_f32 v{acc[1]}, v{acc[1]}, v{i+3}")
                p = VP + 8*kb + 2*g2
                ops.append(f"v_cvt_pk_bf16_f32 v{p}, v{i}, v{i+1}")
                ops.append(f"v_cvt_pk_bf16_f32 v{p+1}, v{i+2}, v{i+3}")
        ops.append(f"v_add_f32 v{acc[0]}, v{acc[0]}, v{acc[1]}")
        ops.append(f"v_add_f32 v19, v19, v{acc[0]}")
        return ops
    def spread(ops, positions):
        d = {}
        n = len(positions)
        per = len(ops) / n
        for k, op in enumerate(ops):
            p = positions[min(n-1, int(k / per))]
            d.setdefault(p, []).append(op)
        return d

    mf = [k_frag(3, s, kb, SA) for s in range(8) for kb in range(2)]
    zero_ops = [f"v_mov_b32 v{VO+i}, 0" for i in range(64)]
    e("s_nop 1")
    nxtf = [strip(k_frag(0, s, kb, SB)) for s in range(2) for kb in range(2)]
    for m in nxtf: m['gate'] = 12
    events = {12: [lambda: sync(lambda: issue_dyn(12, "s43", 3), vmwait=vmw("u10"))]}
    pend = run_stream(mf + nxtf, spread(zero_ops, list(range(16))), events)
    drain()
    e("s_nop 7")
    e("s_nop 7")
    for op in max_ops(SA):
        e(op)

    def iteration(par, pend, issue_mid, issue_end, doS=True, nextS=True, end_sync=True, wmid=None, wend=None):
        Scur, Snx = (SA, SB) if par == 0 else (SB, SA)
        kslot, vslot, k2slot = (0, 1, 2) if par == 0 else (2, 3, 0)
        rescale_check()
        ex0 = exp_ops(Scur, 0); ex1 = exp_ops(Scur, 1)
        mf = []
        events = {}
        fill = {}
        if doS:
            mf += [k_frag(kslot, s, kb, Snx) for s in range(8) for kb in range(2)]
            pre = carry(pend, mf)
            base = 16
            cut = 24
            fill.update(spread(ex0 + ex1[:cut], list(range(0, 15))))
            events[12] = [lambda: sync(issue_mid, **({'vmwait': wmid} if wmid else {}))]
            vgate = 12
        else:
            pre = 0
            base = 0
            cut = 24
            sync(issue_mid, **({'vmwait': wmid} if wmid else {}))
            vgate = 0
        vf = [v_frag(vslot, kb, t, db) for kb in range(2) for t in range(2) for db in range(4)]
        for m in vf: m['gate'] = vgate
        mf += vf
        if not doS:
            events[0] = [lambda: [e(op) for op in ex0 + ex1[:cut]] and None]
        for p, ops in spread(ex1[cut:], list(range(base, base + 7))).items():
            fill.setdefault(p, []).extend(ops)
        if nextS:
            for p, ops in spread(max_ops(Snx), list(range(base + 8, base + 16))).items():
                fill.setdefault(p, []).extend(ops)
        if end_sync:
            events[base + 12] = [lambda: sync(issue_end, **({'vmwait': wend} if wend else {}))]
        if doS and nextS and end_sync == True:
            nx = [strip(k_frag(k2slot, s, kb, Scur)) for s in range(2) for kb in range(2)]
            for m in nx: m['gate'] = base + 12
            mf += nx
        r = run_stream(mf, fill, events, pre=pre)
        drain()
        return r

    st0 = (len(lg.ops), fcount[0] % NFB, [ (m['buf']) for m in pend])
    e("L_loop:")
    pend = iteration(0, pend, lambda: issue_dyn(8, "s42", 0), lambda: issue_dyn(12, "s43", 1))
    pend = iteration(1, pend, lambda: issue_dyn(8, "s42", 2), lambda: issue_dyn(12, "s43", 3))
    st1 = (len(lg.ops), fcount[0] % NFB, [ (m['buf']) for m in pend])
    assert st0 == st1, (st0, st1)
    assert not dmaq
    e("s_add_u32 s45, s45, 1")
    e("s_cmp_lt_u32 s45, 7")
    e("s_cbranch_scc1 L_loop")
    pfo = ["pf"] if PF else []
    vm.ops = ["v14"]*4 + pfo + ["k16"]*4 + pfo + ["v15"]*4 + pfo
    pend = iteration(0, pend, lambda: issue_static(42), lambda: issue_static(43), end_sync="nok", wmid=vmw("v14"), wend=vmw("k16"))
    drain()
    if WARM:
        e("s_cmp_ge_u32 s51, 5")
        e("s_cbranch_scc1 L_nowarm2")
        e("s_mul_i32 s3, s63, 1179648")
        e("buffer_load_dword v220, v220, s[56:59], s3 offen")
        e("L_nowarm2:")
    pend = iteration(1, pend, lambda: issue_static(44), None, doS=False, nextS=False, end_sync=False, wmid=vmw("v15"))
    drain()
    stamp(2)
    e(f"v_mov_b32 v{VT+1}, v19")
    e("s_nop 1")
    e(f"v_permlane32_swap_b32 v19, v{VT+1}")
    e(f"v_add_f32 v19, v19, v{VT+1}")
    e("v_rcp_f32 v20, v19")
    e("v_lshlrev_b32 v1, 4, v0")
    XS = slot_of(41)*16384
    e("s_lshl_b32 s3, s51, 12")
    e("s_add_u32 s3, s3, 131072")
    e("v_add_u32 v2, s3, v1")
    e(f"s_add_u32 s3, s55, {XS}")
    e("v_add_u32 v3, s3, v1")
    e("s_nop 7")
    for i in range(64):
        e(f"v_mul_f32 v{VO+i}, v20, v{VO+i}")
    OWN = SA
    for db in range(4):
        for t in range(2):
            F = OWN + 4 * (2*db + t)
            a = VO + 16*db + 8*t
            for j in range(4):
                e(f"v_cvt_pk_bf16_f32 v{F+j}, v{a+2*j}, v{a+2*j+1}")
    e("s_nop 1")
    for sp in range(8):
        F = OWN + 4*sp
        e(f"v_permlane32_swap_b32 v{F}, v{F+2}")
        e(f"v_permlane32_swap_b32 v{F+1}, v{F+3}")
    if STAG:
        e("s_cmp_eq_u32 s53, 1")
        e("s_cbranch_scc1 L_stag1")
        for _ in range(STAG):
            e("s_barrier")
        e("L_stag1:")
    e("s_barrier")
    for k in range(4):
        e(f"ds_write_b128 v2, {vr(OWN+4*k,4)} offset:{k*1024}")
        e(f"ds_write_b128 v3, {vr(OWN+16+4*k,4)} offset:{k*1024}")
    e("s_add_u32 s3, s44, 131072")
    e("v_add_u32 v2, s3, v1")
    e(f"s_add_u32 s3, s44, {XS}")
    e("v_add_u32 v3, s3, v1")
    e("v_add_u32 v21, 65536, v3")
    e("s_waitcnt lgkmcnt(0)")
    e("s_barrier")
    H = [VQ, SB]
    for hh in range(2):
        for k in range(4):
            e(f"ds_read_b128 {vr(H[hh]+4*k,4)}, v2 offset:{hh*16384 + k*1024}")
        for k in range(4):
            e(f"ds_read_b128 {vr(H[hh]+16+4*k,4)}, v{3 if hh == 0 else 21} offset:{k*1024}")
        e("s_waitcnt lgkmcnt(0)")
    e("v_xor_b32 v11, 64, v223")
    e("v_mov_b32 v10, v223")
    PK = SA
    def o_frag(slot, sp, nb, hh, acc):
        def rd(buf, tag):
            for u in range(2):
                e(f"ds_read_b64_tr_b16 {vr(buf+2*u,2)}, v{10+nb} offset:{slot*16384 + sp*2048 + u*512}")
            lg.add(tag, 2)
        def mm(buf):
            c = "0" if (hh == 0 and sp == 0) else vr(acc + 16*nb, 16)
            e(f"v_mfma_f32_32x32x16_bf16 {vr(acc+16*nb,16)}, {vr(buf,4)}, {vr(H[hh]+4*sp,4)}, {c}")
        return dict(rd=rd, mm=mm)
    def store_ops(ntl):
        acc = VO + 32 * (ntl & 1)
        def f():
            drain()
            for nb in range(2):
                for j in range(8):
                    e(f"v_cvt_pk_bf16_f32 v{PK+8*nb+j}, v{acc+16*nb+2*j}, v{acc+16*nb+2*j+1}")
            e(f"s_lshl_b32 s61, s53, 14")
            e(f"s_add_u32 s61, s61, {ntl*4096}")
            for nb in range(2):
                if (ntl == 4 and nb == 1) or (ntl == 0 and nb == 0):
                    cond = 0 if (ntl == 4) else 1
                    e(f"s_cmp_eq_u32 s53, {cond}")
                    e(f"s_cselect_b32 s47, 0x10000000, s61")
                    sreg = "s47"
                else:
                    sreg = "s61"
                for tt in range(2):
                    e(f"buffer_store_dwordx4 {vr(PK+8*nb+4*tt,4)}, v1, s[24:27], {sreg} offen offset:{nb*2048 + tt*1024}{STF}")
                    vm.add("st", 1)
        return f
    def osync(tau):
        def iss():
            if tau + 3 < 10:
                issue_static(42 + tau + 3)
        sync(iss, vmwait=lambda: vm.wait(f"u{42+tau}"))
    if DIAG and os.environ.get("TAILST"): stamp(4)
    osync(0)
    if DIAG and os.environ.get("TAILST"): stamp(5)
    pend = []
    for tau in range(10):
        slot = slot_of(42 + tau)
        ntl = tau >> 1; hh = tau & 1
        acc = VO + 32 * (ntl & 1)
        mf = [o_frag(slot, sp, nb, hh, acc) for sp in range(8) for nb in range(2)]
        pre = carry(pend, mf)
        events = {}
        if hh == 0 and ntl > 0:
            events[6] = [store_ops(ntl - 1)]
        if tau < 9:
            events[12] = [lambda tau=tau: osync(tau + 1)]
            nx = [strip(o_frag(slot_of(43 + tau), sp, nb, 0, 0)) for sp in range(2) for nb in range(2)]
            for m in nx: m['gate'] = 12
            mf += nx
        if DIAG and os.environ.get("TAILST") and tau in (2, 5, 8):
            events.setdefault(13, []).append(lambda tau=tau: e(f"s_memrealtime s[{64+2*(6+(2,5,8).index(tau))}:{65+2*(6+(2,5,8).index(tau))}]"))
        pend = run_stream(mf, {}, events, pre=pre)
    e("s_nop 15")
    store_ops(4)()
    if DIAG and os.environ.get("TAILST"): stamp(9)
    e("s_waitcnt vmcnt(0)")
    stamp(3)
    stamp_flush(4, 67108864)
    e("L_attn_done:")
    e("s_endpgm")

def gen_reduce():
    e(".globl reduce_kernel")
    e(".p2align 8")
    e(".type reduce_kernel,@function")
    e("reduce_kernel:")
    e("s_cmp_ge_u32 s2, 576")
    e("s_cbranch_scc1 L_rd_done")
    e("s_load_dwordx2 s[38:39], s[0:1], 96")
    e("s_load_dwordx2 s[36:37], s[0:1], 80")
    e("v_lshrrev_b32 v1, 6, v0")
    e("v_and_b32 v0, 63, v0")
    e("s_nop 0")
    e("v_readfirstlane_b32 s7, v1")
    e("s_nop 3")
    e("s_lshl_b32 s3, s2, 2")
    e("s_add_u32 s3, s3, s7")
    e("s_mul_i32 s4, s3, 58255")
    e("s_lshr_b32 s4, s4, 23")
    e("s_mul_i32 s5, s4, 144")
    e("s_sub_u32 s5, s3, s5")
    e("s_mul_i32 s6, s5, 1821")
    e("s_lshr_b32 s6, s6, 16")
    e("s_mul_i32 s8, s6, 36")
    e("s_sub_u32 s8, s5, s8")
    e("v_lshlrev_b32 v1, 4, v0")
    e("s_waitcnt lgkmcnt(0)")
    e("s_mul_i32 s9, s4, 2359296")
    e("s_lshl_b32 s10, s5, 10")
    e("s_add_u32 s9, s9, s10")
    e("s_add_u32 s12, s38, s9")
    e("s_addc_u32 s13, s39, 0")
    e("s_and_b32 s13, s13, 0xffff")
    e("s_mov_b32 s14, 2359296")
    e("s_mov_b32 s15, 0x20000")
    e("s_mov_b32 s16, s36")
    e("s_and_b32 s17, s37, 0xffff")
    e("s_mov_b32 s18, 2359296")
    e("s_mov_b32 s19, 0x20000")
    for p in range(16):
        e(f"s_mov_b32 s20, {p*147456}")
        e(f"buffer_load_dwordx4 {vr(8+4*p,4)}, v1, s[12:15], s20 offen")
    e("s_and_b32 s9, s4, 7")
    e("s_lshr_b32 s10, s4, 3")
    e("s_lshl_b32 s9, s9, 7")
    e("s_lshl_b32 s11, s6, 5")
    e("s_add_u32 s9, s9, s11")
    e("v_and_b32 v2, 31, v0")
    e("v_add_u32 v2, s9, v2")
    e("v_mul_u32_u24 v2, 2304, v2")
    e("v_lshrrev_b32 v3, 5, v0")
    e("v_lshl_add_u32 v2, v3, 4, v2")
    e("s_mul_i32 s10, s10, 1152")
    e("s_lshl_b32 s11, s8, 5")
    e("s_add_u32 s10, s10, s11")
    e("v_add_u32 v2, s10, v2")
    A = 80
    for p in range(16):
        e(f"s_waitcnt vmcnt({15-p})")
        for k in range(4):
            src = 8 + 4*p + k
            if p == 0:
                e(f"v_lshlrev_b32 v{A+2*k}, 16, v{src}")
                e(f"v_and_b32 v{A+2*k+1}, 0xffff0000, v{src}")
            else:
                e(f"v_lshlrev_b32 v{A+8+2*k}, 16, v{src}")
                e(f"v_and_b32 v{A+8+2*k+1}, 0xffff0000, v{src}")
        if p > 0:
            for k in range(8):
                e(f"v_add_f32 v{A+k}, v{A+k}, v{A+8+k}")
    for k in range(4):
        e(f"v_cvt_pk_bf16_f32 v{4+k}, v{A+2*k}, v{A+2*k+1}")
    e("s_nop 1")
    e("v_permlane32_swap_b32 v4, v6")
    e("v_permlane32_swap_b32 v5, v7")
    e("buffer_store_dwordx4 v[4:7], v2, s[16:19], 0 offen")
    e("s_waitcnt vmcnt(0)")
    e("L_rd_done:")
    e("s_endpgm")

def desc(name, vgpr, accum, sgpr=(100 if DIAG else 64)):
    e(f".amdhsa_kernel {name}")
    e(f"  .amdhsa_next_free_vgpr {vgpr}")
    e(f"  .amdhsa_next_free_sgpr {sgpr}")
    e(f"  .amdhsa_accum_offset {accum}")
    e("  .amdhsa_group_segment_fixed_size 0")
    e("  .amdhsa_kernarg_size 104")
    e("  .amdhsa_user_sgpr_count 2")
    e("  .amdhsa_user_sgpr_kernarg_segment_ptr 1")
    e("  .amdhsa_system_sgpr_workgroup_id_x 1")
    e(".end_amdhsa_kernel")

gen_attn()
gen_reduce()
e('.section .rodata,"a"')
e(".p2align 6")
desc("attn_kernel", 256, 256)
e(".p2align 6")
desc("reduce_kernel", 96, 96)

with open(sys.argv[1] if len(sys.argv) > 1 else OUT, "w") as f:
    f.write(HEADER + "\n".join(L) + "\n")
```

```python
import sys, os

NAME = "concat_heads__mha_block_cached__mha_block_cached__near_ridge"
OUT = f"cdna_kernels/{NAME}.s"
DIAG = int(os.environ.get("DIAG", "0"))
NT = " nt" if int(os.environ.get("NT", "0")) else ""
STF = os.environ.get("STF", "")
STF = (" " + STF) if STF else ""
PF = int(os.environ.get("PF", "0"))
STAG = int(os.environ.get("STAG", "0"))

L = []
def e(s=""):
    L.append(s)

def stamp(idx):
    if not DIAG:
        return
    e(f"s_memrealtime s[{64+2*idx}:{65+2*idx}]")
    e("s_waitcnt lgkmcnt(0)")

def stamp_flush(n, base, wreg="s51"):
    if not DIAG:
        return
    lab = f"L_st_{len(L)}"
    e(f"s_cmp_lg_u32 {wreg}, 0")
    e(f"s_cbranch_scc1 {lab}")
    e("s_mov_b64 exec, 1")
    e("s_lshl_b32 s62, s2, 7")
    e(f"s_add_u32 s62, s62, {base}")
    e("v_mov_b32 v22, s62")
    for i in range(n):
        e(f"v_mov_b32 v20, s{64+2*i}")
        e(f"v_mov_b32 v21, s{65+2*i}")
        e(f"global_store_dwordx2 v22, v[20:21], s[38:39] offset:{8*i}")
        e("s_nop 1")
    e("s_waitcnt vmcnt(0)")
    e(f"{lab}:")

def vr(a, n):
    return f"v[{a}:{a+n-1}]"

HEADER = f"""; Kernarg layout for this problem (104 bytes, ptrs only, base s[0:1]):
; @launch kernel=attn_kernel grid=(256,1,1) block=(512,1,1) lds=163840
; @launch kernel=reduce_kernel grid=(576,1,1) block=(256,1,1) lds=0
.amdgcn_target "amdgcn-amd-amdhsa--gfx950"
.text
"""

class Cnt:
    def __init__(self, name):
        self.name = name
        self.ops = []
    def add(self, tag, n=1):
        self.ops += [tag] * n
        assert len(self.ops) <= (15 if self.name == "lgkmcnt" else 63), (self.name, len(self.ops))
    def wait(self, tag):
        idx = [i for i, t in enumerate(self.ops) if t == tag]
        if not idx:
            return
        last = max(idx)
        n = len(self.ops) - 1 - last
        e(f"s_waitcnt {self.name}({n})")
        self.ops = self.ops[last+1:]
    def wait_all(self):
        if self.ops:
            e(f"s_waitcnt {self.name}(0)")
        self.ops = []

VO = 24; SA = 88; SB = 120; VP = 152; FP = 168; VT = 200; VA = 212; VQ = 224
NFB = 8

def gen_attn():
    e(".globl attn_kernel")
    e(".p2align 8")
    e(".type attn_kernel,@function")
    e("attn_kernel:")
    e("s_cmp_ge_u32 s2, 256")
    e("s_cbranch_scc1 L_attn_done")
    e("s_load_dwordx2 s[38:39], s[0:1], 96")
    e("s_and_b32 s3, s2, 7")
    e("s_and_b32 s4, s3, 1")
    e("s_lshr_b32 s3, s3, 1")
    e("s_lshr_b32 s47, s2, 3")
    e("s_and_b32 s52, s47, 3")
    e("s_lshl_b32 s3, s3, 2")
    e("s_add_u32 s52, s52, s3")
    e("s_lshr_b32 s5, s47, 2")
    e("s_mul_i32 s3, s4, 40")
    e("s_add_u32 s0, s0, s3")
    e("s_addc_u32 s1, s1, 0")
    e("s_load_dwordx8 s[28:35], s[0:1], 0")
    e("s_load_dwordx2 s[36:37], s[0:1], 32")
    e("v_mov_b32 v221, v0")
    e("v_lshrrev_b32 v1, 6, v0")
    e("v_and_b32 v0, 63, v0")
    e("s_nop 0")
    e("v_readfirstlane_b32 s51, v1")
    e("s_nop 3")
    e("s_and_b32 s7, s51, 3")
    e("s_lshr_b32 s53, s51, 2")
    e("s_lshl_b32 s6, s52, 1")
    e("s_add_u32 s6, s6, s53")
    e("s_lshl_b32 s54, s53, 16")
    e("v_lshrrev_b32 v1, 4, v0")
    e("v_and_b32 v2, 15, v0")
    e("v_lshlrev_b32 v3, 2, v1")
    e("v_xor_b32 v3, v3, v2")
    for j in range(4):
        e(f"v_xor_b32 v23, {j}, v3")
        e(f"v_lshlrev_b32 v23, 4, v23")
        e(f"v_lshl_add_u32 v{4+j}, v1, 8, v23")
        e(f"v_lshl_add_u32 v{18+j}, v1, 13, v23")
    e("v_lshrrev_b32 v22, 3, v0")
    e("v_mul_u32_u24 v22, 1152, v22")
    e("v_and_b32 v23, 7, v0")
    e("v_xor_b32 v23, v23, v1")
    e("v_lshl_add_u32 v200, v23, 4, v22")
    e("v_xor_b32 v23, 4, v23")
    e("v_lshl_add_u32 v201, v23, 4, v22")
    e("v_and_b32 v23, 7, v0")
    e("v_bfe_u32 v9, v0, 4, 1")
    e("v_lshlrev_b32 v9, 2, v9")
    e("v_xor_b32 v23, v23, v9")
    e("v_lshl_add_u32 v222, v23, 4, v22")
    e("v_and_b32 v23, 31, v0")
    e("v_lshrrev_b32 v22, 5, v0")
    e("v_and_b32 v8, 3, v23")
    e("v_lshlrev_b32 v8, 2, v8")
    e("v_bfe_u32 v9, v23, 2, 2")
    e("v_or_b32 v8, v8, v9")
    e("v_xor_b32 v8, v8, v22")
    e("v_lshlrev_b32 v8, 4, v8")
    e("v_lshl_add_u32 v8, v23, 8, v8")
    e("v_add_u32 v8, s54, v8")
    e("v_bfe_u32 v9, v23, 1, 3")
    e("v_xor_b32 v9, v9, v22")
    e("v_lshlrev_b32 v9, 4, v9")
    e("v_lshl_add_u32 v9, v23, 7, v9")
    e("s_lshl_b32 s3, s7, 12")
    e("v_add_u32 v202, s3, v9")
    for s in range(1, 4):
        e(f"v_xor_b32 v{202+s}, {s<<5}, v202")
    for s in range(4):
        e(f"v_add_u32 v{208+s}, 114688, v{202+s}")
    e("v_lshrrev_b32 v10, 2, v2")
    e("v_and_b32 v11, 1, v1")
    e("v_lshlrev_b32 v11, 1, v11")
    e("v_bfe_u32 v12, v2, 1, 1")
    e("v_or_b32 v11, v11, v12")
    e("v_and_b32 v12, 1, v2")
    e("v_lshlrev_b32 v12, 3, v12")
    e("v_add_u32 v12, s54, v12")
    e("v_xor_b32 v13, v11, v22")
    e("v_lshl_add_u32 v13, v10, 2, v13")
    e("v_lshl_add_u32 v13, v13, 4, v12")
    e("v_lshl_add_u32 v14, v22, 2, v10")
    e("v_lshl_add_u32 v9, v14, 8, v13")
    e("v_lshrrev_b32 v13, 1, v10")
    e("v_lshl_add_u32 v13, v13, 2, v11")
    e("v_lshl_add_u32 v13, v13, 4, v12")
    e("v_lshl_add_u32 v14, v22, 3, v10")
    e("v_lshl_add_u32 v223, v14, 7, v13")
    e("v_lshlrev_b32 v14, 1, v22")
    e("v_xor_b32 v13, v11, v14")
    e("v_lshl_add_u32 v13, v10, 2, v13")
    e("v_lshl_add_u32 v13, v13, 4, v12")
    e("v_lshl_add_u32 v14, v22, 3, v10")
    e("v_lshl_add_u32 v3, v14, 8, v13")
    for db in range(4):
        for u in range(2):
            e(f"v_xor_b32 v{VA+2*db+u}, {(db<<6)^(u<<4)}, v3")
    for s in range(8):
        e(f"v_xor_b32 v{10+s}, {s<<5}, v8")
    e("s_waitcnt lgkmcnt(0)")
    e("s_mul_i32 s3, s5, 147456")
    e("s_add_u32 s20, s28, s3")
    e("s_addc_u32 s21, s29, 0")
    e("s_and_b32 s21, s21, 0xffff")
    e("s_mov_b32 s22, 0" if os.environ.get("NOXW") else "s_mov_b32 s22, 147456")
    e("s_mov_b32 s23, 0x20000")
    e("s_lshl_b32 s3, s5, 5")
    e("s_add_u32 s3, s3, s6")
    e("s_lshl_b32 s3, s3, 18")
    e("s_add_u32 s8, s30, s3")
    e("s_addc_u32 s9, s31, 0")
    e("s_and_b32 s9, s9, 0xffff")
    e("s_mov_b32 s10, 262144")
    e("s_mov_b32 s11, 0x20000")
    e("s_add_u32 s12, s32, s3")
    e("s_addc_u32 s13, s33, 0")
    e("s_and_b32 s13, s13, 0xffff")
    e("s_mov_b32 s14, 262144")
    e("s_mov_b32 s15, 0x20000")
    e("s_mov_b32 s16, s34")
    e("s_and_b32 s17, s35, 0xffff")
    e("s_mov_b32 s18, 0" if os.environ.get("NOXW") else "s_mov_b32 s18, 4718592")
    e("s_mov_b32 s19, 0x20000")
    e("s_mov_b32 s56, s36")
    e("s_and_b32 s57, s37, 0xffff")
    e("s_mov_b32 s58, 0" if os.environ.get("NOXW") else "s_mov_b32 s58, 4718592")
    e("s_mov_b32 s59, 0x20000")
    e("s_lshl_b32 s3, s4, 3")
    e("s_add_u32 s3, s3, s5")
    e("s_lshl_b32 s3, s3, 4")
    e("s_add_u32 s3, s3, s52")
    e("s_mul_i32 s3, s3, 147456")
    e("s_mul_i32 s47, s7, 36864")
    e("s_add_u32 s3, s3, s47")
    e("s_add_u32 s24, s38, s3")
    e("s_addc_u32 s25, s39, 0")
    e("s_and_b32 s25, s25, 0xffff")
    e("s_mov_b32 s26, 36864")
    e("s_mov_b32 s27, 0x20000")
    e("s_lshl_b32 s44, s7, 12")
    e("s_add_u32 s55, s44, s54")
    e("s_mov_b32 s46, 0x3e0293ee")
    e("s_lshl_b32 s48, s7, 17")
    e("s_lshl_b32 s3, s6, 8")
    e("s_add_u32 s48, s48, s3")
    e("s_mul_i32 s49, s51, 18432")
    e("s_lshl_b32 s40, s51, 11")
    e("s_lshl_b32 s3, s52, 8")
    e("s_lshl_b32 s47, s7, 5")
    e("s_add_u32 s3, s3, s47")
    e("s_mul_i32 s60, s3, 1152")
    e("s_lshl_b32 s3, s53, 9")
    e("s_add_u32 s60, s60, s3")

    lg = Cnt("lgkmcnt")

    dmaq = []
    SPREAD = int(os.environ.get("SPREAD", "1"))
    def push(chunk):
        if os.environ.get("NODMA") and ("s[20:23]" in chunk[-1] or "s[16:19]" in chunk[-1] or "s[56:59]" in chunk[-1]): return
        if SPREAD: dmaq.append(chunk)
        else:
            for x in chunk: e(x)
    def drain(n=None):
        k = 0
        while dmaq and (n is None or k < n):
            for x in dmaq.pop(0): e(x)
            k += 1
    vm = Cnt("vmcnt")
    XADDR = [131072, 147456, 49152, 114688]
    def slot_of(u):
        return (u % 3) if u < 9 else ((u - 9 + 3) & 3)
    def issue_x(T):
        for j in range(2):
            push([f"s_add_u32 s3, s40, {XADDR[T&3] + j*1024}", "s_mov_b32 m0, s3",
                  f"s_add_u32 s50, s49, {j*9216 + 128*T}", f"buffer_load_dwordx4 v{200+j}, s[20:23], s50 offen lds"])
        vm.add(f"x{T}", 2)
    def issue_static(u):
        slot = slot_of(u)
        if u < 9:
            for j in range(4):
                push([f"s_add_u32 s3, s55, {slot*16384 + j*1024}", "s_mov_b32 m0, s3",
                      f"s_add_u32 s50, s48, {(64*u + 4*j)*8192}", f"buffer_load_dwordx4 v{18+j}, s[16:19], s50 offen lds"])
        elif u <= 41:
            if u == 9: srd, i = 8, 0
            elif u & 1 == 0: srd, i = 8, (u - 10) // 2 + 1
            else: srd, i = 12, (u - 11) // 2
            for j in range(4):
                c = []
                if j == 0:
                    c = [f"s_add_u32 s3, s55, {slot*16384}", "s_mov_b32 m0, s3", f"s_add_u32 s50, s44, {i*16384}"]
                c += [f"buffer_load_dwordx4 v{4+j}, s[{srd}:{srd+3}], s50 offen offset:{j*1024}{NT} lds"]
                push(c)
        else:
            tau = u - 42
            for j in range(4):
                push([f"s_add_u32 s3, s55, {slot*16384 + j*1024}", "s_mov_b32 m0, s3",
                      f"s_add_u32 s50, s60, {j*9216 + (tau&1)*128*1152 + (tau>>1)*128}",
                      f"buffer_load_dwordx4 v222, s[56:59], s50 offen lds"])
        vm.add(f"u{u}", 4)
    def kv_of(v):
        if v == 0: return 8, 0
        if v & 1: return 8, (v - 1) // 2 + 1
        return 12, (v - 2) // 2
    def touch_static(v):
        if not PF: return
        srd, i = kv_of(v)
        push([f"s_add_u32 s41, s44, {i*16384}", f"buffer_load_dword v23, v221, s[{srd}:{srd+3}], s41 offen"])
        vm.add("pf", 1)
    def touch_dyn(srd, sreg):
        if not PF: return
        push([f"s_add_u32 s41, {sreg}, {(PF//2 - 1)*16384}", f"buffer_load_dword v23, v221, s[{srd}:{srd+3}], s41 offen"])
    def issue_dyn(srd, sreg, slot):
        for j in range(4):
            c = []
            if j == 0:
                c = [f"s_add_u32 s3, s55, {slot*16384}", "s_mov_b32 m0, s3", "s_nop 0"]
            c += [f"buffer_load_dwordx4 v{4+j}, s[{srd}:{srd+3}], {sreg} offen offset:{j*1024}{NT} lds"]
            if j == 3:
                c += [f"s_add_u32 {sreg}, {sreg}, 16384"]
            push(c)
        touch_dyn(srd, sreg)

    def sync(issue, vmwait=("s_waitcnt vmcnt(11)" if PF else "s_waitcnt vmcnt(8)")):
        drain()
        lg.wait_all()
        if callable(vmwait): vmwait()
        else: e(vmwait)
        e("s_barrier")
        if issue: issue()

    fcount = [0]
    def run_stream(mf, fillers, events, LA=6, pre=0):
        n_mm = sum(1 for m in mf if m.get('mm'))
        nxt = pre
        fi = 0
        for n in range(n_mm):
            for ev in events.get(n, []):
                ev()
            while nxt < len(mf) and nxt <= n + LA and mf[nxt].get('gate', 0) <= n:
                m = mf[nxt]
                m['buf'] = FP + 4 * (fcount[0] % NFB); fcount[0] += 1
                m['tag'] = f"f{fcount[0]}"
                m['rd'](m['buf'], m['tag'])
                nxt += 1
            m = mf[n]
            lg.wait(m['tag'])
            m['mm'](m['buf'])
            drain(1)
            k = fillers.get(n, [])
            for f in k:
                e(f)
        for ev in events.get(n_mm, []):
            ev()
        while nxt < len(mf):
            m = mf[nxt]
            m['buf'] = FP + 4 * (fcount[0] % NFB); fcount[0] += 1
            m['tag'] = f"f{fcount[0]}"
            m['rd'](m['buf'], m['tag'])
            nxt += 1
        return [m for m in mf if not m.get('mm')]

    def w_frag(slot, s, db, T, xf):
        def rd(buf, tag):
            for u in range(2):
                e(f"ds_read_b64_tr_b16 {vr(buf+2*u,2)}, v{VA+2*db+u} offset:{slot*16384 + s*4096 + u*1024}")
            lg.add(tag, 2)
        def mm(buf):
            c = "0" if (T == 0 and s == 0) else vr(VO + 16*db, 16)
            e(f"v_mfma_f32_32x32x16_bf16 {vr(VO+16*db,16)}, {vr(buf,4)}, {vr(xf+4*s,4)}, {c}")
        return dict(rd=rd, mm=mm)
    def k_frag(slot, s, kb, S):
        def rd(buf, tag):
            e(f"ds_read_b128 {vr(buf,4)}, v{10+s} offset:{slot*16384 + kb*8192}")
            lg.add(tag, 1)
        def mm(buf):
            c = "0" if s == 0 else vr(S+16*kb, 16)
            e(f"v_mfma_f32_32x32x16_bf16 {vr(S+16*kb,16)}, {vr(buf,4)}, {vr(VQ+4*s,4)}, {c}")
        return dict(rd=rd, mm=mm)
    def v_frag(slot, kb, t, db):
        def rd(buf, tag):
            for u in range(2):
                e(f"ds_read_b64_tr_b16 {vr(buf+2*u,2)}, v{VA+2*db+u} offset:{slot*16384 + kb*8192+t*4096+u*2048}")
            lg.add(tag, 2)
        def mm(buf):
            p = VP + 4*(2*kb + t)
            e(f"v_mfma_f32_32x32x16_bf16 {vr(VO+16*db,16)}, {vr(buf,4)}, {vr(p,4)}, {vr(VO+16*db,16)}")
        return dict(rd=rd, mm=mm)
    def strip(m):
        m2 = dict(m); m2.pop('mm'); return m2
    def carry(pend, full):
        for a, b in zip(pend, full):
            b['buf'] = a['buf']; b['tag'] = a['tag']
        return len(pend)

    stamp(0)
    if STAG:
        e("s_cmp_eq_u32 s53, 0")
        e("s_cbranch_scc1 L_stag0")
        for _ in range(STAG):
            e("s_barrier")
        e("L_stag0:")
    WARM = int(os.environ.get("WARM", "1"))
    e("s_lshr_b32 s61, s2, 3")
    e("s_and_b32 s63, s2, 7")
    e("s_lshr_b32 s63, s63, 1")
    e("s_mov_b32 s32, s28")
    e("s_and_b32 s33, s29, 0xffff")
    e("s_mov_b32 s34, 1179648")
    e("s_mov_b32 s35, 0x20000")
    e("s_mul_i32 s3, s61, 288")
    e("v_add_u32 v220, s3, v221")
    e("v_lshlrev_b32 v220, 7, v220")
    e("v_cmp_gt_u32 vcc, 288, v221")
    e("v_mov_b32 v23, 0x40000000")
    e("s_nop 1")
    e("v_cndmask_b32 v220, v23, v220, vcc")
    e("s_mul_i32 s3, s61, 18")
    e("v_lshrrev_b32 v22, 4, v221")
    e("v_add_u32 v22, s3, v22")
    e("v_lshlrev_b32 v22, 13, v22")
    e("v_and_b32 v206, 15, v221")
    e("v_lshl_add_u32 v22, v206, 7, v22")
    e("s_lshl_b32 s3, s63, 11")
    e("v_add_u32 v22, s3, v22")
    e("v_cndmask_b32 v22, v23, v22, vcc")
    e("v_lshlrev_b32 v221, 6, v0")
    issue_x(0); issue_static(0); issue_x(1); issue_static(1); issue_x(2); issue_x(3)
    drain()
    if int(os.environ.get("WARMQ", "0")):
        e("buffer_load_dword v207, v220, s[32:35], 0 offen")
        e("buffer_load_dword v206, v22, s[16:19], 0 offen")
        vm.add("warm", 2)
    XFB = [SA, SA + 16]
    def xread(T):
        for s in range(4):
            a = XADDR[T&3]
            if a < 65536:
                e(f"ds_read_b128 {vr(XFB[T&1]+4*s,4)}, v{202+s} offset:{a}")
            else:
                e(f"ds_read_b128 {vr(XFB[T&1]+4*s,4)}, v{208+s} offset:{a-114688}")
        lg.add(f"x{T}", 4)
    def vmw(*tags):
        def f():
            idx = [max([i for i, t in enumerate(vm.ops) if t == tg], default=-1) for tg in tags]
            tg = tags[idx.index(max(idx))]
            if WARM: pass
            vm.wait(tg)
        return f
    sync(None, vmwait=vmw("x0"))
    xread(0)
    ntouch = PF + 4
    tq = list(range(ntouch))
    def touch_some(k):
        for _ in range(k):
            if tq: touch_static(tq.pop(0))
    per = -(-(ntouch - 2) // 8)
    def touch_q(k):
        if not PF: return
        if k <= 7:
            touch_some(max(min(per, len(tq) - 2), 0))
        else:
            touch_some(1)
    sync(lambda: (issue_static(2), issue_x(4), touch_q(0)), vmwait=vmw("u0", "x1"))
    pend = []
    for T in range(9):
        mf = [w_frag(T % 3, s, db, T, XFB[T&1]) for s in range(4) for db in range(4)]
        pre = carry(pend, mf)
        events = {}
        if T < 8:
            events[4] = [lambda T=T: xread(T + 1)]
            def iss(T=T):
                if T + 3 <= 8: issue_static(T + 3)
                if T + 5 <= 8: issue_x(T + 5)
                if T + 1 == 7: (issue_static(9), issue_static(10))
                if T + 1 == 8: issue_static(11)
                touch_q(T + 1)
            tags = (f"u{T+1}", f"x{T+2}") if T + 2 <= 8 else (f"u{T+1}",)
            events[12] = [lambda T=T, iss=iss, tags=tags: sync(iss, vmwait=vmw(*tags))]
            nxtf = [strip(w_frag((T + 1) % 3, 0, db, T + 1, XFB[(T+1)&1])) for db in range(4)]
            for m in nxtf: m['gate'] = 12
            mf += nxtf
        else:
            events[12] = [lambda: sync(lambda: (issue_static(12), touch_q(9)), vmwait=vmw("u9"))]
        if False:
            events.setdefault(13, []).append(lambda T=T: e(f"s_memrealtime s[{64+2*(4+(0,1,2,4,6,8).index(T))}:{65+2*(4+(0,1,2,4,6,8).index(T))}]"))
        pend = run_stream(mf, {}, events, pre=pre, LA=int(os.environ.get('QLA','4')))
    drain()
    stamp(1)
    e("s_nop 15")
    for db in range(4):
        for t in range(2):
            F = VQ + 4 * (2*db + t)
            a = VO + 16*db + 8*t
            for j in range(4):
                e(f"v_cvt_pk_bf16_f32 v{F+j}, v{a+2*j}, v{a+2*j+1}")
    e("s_nop 1")
    for sp in range(8):
        F = VQ + 4*sp
        e(f"v_permlane32_swap_b32 v{F}, v{F+2}")
        e(f"v_permlane32_swap_b32 v{F+1}, v{F+3}")
    for k in range(8):
        db, u = k >> 1, k & 1
        e(f"v_xor_b32 v{VA+k}, {(db<<6)^(u<<5)}, v9")
    e("v_mov_b32 v18, 0xff800000")
    e("v_mov_b32 v21, 0xff800000")
    e("v_mov_b32 v19, 0")
    e("s_add_u32 s43, s44, 16384")
    e("s_add_u32 s42, s44, 49152")
    e("s_mov_b32 s45, 0")

    def max_ops(S):
        ops = []
        for c in range(4):
            b0 = S + 8*c
            ops.append(f"v_max3_f32 v{VT+c}, v{b0}, v{b0+1}, v{b0+2}")
        for c in range(4):
            b0 = S + 8*c
            ops.append(f"v_max3_f32 v{VT+c}, v{VT+c}, v{b0+3}, v{b0+4}")
        for c in range(4):
            b0 = S + 8*c
            ops.append(f"v_max3_f32 v{VT+c}, v{VT+c}, v{b0+5}, v{b0+6}")
        for c in range(4):
            b0 = S + 8*c
            ops.append(f"v_max_f32 v{VT+c}, v{VT+c}, v{b0+7}")
        ops.append(f"v_max3_f32 v{VT}, v{VT}, v{VT+1}, v{VT+2}")
        ops.append(f"v_max_f32 v{VT}, v{VT}, v{VT+3}")
        ops.append(f"v_mov_b32 v{VT+1}, v{VT}")
        ops.append("s_nop 1")
        ops.append(f"v_permlane32_swap_b32 v{VT}, v{VT+1}")
        ops.append(f"v_max_f32 v{VT}, v{VT}, v{VT+1}")
        ops.append(f"v_mul_f32 v{VT+4}, s46, v{VT}")
        ops.append(f"v_cmp_gt_f32 vcc, v{VT+4}, v21")
        return ops
    lab_ctr = [0]
    def rescale_check():
        lab = f"L_nors_{lab_ctr[0]}"; lab_ctr[0] += 1
        e(f"s_cbranch_vccz {lab}")
        e("s_nop 15")
        e(f"v_max_f32 v{VT+5}, v18, v{VT+4}")
        e(f"v_sub_f32 v{VT+6}, v18, v{VT+5}")
        e(f"v_exp_f32 v20, v{VT+6}")
        e(f"v_mov_b32 v18, v{VT+5}")
        e(f"v_add_f32 v21, 0x41000000, v{VT+5}")
        e(f"v_mul_f32 v19, v20, v19")
        for i in range(64):
            e(f"v_mul_f32 v{VO+i}, v20, v{VO+i}")
        e(f"{lab}:")
    def exp_ops(S, kb):
        b0 = S + 16*kb
        acc = [VT+8+2*kb, VT+9+2*kb]
        ops = []
        G = 4
        for gidx in range(6):
            if gidx < 4:
                for k in range(G):
                    i = b0 + G*gidx + k
                    ops.append(f"v_fma_f32 v{i}, v{i}, s46, -v18")
            if 1 <= gidx < 5:
                for k in range(G):
                    i = b0 + G*(gidx-1) + k
                    ops.append(f"v_exp_f32 v{i}, v{i}")
            if 2 <= gidx:
                g2 = gidx - 2
                i = b0 + G*g2
                if g2 == 0:
                    ops.append(f"v_add_f32 v{acc[0]}, v{i}, v{i+1}")
                    ops.append(f"v_add_f32 v{acc[1]}, v{i+2}, v{i+3}")
                else:
                    ops.append(f"v_add_f32 v{acc[0]}, v{acc[0]}, v{i}")
                    ops.append(f"v_add_f32 v{acc[1]}, v{acc[1]}, v{i+2}")
                    ops.append(f"v_add_f32 v{acc[0]}, v{acc[0]}, v{i+1}")
                    ops.append(f"v_add_f32 v{acc[1]}, v{acc[1]}, v{i+3}")
                p = VP + 8*kb + 2*g2
                ops.append(f"v_cvt_pk_bf16_f32 v{p}, v{i}, v{i+1}")
                ops.append(f"v_cvt_pk_bf16_f32 v{p+1}, v{i+2}, v{i+3}")
        ops.append(f"v_add_f32 v{acc[0]}, v{acc[0]}, v{acc[1]}")
        ops.append(f"v_add_f32 v19, v19, v{acc[0]}")
        return ops
    def spread(ops, positions):
        d = {}
        n = len(positions)
        per = len(ops) / n
        for k, op in enumerate(ops):
            p = positions[min(n-1, int(k / per))]
            d.setdefault(p, []).append(op)
        return d

    mf = [k_frag(3, s, kb, SA) for s in range(8) for kb in range(2)]
    zero_ops = [f"v_mov_b32 v{VO+i}, 0" for i in range(64)]
    e("s_nop 1")
    nxtf = [strip(k_frag(0, s, kb, SB)) for s in range(2) for kb in range(2)]
    for m in nxtf: m['gate'] = 12
    events = {12: [lambda: sync(lambda: issue_dyn(12, "s43", 3), vmwait=vmw("u10"))]}
    pend = run_stream(mf + nxtf, spread(zero_ops, list(range(16))), events)
    drain()
    e("s_nop 7")
    e("s_nop 7")
    for op in max_ops(SA):
        e(op)

    def iteration(par, pend, issue_mid, issue_end, doS=True, nextS=True, end_sync=True, wmid=None, wend=None):
        Scur, Snx = (SA, SB) if par == 0 else (SB, SA)
        kslot, vslot, k2slot = (0, 1, 2) if par == 0 else (2, 3, 0)
        rescale_check()
        ex0 = exp_ops(Scur, 0); ex1 = exp_ops(Scur, 1)
        mf = []
        events = {}
        fill = {}
        if doS:
            mf += [k_frag(kslot, s, kb, Snx) for s in range(8) for kb in range(2)]
            pre = carry(pend, mf)
            base = 16
            cut = 24
            fill.update(spread(ex0 + ex1[:cut], list(range(0, 15))))
            events[12] = [lambda: sync(issue_mid, **({'vmwait': wmid} if wmid else {}))]
            vgate = 12
        else:
            pre = 0
            base = 0
            cut = 24
            sync(issue_mid, **({'vmwait': wmid} if wmid else {}))
            vgate = 0
        vf = [v_frag(vslot, kb, t, db) for kb in range(2) for t in range(2) for db in range(4)]
        for m in vf: m['gate'] = vgate
        mf += vf
        if not doS:
            events[0] = [lambda: [e(op) for op in ex0 + ex1[:cut]] and None]
        for p, ops in spread(ex1[cut:], list(range(base, base + 7))).items():
            fill.setdefault(p, []).extend(ops)
        if nextS:
            for p, ops in spread(max_ops(Snx), list(range(base + 8, base + 16))).items():
                fill.setdefault(p, []).extend(ops)
        if end_sync:
            events[base + 12] = [lambda: sync(issue_end, **({'vmwait': wend} if wend else {}))]
        if doS and nextS and end_sync == True:
            nx = [strip(k_frag(k2slot, s, kb, Scur)) for s in range(2) for kb in range(2)]
            for m in nx: m['gate'] = base + 12
            mf += nx
        r = run_stream(mf, fill, events, pre=pre)
        drain()
        return r

    st0 = (len(lg.ops), fcount[0] % NFB, [ (m['buf']) for m in pend])
    e("L_loop:")
    pend = iteration(0, pend, lambda: issue_dyn(8, "s42", 0), lambda: issue_dyn(12, "s43", 1))
    pend = iteration(1, pend, lambda: issue_dyn(8, "s42", 2), lambda: issue_dyn(12, "s43", 3))
    st1 = (len(lg.ops), fcount[0] % NFB, [ (m['buf']) for m in pend])
    assert st0 == st1, (st0, st1)
    assert not dmaq
    e("s_add_u32 s45, s45, 1")
    e("s_cmp_lt_u32 s45, 7")
    e("s_cbranch_scc1 L_loop")
    pfo = ["pf"] if PF else []
    vm.ops = ["v14"]*4 + pfo + ["k16"]*4 + pfo + ["v15"]*4 + pfo
    pend = iteration(0, pend, lambda: issue_static(42), lambda: issue_static(43), end_sync="nok", wmid=vmw("v14"), wend=vmw("k16"))
    drain()
    if WARM:
        e("s_cmp_ge_u32 s51, 5")
        e("s_cbranch_scc1 L_nowarm2")
        e("s_mul_i32 s3, s63, 1179648")
        e("buffer_load_dword v220, v220, s[56:59], s3 offen")
        e("L_nowarm2:")
    pend = iteration(1, pend, lambda: issue_static(44), None, doS=False, nextS=False, end_sync=False, wmid=vmw("v15"))
    drain()
    stamp(2)
    e(f"v_mov_b32 v{VT+1}, v19")
    e("s_nop 1")
    e(f"v_permlane32_swap_b32 v19, v{VT+1}")
    e(f"v_add_f32 v19, v19, v{VT+1}")
    e("v_rcp_f32 v20, v19")
    e("v_lshlrev_b32 v1, 4, v0")
    XS = slot_of(41)*16384
    e("s_lshl_b32 s3, s51, 12")
    e("s_add_u32 s3, s3, 131072")
    e("v_add_u32 v2, s3, v1")
    e(f"s_add_u32 s3, s55, {XS}")
    e("v_add_u32 v3, s3, v1")
    e("s_nop 7")
    for i in range(64):
        e(f"v_mul_f32 v{VO+i}, v20, v{VO+i}")
    OWN = SA
    for db in range(4):
        for t in range(2):
            F = OWN + 4 * (2*db + t)
            a = VO + 16*db + 8*t
            for j in range(4):
                e(f"v_cvt_pk_bf16_f32 v{F+j}, v{a+2*j}, v{a+2*j+1}")
    e("s_nop 1")
    for sp in range(8):
        F = OWN + 4*sp
        e(f"v_permlane32_swap_b32 v{F}, v{F+2}")
        e(f"v_permlane32_swap_b32 v{F+1}, v{F+3}")
    if STAG:
        e("s_cmp_eq_u32 s53, 1")
        e("s_cbranch_scc1 L_stag1")
        for _ in range(STAG):
            e("s_barrier")
        e("L_stag1:")
    e("s_barrier")
    for k in range(4):
        e(f"ds_write_b128 v2, {vr(OWN+4*k,4)} offset:{k*1024}")
        e(f"ds_write_b128 v3, {vr(OWN+16+4*k,4)} offset:{k*1024}")
    e("s_add_u32 s3, s44, 131072")
    e("v_add_u32 v2, s3, v1")
    e(f"s_add_u32 s3, s44, {XS}")
    e("v_add_u32 v3, s3, v1")
    e("v_add_u32 v21, 65536, v3")
    e("s_waitcnt lgkmcnt(0)")
    e("s_barrier")
    H = [VQ, SB]
    for hh in range(2):
        for k in range(4):
            e(f"ds_read_b128 {vr(H[hh]+4*k,4)}, v2 offset:{hh*16384 + k*1024}")
        for k in range(4):
            e(f"ds_read_b128 {vr(H[hh]+16+4*k,4)}, v{3 if hh == 0 else 21} offset:{k*1024}")
        e("s_waitcnt lgkmcnt(0)")
    e("v_xor_b32 v11, 64, v223")
    e("v_mov_b32 v10, v223")
    PK = SA
    def o_frag(slot, sp, nb, hh, acc):
        def rd(buf, tag):
            for u in range(2):
                e(f"ds_read_b64_tr_b16 {vr(buf+2*u,2)}, v{10+nb} offset:{slot*16384 + sp*2048 + u*512}")
            lg.add(tag, 2)
        def mm(buf):
            c = "0" if (hh == 0 and sp == 0) else vr(acc + 16*nb, 16)
            e(f"v_mfma_f32_32x32x16_bf16 {vr(acc+16*nb,16)}, {vr(buf,4)}, {vr(H[hh]+4*sp,4)}, {c}")
        return dict(rd=rd, mm=mm)
    def store_ops(ntl):
        acc = VO + 32 * (ntl & 1)
        def f():
            drain()
            for nb in range(2):
                for j in range(8):
                    e(f"v_cvt_pk_bf16_f32 v{PK+8*nb+j}, v{acc+16*nb+2*j}, v{acc+16*nb+2*j+1}")
            e(f"s_lshl_b32 s61, s53, 14")
            e(f"s_add_u32 s61, s61, {ntl*4096}")
            for nb in range(2):
                if (ntl == 4 and nb == 1) or (ntl == 0 and nb == 0):
                    cond = 0 if (ntl == 4) else 1
                    e(f"s_cmp_eq_u32 s53, {cond}")
                    e(f"s_cselect_b32 s47, 0x10000000, s61")
                    sreg = "s47"
                else:
                    sreg = "s61"
                for tt in range(2):
                    e(f"buffer_store_dwordx4 {vr(PK+8*nb+4*tt,4)}, v1, s[24:27], {sreg} offen offset:{nb*2048 + tt*1024}{STF}")
                    vm.add("st", 1)
        return f
    def osync(tau):
        def iss():
            if tau + 3 < 10:
                issue_static(42 + tau + 3)
        sync(iss, vmwait=lambda: vm.wait(f"u{42+tau}"))
    if DIAG and os.environ.get("TAILST"): stamp(4)
    osync(0)
    if DIAG and os.environ.get("TAILST"): stamp(5)
    pend = []
    for tau in range(10):
        slot = slot_of(42 + tau)
        ntl = tau >> 1; hh = tau & 1
        acc = VO + 32 * (ntl & 1)
        mf = [o_frag(slot, sp, nb, hh, acc) for sp in range(8) for nb in range(2)]
        pre = carry(pend, mf)
        events = {}
        if hh == 0 and ntl > 0:
            events[6] = [store_ops(ntl - 1)]
        if tau < 9:
            events[12] = [lambda tau=tau: osync(tau + 1)]
            nx = [strip(o_frag(slot_of(43 + tau), sp, nb, 0, 0)) for sp in range(2) for nb in range(2)]
            for m in nx: m['gate'] = 12
            mf += nx
        if DIAG and os.environ.get("TAILST") and tau in (2, 5, 8):
            events.setdefault(13, []).append(lambda tau=tau: e(f"s_memrealtime s[{64+2*(6+(2,5,8).index(tau))}:{65+2*(6+(2,5,8).index(tau))}]"))
        pend = run_stream(mf, {}, events, pre=pre)
    e("s_nop 15")
    store_ops(4)()
    if DIAG and os.environ.get("TAILST"): stamp(9)
    e("s_waitcnt vmcnt(0)")
    stamp(3)
    stamp_flush(4, 67108864)
    e("L_attn_done:")
    e("s_endpgm")

def gen_reduce():
    e(".globl reduce_kernel")
    e(".p2align 8")
    e(".type reduce_kernel,@function")
    e("reduce_kernel:")
    e("s_cmp_ge_u32 s2, 576")
    e("s_cbranch_scc1 L_rd_done")
    e("s_load_dwordx2 s[38:39], s[0:1], 96")
    e("s_load_dwordx2 s[36:37], s[0:1], 80")
    e("v_lshrrev_b32 v1, 6, v0")
    e("v_and_b32 v0, 63, v0")
    e("s_nop 0")
    e("v_readfirstlane_b32 s7, v1")
    e("s_nop 3")
    e("s_lshl_b32 s3, s2, 2")
    e("s_add_u32 s3, s3, s7")
    e("s_mul_i32 s4, s3, 58255")
    e("s_lshr_b32 s4, s4, 23")
    e("s_mul_i32 s5, s4, 144")
    e("s_sub_u32 s5, s3, s5")
    e("s_mul_i32 s6, s5, 1821")
    e("s_lshr_b32 s6, s6, 16")
    e("s_mul_i32 s8, s6, 36")
    e("s_sub_u32 s8, s5, s8")
    e("v_lshlrev_b32 v1, 4, v0")
    e("s_waitcnt lgkmcnt(0)")
    e("s_mul_i32 s9, s4, 2359296")
    e("s_lshl_b32 s10, s5, 10")
    e("s_add_u32 s9, s9, s10")
    e("s_add_u32 s12, s38, s9")
    e("s_addc_u32 s13, s39, 0")
    e("s_and_b32 s13, s13, 0xffff")
    e("s_mov_b32 s14, 2359296")
    e("s_mov_b32 s15, 0x20000")
    e("s_mov_b32 s16, s36")
    e("s_and_b32 s17, s37, 0xffff")
    e("s_mov_b32 s18, 2359296")
    e("s_mov_b32 s19, 0x20000")
    for p in range(16):
        e(f"s_mov_b32 s20, {p*147456}")
        e(f"buffer_load_dwordx4 {vr(8+4*p,4)}, v1, s[12:15], s20 offen")
    e("s_and_b32 s9, s4, 7")
    e("s_lshr_b32 s10, s4, 3")
    e("s_lshl_b32 s9, s9, 7")
    e("s_lshl_b32 s11, s6, 5")
    e("s_add_u32 s9, s9, s11")
    e("v_and_b32 v2, 31, v0")
    e("v_add_u32 v2, s9, v2")
    e("v_mul_u32_u24 v2, 2304, v2")
    e("v_lshrrev_b32 v3, 5, v0")
    e("v_lshl_add_u32 v2, v3, 4, v2")
    e("s_mul_i32 s10, s10, 1152")
    e("s_lshl_b32 s11, s8, 5")
    e("s_add_u32 s10, s10, s11")
    e("v_add_u32 v2, s10, v2")
    A = 80
    for p in range(16):
        e(f"s_waitcnt vmcnt({15-p})")
        for k in range(4):
            src = 8 + 4*p + k
            if p == 0:
                e(f"v_lshlrev_b32 v{A+2*k}, 16, v{src}")
                e(f"v_and_b32 v{A+2*k+1}, 0xffff0000, v{src}")
            else:
                e(f"v_lshlrev_b32 v{A+8+2*k}, 16, v{src}")
                e(f"v_and_b32 v{A+8+2*k+1}, 0xffff0000, v{src}")
        if p > 0:
            for k in range(8):
                e(f"v_add_f32 v{A+k}, v{A+k}, v{A+8+k}")
    for k in range(4):
        e(f"v_cvt_pk_bf16_f32 v{4+k}, v{A+2*k}, v{A+2*k+1}")
    e("s_nop 1")
    e("v_permlane32_swap_b32 v4, v6")
    e("v_permlane32_swap_b32 v5, v7")
    e("buffer_store_dwordx4 v[4:7], v2, s[16:19], 0 offen")
    e("s_waitcnt vmcnt(0)")
    e("L_rd_done:")
    e("s_endpgm")

def desc(name, vgpr, accum, sgpr=(100 if DIAG else 64)):
    e(f".amdhsa_kernel {name}")
    e(f"  .amdhsa_next_free_vgpr {vgpr}")
    e(f"  .amdhsa_next_free_sgpr {sgpr}")
    e(f"  .amdhsa_accum_offset {accum}")
    e("  .amdhsa_group_segment_fixed_size 0")
    e("  .amdhsa_kernarg_size 104")
    e("  .amdhsa_user_sgpr_count 2")
    e("  .amdhsa_user_sgpr_kernarg_segment_ptr 1")
    e("  .amdhsa_system_sgpr_workgroup_id_x 1")
    e(".end_amdhsa_kernel")

gen_attn()
gen_reduce()
e('.section .rodata,"a"')
e(".p2align 6")
desc("attn_kernel", 256, 256)
e(".p2align 6")
desc("reduce_kernel", 96, 96)

with open(sys.argv[1] if len(sys.argv) > 1 else OUT, "w") as f:
    f.write(HEADER + "\n".join(L) + "\n")
```

```python
import sys, os

NAME = "concat_heads__mha_block_cached__mha_block_cached__near_ridge"
OUT = f"cdna_kernels/{NAME}.s"
DIAG = int(os.environ.get("DIAG", "0"))
NT = " nt" if int(os.environ.get("NT", "0")) else ""
STF = os.environ.get("STF", "")
STF = (" " + STF) if STF else ""
PF = int(os.environ.get("PF", "0"))
STAG = int(os.environ.get("STAG", "0"))

L = []
def e(s=""):
    L.append(s)

def stamp(idx):
    if not DIAG:
        return
    e(f"s_memrealtime s[{64+2*idx}:{65+2*idx}]")
    e("s_waitcnt lgkmcnt(0)")

def stamp_flush(n, base, wreg="s51"):
    if not DIAG:
        return
    lab = f"L_st_{len(L)}"
    e(f"s_cmp_lg_u32 {wreg}, 0")
    e(f"s_cbranch_scc1 {lab}")
    e("s_mov_b64 exec, 1")
    e("s_lshl_b32 s62, s2, 7")
    e(f"s_add_u32 s62, s62, {base}")
    e("v_mov_b32 v22, s62")
    for i in range(n):
        e(f"v_mov_b32 v20, s{64+2*i}")
        e(f"v_mov_b32 v21, s{65+2*i}")
        e(f"global_store_dwordx2 v22, v[20:21], s[38:39] offset:{8*i}")
        e("s_nop 1")
    e("s_waitcnt vmcnt(0)")
    e(f"{lab}:")

def vr(a, n):
    return f"v[{a}:{a+n-1}]"

HEADER = f"""; Kernarg layout for this problem (104 bytes, ptrs only, base s[0:1]):
; @launch kernel=attn_kernel grid=(256,1,1) block=(512,1,1) lds=163840
; @launch kernel=reduce_kernel grid=(576,1,1) block=(256,1,1) lds=0
.amdgcn_target "amdgcn-amd-amdhsa--gfx950"
.text
"""

class Cnt:
    def __init__(self, name):
        self.name = name
        self.ops = []
    def add(self, tag, n=1):
        self.ops += [tag] * n
        assert len(self.ops) <= (15 if self.name == "lgkmcnt" else 63), (self.name, len(self.ops))
    def wait(self, tag):
        idx = [i for i, t in enumerate(self.ops) if t == tag]
        if not idx:
            return
        last = max(idx)
        n = len(self.ops) - 1 - last
        e(f"s_waitcnt {self.name}({n})")
        self.ops = self.ops[last+1:]
    def wait_all(self):
        if self.ops:
            e(f"s_waitcnt {self.name}(0)")
        self.ops = []

VO = 24; SA = 88; SB = 120; VP = 152; FP = 168; VT = 200; VA = 212; VQ = 224
NFB = 8

def gen_attn():
    e(".globl attn_kernel")
    e(".p2align 8")
    e(".type attn_kernel,@function")
    e("attn_kernel:")
    e("s_cmp_ge_u32 s2, 256")
    e("s_cbranch_scc1 L_attn_done")
    e("s_load_dwordx2 s[38:39], s[0:1], 96")
    e("s_and_b32 s3, s2, 7")
    e("s_and_b32 s4, s3, 1")
    e("s_lshr_b32 s3, s3, 1")
    e("s_lshr_b32 s47, s2, 3")
    e("s_and_b32 s52, s47, 3")
    e("s_lshl_b32 s3, s3, 2")
    e("s_add_u32 s52, s52, s3")
    e("s_lshr_b32 s5, s47, 2")
    e("s_mul_i32 s3, s4, 40")
    e("s_add_u32 s0, s0, s3")
    e("s_addc_u32 s1, s1, 0")
    e("s_load_dwordx8 s[28:35], s[0:1], 0")
    e("s_load_dwordx2 s[36:37], s[0:1], 32")
    e("v_mov_b32 v221, v0")
    e("v_lshrrev_b32 v1, 6, v0")
    e("v_and_b32 v0, 63, v0")
    e("s_nop 0")
    e("v_readfirstlane_b32 s51, v1")
    e("s_nop 3")
    e("s_and_b32 s7, s51, 3")
    e("s_lshr_b32 s53, s51, 2")
    e("s_lshl_b32 s6, s52, 1")
    e("s_add_u32 s6, s6, s53")
    e("s_lshl_b32 s54, s53, 16")
    e("v_lshrrev_b32 v1, 4, v0")
    e("v_and_b32 v2, 15, v0")
    e("v_lshlrev_b32 v3, 2, v1")
    e("v_xor_b32 v3, v3, v2")
    for j in range(4):
        e(f"v_xor_b32 v23, {j}, v3")
        e(f"v_lshlrev_b32 v23, 4, v23")
        e(f"v_lshl_add_u32 v{4+j}, v1, 8, v23")
        e(f"v_lshl_add_u32 v{18+j}, v1, 13, v23")
    e("v_lshrrev_b32 v22, 3, v0")
    e("v_mul_u32_u24 v22, 1152, v22")
    e("v_and_b32 v23, 7, v0")
    e("v_xor_b32 v23, v23, v1")
    e("v_lshl_add_u32 v200, v23, 4, v22")
    e("v_xor_b32 v23, 4, v23")
    e("v_lshl_add_u32 v201, v23, 4, v22")
    e("v_and_b32 v23, 7, v0")
    e("v_bfe_u32 v9, v0, 4, 1")
    e("v_lshlrev_b32 v9, 2, v9")
    e("v_xor_b32 v23, v23, v9")
    e("v_lshl_add_u32 v222, v23, 4, v22")
    e("v_and_b32 v23, 31, v0")
    e("v_lshrrev_b32 v22, 5, v0")
    e("v_and_b32 v8, 3, v23")
    e("v_lshlrev_b32 v8, 2, v8")
    e("v_bfe_u32 v9, v23, 2, 2")
    e("v_or_b32 v8, v8, v9")
    e("v_xor_b32 v8, v8, v22")
    e("v_lshlrev_b32 v8, 4, v8")
    e("v_lshl_add_u32 v8, v23, 8, v8")
    e("v_add_u32 v8, s54, v8")
    e("v_bfe_u32 v9, v23, 1, 3")
    e("v_xor_b32 v9, v9, v22")
    e("v_lshlrev_b32 v9, 4, v9")
    e("v_lshl_add_u32 v9, v23, 7, v9")
    e("s_lshl_b32 s3, s7, 12")
    e("v_add_u32 v202, s3, v9")
    for s in range(1, 4):
        e(f"v_xor_b32 v{202+s}, {s<<5}, v202")
    for s in range(4):
        e(f"v_add_u32 v{208+s}, 114688, v{202+s}")
    e("v_lshrrev_b32 v10, 2, v2")
    e("v_and_b32 v11, 1, v1")
    e("v_lshlrev_b32 v11, 1, v11")
    e("v_bfe_u32 v12, v2, 1, 1")
    e("v_or_b32 v11, v11, v12")
    e("v_and_b32 v12, 1, v2")
    e("v_lshlrev_b32 v12, 3, v12")
    e("v_add_u32 v12, s54, v12")
    e("v_xor_b32 v13, v11, v22")
    e("v_lshl_add_u32 v13, v10, 2, v13")
    e("v_lshl_add_u32 v13, v13, 4, v12")
    e("v_lshl_add_u32 v14, v22, 2, v10")
    e("v_lshl_add_u32 v9, v14, 8, v13")
    e("v_lshrrev_b32 v13, 1, v10")
    e("v_lshl_add_u32 v13, v13, 2, v11")
    e("v_lshl_add_u32 v13, v13, 4, v12")
    e("v_lshl_add_u32 v14, v22, 3, v10")
    e("v_lshl_add_u32 v223, v14, 7, v13")
    e("v_lshlrev_b32 v14, 1, v22")
    e("v_xor_b32 v13, v11, v14")
    e("v_lshl_add_u32 v13, v10, 2, v13")
    e("v_lshl_add_u32 v13, v13, 4, v12")
    e("v_lshl_add_u32 v14, v22, 3, v10")
    e("v_lshl_add_u32 v3, v14, 8, v13")
    for db in range(4):
        for u in range(2):
            e(f"v_xor_b32 v{VA+2*db+u}, {(db<<6)^(u<<4)}, v3")
    for s in range(8):
        e(f"v_xor_b32 v{10+s}, {s<<5}, v8")
    e("s_waitcnt lgkmcnt(0)")
    e("s_mul_i32 s3, s5, 147456")
    e("s_add_u32 s20, s28, s3")
    e("s_addc_u32 s21, s29, 0")
    e("s_and_b32 s21, s21, 0xffff")
    e("s_mov_b32 s22, 0" if os.environ.get("NOXW") else "s_mov_b32 s22, 147456")
    e("s_mov_b32 s23, 0x20000")
    e("s_lshl_b32 s3, s5, 5")
    e("s_add_u32 s3, s3, s6")
    e("s_lshl_b32 s3, s3, 18")
    e("s_add_u32 s8, s30, s3")
    e("s_addc_u32 s9, s31, 0")
    e("s_and_b32 s9, s9, 0xffff")
    e("s_mov_b32 s10, 262144")
    e("s_mov_b32 s11, 0x20000")
    e("s_add_u32 s12, s32, s3")
    e("s_addc_u32 s13, s33, 0")
    e("s_and_b32 s13, s13, 0xffff")
    e("s_mov_b32 s14, 262144")
    e("s_mov_b32 s15, 0x20000")
    e("s_mov_b32 s16, s34")
    e("s_and_b32 s17, s35, 0xffff")
    e("s_mov_b32 s18, 0" if os.environ.get("NOXW") else "s_mov_b32 s18, 4718592")
    e("s_mov_b32 s19, 0x20000")
    e("s_mov_b32 s56, s36")
    e("s_and_b32 s57, s37, 0xffff")
    e("s_mov_b32 s58, 0" if os.environ.get("NOXW") else "s_mov_b32 s58, 4718592")
    e("s_mov_b32 s59, 0x20000")
    e("s_lshl_b32 s3, s4, 3")
    e("s_add_u32 s3, s3, s5")
    e("s_lshl_b32 s3, s3, 4")
    e("s_add_u32 s3, s3, s52")
    e("s_mul_i32 s3, s3, 147456")
    e("s_mul_i32 s47, s7, 36864")
    e("s_add_u32 s3, s3, s47")
    e("s_add_u32 s24, s38, s3")
    e("s_addc_u32 s25, s39, 0")
    e("s_and_b32 s25, s25, 0xffff")
    e("s_mov_b32 s26, 36864")
    e("s_mov_b32 s27, 0x20000")
    e("s_lshl_b32 s44, s7, 12")
    e("s_add_u32 s55, s44, s54")
    e("s_mov_b32 s46, 0x3e0293ee")
    e("s_lshl_b32 s48, s7, 17")
    e("s_lshl_b32 s3, s6, 8")
    e("s_add_u32 s48, s48, s3")
    e("s_mul_i32 s49, s51, 18432")
    e("s_lshl_b32 s40, s51, 11")
    e("s_lshl_b32 s3, s52, 8")
    e("s_lshl_b32 s47, s7, 5")
    e("s_add_u32 s3, s3, s47")
    e("s_mul_i32 s60, s3, 1152")
    e("s_lshl_b32 s3, s53, 9")
    e("s_add_u32 s60, s60, s3")

    lg = Cnt("lgkmcnt")

    dmaq = []
    SPREAD = int(os.environ.get("SPREAD", "1"))
    def push(chunk):
        if os.environ.get("NODMA") and ("s[20:23]" in chunk[-1] or "s[16:19]" in chunk[-1] or "s[56:59]" in chunk[-1]): return
        if SPREAD: dmaq.append(chunk)
        else:
            for x in chunk: e(x)
    def drain(n=None):
        k = 0
        while dmaq and (n is None or k < n):
            for x in dmaq.pop(0): e(x)
            k += 1
    vm = Cnt("vmcnt")
    XADDR = [131072, 147456, 49152, 114688]
    def slot_of(u):
        return (u % 3) if u < 9 else ((u - 9 + 3) & 3)
    def issue_x(T):
        for j in range(2):
            push([f"s_add_u32 s3, s40, {XADDR[T&3] + j*1024}", "s_mov_b32 m0, s3",
                  f"s_add_u32 s50, s49, {j*9216 + 128*T}", f"buffer_load_dwordx4 v{200+j}, s[20:23], s50 offen lds"])
        vm.add(f"x{T}", 2)
    def issue_static(u):
        slot = slot_of(u)
        if u < 9:
            for j in range(4):
                push([f"s_add_u32 s3, s55, {slot*16384 + j*1024}", "s_mov_b32 m0, s3",
                      f"s_add_u32 s50, s48, {(64*u + 4*j)*8192}", f"buffer_load_dwordx4 v{18+j}, s[16:19], s50 offen lds"])
        elif u <= 41:
            if u == 9: srd, i = 8, 0
            elif u & 1 == 0: srd, i = 8, (u - 10) // 2 + 1
            else: srd, i = 12, (u - 11) // 2
            for j in range(4):
                c = []
                if j == 0:
                    c = [f"s_add_u32 s3, s55, {slot*16384}", "s_mov_b32 m0, s3", f"s_add_u32 s50, s44, {i*16384}"]
                c += [f"buffer_load_dwordx4 v{4+j}, s[{srd}:{srd+3}], s50 offen offset:{j*1024}{NT} lds"]
                push(c)
        else:
            tau = u - 42
            for j in range(4):
                push([f"s_add_u32 s3, s55, {slot*16384 + j*1024}", "s_mov_b32 m0, s3",
                      f"s_add_u32 s50, s60, {j*9216 + (tau&1)*128*1152 + (tau>>1)*128}",
                      f"buffer_load_dwordx4 v222, s[56:59], s50 offen lds"])
        vm.add(f"u{u}", 4)
    def kv_of(v):
        if v == 0: return 8, 0
        if v & 1: return 8, (v - 1) // 2 + 1
        return 12, (v - 2) // 2
    PFQ = int(os.environ.get("PFQ", "0"))
    def touch_static(v):
        if not (PF or PFQ): return
        srd, i = kv_of(v)
        push([f"s_add_u32 s41, s44, {i*16384}", f"buffer_load_dword v23, v221, s[{srd}:{srd+3}], s41 offen"])
        vm.add("pf", 1)
    def touch_dyn(srd, sreg):
        if not PF: return
        push([f"s_add_u32 s41, {sreg}, {(PF//2 - 1)*16384}", f"buffer_load_dword v23, v221, s[{srd}:{srd+3}], s41 offen"])
    def issue_dyn(srd, sreg, slot):
        for j in range(4):
            c = []
            if j == 0:
                c = [f"s_add_u32 s3, s55, {slot*16384}", "s_mov_b32 m0, s3", "s_nop 0"]
            c += [f"buffer_load_dwordx4 v{4+j}, s[{srd}:{srd+3}], {sreg} offen offset:{j*1024}{NT} lds"]
            if j == 3:
                c += [f"s_add_u32 {sreg}, {sreg}, 16384"]
            push(c)
        touch_dyn(srd, sreg)

    def sync(issue, vmwait=("s_waitcnt vmcnt(11)" if PF else "s_waitcnt vmcnt(8)")):
        drain()
        lg.wait_all()
        if callable(vmwait): vmwait()
        else: e(vmwait)
        e("s_barrier")
        if issue: issue()

    fcount = [0]
    def run_stream(mf, fillers, events, LA=6, pre=0):
        n_mm = sum(1 for m in mf if m.get('mm'))
        nxt = pre
        fi = 0
        for n in range(n_mm):
            for ev in events.get(n, []):
                ev()
            while nxt < len(mf) and nxt <= n + LA and mf[nxt].get('gate', 0) <= n:
                m = mf[nxt]
                m['buf'] = FP + 4 * (fcount[0] % NFB); fcount[0] += 1
                m['tag'] = f"f{fcount[0]}"
                m['rd'](m['buf'], m['tag'])
                nxt += 1
            m = mf[n]
            lg.wait(m['tag'])
            m['mm'](m['buf'])
            drain(1)
            k = fillers.get(n, [])
            for f in k:
                e(f)
        for ev in events.get(n_mm, []):
            ev()
        while nxt < len(mf):
            m = mf[nxt]
            m['buf'] = FP + 4 * (fcount[0] % NFB); fcount[0] += 1
            m['tag'] = f"f{fcount[0]}"
            m['rd'](m['buf'], m['tag'])
            nxt += 1
        return [m for m in mf if not m.get('mm')]

    def w_frag(slot, s, db, T, xf):
        def rd(buf, tag):
            for u in range(2):
                e(f"ds_read_b64_tr_b16 {vr(buf+2*u,2)}, v{VA+2*db+u} offset:{slot*16384 + s*4096 + u*1024}")
            lg.add(tag, 2)
        def mm(buf):
            c = "0" if (T == 0 and s == 0) else vr(VO + 16*db, 16)
            e(f"v_mfma_f32_32x32x16_bf16 {vr(VO+16*db,16)}, {vr(buf,4)}, {vr(xf+4*s,4)}, {c}")
        return dict(rd=rd, mm=mm)
    def k_frag(slot, s, kb, S):
        def rd(buf, tag):
            e(f"ds_read_b128 {vr(buf,4)}, v{10+s} offset:{slot*16384 + kb*8192}")
            lg.add(tag, 1)
        def mm(buf):
            c = "0" if s == 0 else vr(S+16*kb, 16)
            e(f"v_mfma_f32_32x32x16_bf16 {vr(S+16*kb,16)}, {vr(buf,4)}, {vr(VQ+4*s,4)}, {c}")
        return dict(rd=rd, mm=mm)
    def v_frag(slot, kb, t, db):
        def rd(buf, tag):
            for u in range(2):
                e(f"ds_read_b64_tr_b16 {vr(buf+2*u,2)}, v{VA+2*db+u} offset:{slot*16384 + kb*8192+t*4096+u*2048}")
            lg.add(tag, 2)
        def mm(buf):
            p = VP + 4*(2*kb + t)
            e(f"v_mfma_f32_32x32x16_bf16 {vr(VO+16*db,16)}, {vr(buf,4)}, {vr(p,4)}, {vr(VO+16*db,16)}")
        return dict(rd=rd, mm=mm)
    def strip(m):
        m2 = dict(m); m2.pop('mm'); return m2
    def carry(pend, full):
        for a, b in zip(pend, full):
            b['buf'] = a['buf']; b['tag'] = a['tag']
        return len(pend)

    stamp(0)
    if STAG:
        e("s_cmp_eq_u32 s53, 0")
        e("s_cbranch_scc1 L_stag0")
        for _ in range(STAG):
            e("s_barrier")
        e("L_stag0:")
    WARM = int(os.environ.get("WARM", "1"))
    e("s_lshr_b32 s61, s2, 3")
    e("s_and_b32 s63, s2, 7")
    e("s_lshr_b32 s63, s63, 1")
    e("s_mov_b32 s32, s28")
    e("s_and_b32 s33, s29, 0xffff")
    e("s_mov_b32 s34, 1179648")
    e("s_mov_b32 s35, 0x20000")
    e("s_mul_i32 s3, s61, 288")
    e("v_add_u32 v220, s3, v221")
    e("v_lshlrev_b32 v220, 7, v220")
    e("v_cmp_gt_u32 vcc, 288, v221")
    e("v_mov_b32 v23, 0x40000000")
    e("s_nop 1")
    e("v_cndmask_b32 v220, v23, v220, vcc")
    e("s_mul_i32 s3, s61, 18")
    e("v_lshrrev_b32 v22, 4, v221")
    e("v_add_u32 v22, s3, v22")
    e("v_lshlrev_b32 v22, 13, v22")
    e("v_and_b32 v206, 15, v221")
    e("v_lshl_add_u32 v22, v206, 7, v22")
    e("s_lshl_b32 s3, s63, 11")
    e("v_add_u32 v22, s3, v22")
    e("v_cndmask_b32 v22, v23, v22, vcc")
    e("v_lshlrev_b32 v221, 6, v0")
    issue_x(0); issue_static(0); issue_x(1); issue_static(1); issue_x(2); issue_x(3)
    drain()
    if int(os.environ.get("WARMQ", "0")):
        e("buffer_load_dword v207, v220, s[32:35], 0 offen")
        e("buffer_load_dword v206, v22, s[16:19], 0 offen")
        vm.add("warm", 2)
    XFB = [SA, SA + 16]
    def xread(T):
        for s in range(4):
            a = XADDR[T&3]
            if a < 65536:
                e(f"ds_read_b128 {vr(XFB[T&1]+4*s,4)}, v{202+s} offset:{a}")
            else:
                e(f"ds_read_b128 {vr(XFB[T&1]+4*s,4)}, v{208+s} offset:{a-114688}")
        lg.add(f"x{T}", 4)
    def vmw(*tags):
        def f():
            idx = [max([i for i, t in enumerate(vm.ops) if t == tg], default=-1) for tg in tags]
            tg = tags[idx.index(max(idx))]
            if WARM: pass
            vm.wait(tg)
        return f
    sync(None, vmwait=vmw("x0"))
    xread(0)
    ntouch = PF + 4
    tq = list(range(ntouch))
    def touch_some(k):
        for _ in range(k):
            if tq: touch_static(tq.pop(0))
    per = -(-(ntouch - 2) // 8)
    def touch_q(k):
        if PFQ:
            k0 = int(os.environ.get("PFQ0", "1"))
            if k0 <= k < k0 + PFQ: touch_static(k - k0)
            return
        if not PF: return
        if k <= 7:
            touch_some(max(min(per, len(tq) - 2), 0))
        else:
            touch_some(1)
    sync(lambda: (issue_static(2), issue_x(4), touch_q(0)), vmwait=vmw("u0", "x1"))
    pend = []
    for T in range(9):
        mf = [w_frag(T % 3, s, db, T, XFB[T&1]) for s in range(4) for db in range(4)]
        pre = carry(pend, mf)
        events = {}
        if T < 8:
            events[4] = [lambda T=T: xread(T + 1)]
            def iss(T=T):
                if T + 3 <= 8: issue_static(T + 3)
                if T + 5 <= 8: issue_x(T + 5)
                if T + 1 == 7: (issue_static(9), issue_static(10))
                if T + 1 == 8: issue_static(11)
                touch_q(T + 1)
            tags = (f"u{T+1}", f"x{T+2}") if T + 2 <= 8 else (f"u{T+1}",)
            events[12] = [lambda T=T, iss=iss, tags=tags: sync(iss, vmwait=vmw(*tags))]
            nxtf = [strip(w_frag((T + 1) % 3, 0, db, T + 1, XFB[(T+1)&1])) for db in range(4)]
            for m in nxtf: m['gate'] = 12
            mf += nxtf
        else:
            events[12] = [lambda: sync(lambda: (issue_static(12), touch_q(9)), vmwait=vmw("u9"))]
        if False:
            events.setdefault(13, []).append(lambda T=T: e(f"s_memrealtime s[{64+2*(4+(0,1,2,4,6,8).index(T))}:{65+2*(4+(0,1,2,4,6,8).index(T))}]"))
        pend = run_stream(mf, {}, events, pre=pre, LA=int(os.environ.get('QLA','4')))
    drain()
    stamp(1)
    e("s_nop 15")
    for db in range(4):
        for t in range(2):
            F = VQ + 4 * (2*db + t)
            a = VO + 16*db + 8*t
            for j in range(4):
                e(f"v_cvt_pk_bf16_f32 v{F+j}, v{a+2*j}, v{a+2*j+1}")
    e("s_nop 1")
    for sp in range(8):
        F = VQ + 4*sp
        e(f"v_permlane32_swap_b32 v{F}, v{F+2}")
        e(f"v_permlane32_swap_b32 v{F+1}, v{F+3}")
    for k in range(8):
        db, u = k >> 1, k & 1
        e(f"v_xor_b32 v{VA+k}, {(db<<6)^(u<<5)}, v9")
    e("v_mov_b32 v18, 0xff800000")
    e("v_mov_b32 v21, 0xff800000")
    e("v_mov_b32 v19, 0")
    e("s_add_u32 s43, s44, 16384")
    e("s_add_u32 s42, s44, 49152")
    e("s_mov_b32 s45, 0")

    def max_ops(S):
        ops = []
        for c in range(4):
            b0 = S + 8*c
            ops.append(f"v_max3_f32 v{VT+c}, v{b0}, v{b0+1}, v{b0+2}")
        for c in range(4):
            b0 = S + 8*c
            ops.append(f"v_max3_f32 v{VT+c}, v{VT+c}, v{b0+3}, v{b0+4}")
        for c in range(4):
            b0 = S + 8*c
            ops.append(f"v_max3_f32 v{VT+c}, v{VT+c}, v{b0+5}, v{b0+6}")
        for c in range(4):
            b0 = S + 8*c
            ops.append(f"v_max_f32 v{VT+c}, v{VT+c}, v{b0+7}")
        ops.append(f"v_max3_f32 v{VT}, v{VT}, v{VT+1}, v{VT+2}")
        ops.append(f"v_max_f32 v{VT}, v{VT}, v{VT+3}")
        ops.append(f"v_mov_b32 v{VT+1}, v{VT}")
        ops.append("s_nop 1")
        ops.append(f"v_permlane32_swap_b32 v{VT}, v{VT+1}")
        ops.append(f"v_max_f32 v{VT}, v{VT}, v{VT+1}")
        ops.append(f"v_mul_f32 v{VT+4}, s46, v{VT}")
        ops.append(f"v_cmp_gt_f32 vcc, v{VT+4}, v21")
        return ops
    lab_ctr = [0]
    def rescale_check():
        lab = f"L_nors_{lab_ctr[0]}"; lab_ctr[0] += 1
        e(f"s_cbranch_vccz {lab}")
        e("s_nop 15")
        e(f"v_max_f32 v{VT+5}, v18, v{VT+4}")
        e(f"v_sub_f32 v{VT+6}, v18, v{VT+5}")
        e(f"v_exp_f32 v20, v{VT+6}")
        e(f"v_mov_b32 v18, v{VT+5}")
        e(f"v_add_f32 v21, 0x41000000, v{VT+5}")
        e(f"v_mul_f32 v19, v20, v19")
        for i in range(64):
            e(f"v_mul_f32 v{VO+i}, v20, v{VO+i}")
        e(f"{lab}:")
    def exp_ops(S, kb):
        b0 = S + 16*kb
        acc = [VT+8+2*kb, VT+9+2*kb]
        ops = []
        G = 4
        for gidx in range(6):
            if gidx < 4:
                for k in range(G):
                    i = b0 + G*gidx + k
                    ops.append(f"v_fma_f32 v{i}, v{i}, s46, -v18")
            if 1 <= gidx < 5:
                for k in range(G):
                    i = b0 + G*(gidx-1) + k
                    ops.append(f"v_exp_f32 v{i}, v{i}")
            if 2 <= gidx:
                g2 = gidx - 2
                i = b0 + G*g2
                if g2 == 0:
                    ops.append(f"v_add_f32 v{acc[0]}, v{i}, v{i+1}")
                    ops.append(f"v_add_f32 v{acc[1]}, v{i+2}, v{i+3}")
                else:
                    ops.append(f"v_add_f32 v{acc[0]}, v{acc[0]}, v{i}")
                    ops.append(f"v_add_f32 v{acc[1]}, v{acc[1]}, v{i+2}")
                    ops.append(f"v_add_f32 v{acc[0]}, v{acc[0]}, v{i+1}")
                    ops.append(f"v_add_f32 v{acc[1]}, v{acc[1]}, v{i+3}")
                p = VP + 8*kb + 2*g2
                ops.append(f"v_cvt_pk_bf16_f32 v{p}, v{i}, v{i+1}")
                ops.append(f"v_cvt_pk_bf16_f32 v{p+1}, v{i+2}, v{i+3}")
        ops.append(f"v_add_f32 v{acc[0]}, v{acc[0]}, v{acc[1]}")
        ops.append(f"v_add_f32 v19, v19, v{acc[0]}")
        return ops
    def spread(ops, positions):
        d = {}
        n = len(positions)
        per = len(ops) / n
        for k, op in enumerate(ops):
            p = positions[min(n-1, int(k / per))]
            d.setdefault(p, []).append(op)
        return d

    mf = [k_frag(3, s, kb, SA) for s in range(8) for kb in range(2)]
    zero_ops = [f"v_mov_b32 v{VO+i}, 0" for i in range(64)]
    e("s_nop 1")
    nxtf = [strip(k_frag(0, s, kb, SB)) for s in range(2) for kb in range(2)]
    for m in nxtf: m['gate'] = 12
    events = {12: [lambda: sync(lambda: issue_dyn(12, "s43", 3), vmwait=vmw("u10"))]}
    pend = run_stream(mf + nxtf, spread(zero_ops, list(range(16))), events)
    drain()
    e("s_nop 7")
    e("s_nop 7")
    for op in max_ops(SA):
        e(op)

    def iteration(par, pend, issue_mid, issue_end, doS=True, nextS=True, end_sync=True, wmid=None, wend=None):
        Scur, Snx = (SA, SB) if par == 0 else (SB, SA)
        kslot, vslot, k2slot = (0, 1, 2) if par == 0 else (2, 3, 0)
        rescale_check()
        ex0 = exp_ops(Scur, 0); ex1 = exp_ops(Scur, 1)
        mf = []
        events = {}
        fill = {}
        if doS:
            mf += [k_frag(kslot, s, kb, Snx) for s in range(8) for kb in range(2)]
            pre = carry(pend, mf)
            base = 16
            cut = 24
            fill.update(spread(ex0 + ex1[:cut], list(range(0, 15))))
            events[12] = [lambda: sync(issue_mid, **({'vmwait': wmid} if wmid else {}))]
            vgate = 12
        else:
            pre = 0
            base = 0
            cut = 24
            sync(issue_mid, **({'vmwait': wmid} if wmid else {}))
            vgate = 0
        vf = [v_frag(vslot, kb, t, db) for kb in range(2) for t in range(2) for db in range(4)]
        for m in vf: m['gate'] = vgate
        mf += vf
        if not doS:
            events[0] = [lambda: [e(op) for op in ex0 + ex1[:cut]] and None]
        for p, ops in spread(ex1[cut:], list(range(base, base + 7))).items():
            fill.setdefault(p, []).extend(ops)
        if nextS:
            for p, ops in spread(max_ops(Snx), list(range(base + 8, base + 16))).items():
                fill.setdefault(p, []).extend(ops)
        if end_sync:
            events[base + 12] = [lambda: sync(issue_end, **({'vmwait': wend} if wend else {}))]
        if doS and nextS and end_sync == True:
            nx = [strip(k_frag(k2slot, s, kb, Scur)) for s in range(2) for kb in range(2)]
            for m in nx: m['gate'] = base + 12
            mf += nx
        r = run_stream(mf, fill, events, pre=pre)
        drain()
        return r

    st0 = (len(lg.ops), fcount[0] % NFB, [ (m['buf']) for m in pend])
    e("L_loop:")
    pend = iteration(0, pend, lambda: issue_dyn(8, "s42", 0), lambda: issue_dyn(12, "s43", 1))
    pend = iteration(1, pend, lambda: issue_dyn(8, "s42", 2), lambda: issue_dyn(12, "s43", 3))
    st1 = (len(lg.ops), fcount[0] % NFB, [ (m['buf']) for m in pend])
    assert st0 == st1, (st0, st1)
    assert not dmaq
    e("s_add_u32 s45, s45, 1")
    e("s_cmp_lt_u32 s45, 7")
    e("s_cbranch_scc1 L_loop")
    pfo = ["pf"] if PF else []
    vm.ops = ["v14"]*4 + pfo + ["k16"]*4 + pfo + ["v15"]*4 + pfo
    pend = iteration(0, pend, lambda: issue_static(42), lambda: issue_static(43), end_sync="nok", wmid=vmw("v14"), wend=vmw("k16"))
    drain()
    if WARM:
        e("s_cmp_ge_u32 s51, 5")
        e("s_cbranch_scc1 L_nowarm2")
        e("s_mul_i32 s3, s63, 1179648")
        e("buffer_load_dword v220, v220, s[56:59], s3 offen")
        e("L_nowarm2:")
    pend = iteration(1, pend, lambda: issue_static(44), None, doS=False, nextS=False, end_sync=False, wmid=vmw("v15"))
    drain()
    stamp(2)
    e(f"v_mov_b32 v{VT+1}, v19")
    e("s_nop 1")
    e(f"v_permlane32_swap_b32 v19, v{VT+1}")
    e(f"v_add_f32 v19, v19, v{VT+1}")
    e("v_rcp_f32 v20, v19")
    e("v_lshlrev_b32 v1, 4, v0")
    XS = slot_of(41)*16384
    e("s_lshl_b32 s3, s51, 12")
    e("s_add_u32 s3, s3, 131072")
    e("v_add_u32 v2, s3, v1")
    e(f"s_add_u32 s3, s55, {XS}")
    e("v_add_u32 v3, s3, v1")
    e("s_nop 7")
    for i in range(64):
        e(f"v_mul_f32 v{VO+i}, v20, v{VO+i}")
    OWN = SA
    for db in range(4):
        for t in range(2):
            F = OWN + 4 * (2*db + t)
            a = VO + 16*db + 8*t
            for j in range(4):
                e(f"v_cvt_pk_bf16_f32 v{F+j}, v{a+2*j}, v{a+2*j+1}")
    e("s_nop 1")
    for sp in range(8):
        F = OWN + 4*sp
        e(f"v_permlane32_swap_b32 v{F}, v{F+2}")
        e(f"v_permlane32_swap_b32 v{F+1}, v{F+3}")
    if STAG:
        e("s_cmp_eq_u32 s53, 1")
        e("s_cbranch_scc1 L_stag1")
        for _ in range(STAG):
            e("s_barrier")
        e("L_stag1:")
    e("s_barrier")
    for k in range(4):
        e(f"ds_write_b128 v2, {vr(OWN+4*k,4)} offset:{k*1024}")
        e(f"ds_write_b128 v3, {vr(OWN+16+4*k,4)} offset:{k*1024}")
    e("s_add_u32 s3, s44, 131072")
    e("v_add_u32 v2, s3, v1")
    e(f"s_add_u32 s3, s44, {XS}")
    e("v_add_u32 v3, s3, v1")
    e("v_add_u32 v21, 65536, v3")
    e("s_waitcnt lgkmcnt(0)")
    e("s_barrier")
    H = [VQ, SB]
    for hh in range(2):
        for k in range(4):
            e(f"ds_read_b128 {vr(H[hh]+4*k,4)}, v2 offset:{hh*16384 + k*1024}")
        for k in range(4):
            e(f"ds_read_b128 {vr(H[hh]+16+4*k,4)}, v{3 if hh == 0 else 21} offset:{k*1024}")
        e("s_waitcnt lgkmcnt(0)")
    e("v_xor_b32 v11, 64, v223")
    e("v_mov_b32 v10, v223")
    PK = SA
    def o_frag(slot, sp, nb, hh, acc):
        def rd(buf, tag):
            for u in range(2):
                e(f"ds_read_b64_tr_b16 {vr(buf+2*u,2)}, v{10+nb} offset:{slot*16384 + sp*2048 + u*512}")
            lg.add(tag, 2)
        def mm(buf):
            c = "0" if (hh == 0 and sp == 0) else vr(acc + 16*nb, 16)
            e(f"v_mfma_f32_32x32x16_bf16 {vr(acc+16*nb,16)}, {vr(buf,4)}, {vr(H[hh]+4*sp,4)}, {c}")
        return dict(rd=rd, mm=mm)
    def store_ops(ntl):
        acc = VO + 32 * (ntl & 1)
        def f():
            drain()
            for nb in range(2):
                for j in range(8):
                    e(f"v_cvt_pk_bf16_f32 v{PK+8*nb+j}, v{acc+16*nb+2*j}, v{acc+16*nb+2*j+1}")
            e(f"s_lshl_b32 s61, s53, 14")
            e(f"s_add_u32 s61, s61, {ntl*4096}")
            for nb in range(2):
                if (ntl == 4 and nb == 1) or (ntl == 0 and nb == 0):
                    cond = 0 if (ntl == 4) else 1
                    e(f"s_cmp_eq_u32 s53, {cond}")
                    e(f"s_cselect_b32 s47, 0x10000000, s61")
                    sreg = "s47"
                else:
                    sreg = "s61"
                for tt in range(2):
                    e(f"buffer_store_dwordx4 {vr(PK+8*nb+4*tt,4)}, v1, s[24:27], {sreg} offen offset:{nb*2048 + tt*1024}{STF}")
                    vm.add("st", 1)
        return f
    def osync(tau):
        def iss():
            if tau + 3 < 10:
                issue_static(42 + tau + 3)
        sync(iss, vmwait=lambda: vm.wait(f"u{42+tau}"))
    if DIAG and os.environ.get("TAILST"): stamp(4)
    osync(0)
    if DIAG and os.environ.get("TAILST"): stamp(5)
    pend = []
    for tau in range(10):
        slot = slot_of(42 + tau)
        ntl = tau >> 1; hh = tau & 1
        acc = VO + 32 * (ntl & 1)
        mf = [o_frag(slot, sp, nb, hh, acc) for sp in range(8) for nb in range(2)]
        pre = carry(pend, mf)
        events = {}
        if hh == 0 and ntl > 0:
            events[6] = [store_ops(ntl - 1)]
        if tau < 9:
            events[12] = [lambda tau=tau: osync(tau + 1)]
            nx = [strip(o_frag(slot_of(43 + tau), sp, nb, 0, 0)) for sp in range(2) for nb in range(2)]
            for m in nx: m['gate'] = 12
            mf += nx
        if DIAG and os.environ.get("TAILST") and tau in (2, 5, 8):
            events.setdefault(13, []).append(lambda tau=tau: e(f"s_memrealtime s[{64+2*(6+(2,5,8).index(tau))}:{65+2*(6+(2,5,8).index(tau))}]"))
        pend = run_stream(mf, {}, events, pre=pre)
    e("s_nop 15")
    store_ops(4)()
    if DIAG and os.environ.get("TAILST"): stamp(9)
    e("s_waitcnt vmcnt(0)")
    stamp(3)
    stamp_flush(4, 67108864)
    e("L_attn_done:")
    e("s_endpgm")

def gen_reduce():
    e(".globl reduce_kernel")
    e(".p2align 8")
    e(".type reduce_kernel,@function")
    e("reduce_kernel:")
    e("s_cmp_ge_u32 s2, 576")
    e("s_cbranch_scc1 L_rd_done")
    e("s_load_dwordx2 s[38:39], s[0:1], 96")
    e("s_load_dwordx2 s[36:37], s[0:1], 80")
    e("v_lshrrev_b32 v1, 6, v0")
    e("v_and_b32 v0, 63, v0")
    e("s_nop 0")
    e("v_readfirstlane_b32 s7, v1")
    e("s_nop 3")
    e("s_lshl_b32 s3, s2, 2")
    e("s_add_u32 s3, s3, s7")
    e("s_mul_i32 s4, s3, 58255")
    e("s_lshr_b32 s4, s4, 23")
    e("s_mul_i32 s5, s4, 144")
    e("s_sub_u32 s5, s3, s5")
    e("s_mul_i32 s6, s5, 1821")
    e("s_lshr_b32 s6, s6, 16")
    e("s_mul_i32 s8, s6, 36")
    e("s_sub_u32 s8, s5, s8")
    e("v_lshlrev_b32 v1, 4, v0")
    e("s_waitcnt lgkmcnt(0)")
    e("s_mul_i32 s9, s4, 2359296")
    e("s_lshl_b32 s10, s5, 10")
    e("s_add_u32 s9, s9, s10")
    e("s_add_u32 s12, s38, s9")
    e("s_addc_u32 s13, s39, 0")
    e("s_and_b32 s13, s13, 0xffff")
    e("s_mov_b32 s14, 2359296")
    e("s_mov_b32 s15, 0x20000")
    e("s_mov_b32 s16, s36")
    e("s_and_b32 s17, s37, 0xffff")
    e("s_mov_b32 s18, 2359296")
    e("s_mov_b32 s19, 0x20000")
    for p in range(16):
        e(f"s_mov_b32 s20, {p*147456}")
        e(f"buffer_load_dwordx4 {vr(8+4*p,4)}, v1, s[12:15], s20 offen")
    e("s_and_b32 s9, s4, 7")
    e("s_lshr_b32 s10, s4, 3")
    e("s_lshl_b32 s9, s9, 7")
    e("s_lshl_b32 s11, s6, 5")
    e("s_add_u32 s9, s9, s11")
    e("v_and_b32 v2, 31, v0")
    e("v_add_u32 v2, s9, v2")
    e("v_mul_u32_u24 v2, 2304, v2")
    e("v_lshrrev_b32 v3, 5, v0")
    e("v_lshl_add_u32 v2, v3, 4, v2")
    e("s_mul_i32 s10, s10, 1152")
    e("s_lshl_b32 s11, s8, 5")
    e("s_add_u32 s10, s10, s11")
    e("v_add_u32 v2, s10, v2")
    A = 80
    for p in range(16):
        e(f"s_waitcnt vmcnt({15-p})")
        for k in range(4):
            src = 8 + 4*p + k
            if p == 0:
                e(f"v_lshlrev_b32 v{A+2*k}, 16, v{src}")
                e(f"v_and_b32 v{A+2*k+1}, 0xffff0000, v{src}")
            else:
                e(f"v_lshlrev_b32 v{A+8+2*k}, 16, v{src}")
                e(f"v_and_b32 v{A+8+2*k+1}, 0xffff0000, v{src}")
        if p > 0:
            for k in range(8):
                e(f"v_add_f32 v{A+k}, v{A+k}, v{A+8+k}")
    for k in range(4):
        e(f"v_cvt_pk_bf16_f32 v{4+k}, v{A+2*k}, v{A+2*k+1}")
    e("s_nop 1")
    e("v_permlane32_swap_b32 v4, v6")
    e("v_permlane32_swap_b32 v5, v7")
    e("buffer_store_dwordx4 v[4:7], v2, s[16:19], 0 offen")
    e("s_waitcnt vmcnt(0)")
    e("L_rd_done:")
    e("s_endpgm")

def desc(name, vgpr, accum, sgpr=(100 if DIAG else 64)):
    e(f".amdhsa_kernel {name}")
    e(f"  .amdhsa_next_free_vgpr {vgpr}")
    e(f"  .amdhsa_next_free_sgpr {sgpr}")
    e(f"  .amdhsa_accum_offset {accum}")
    e("  .amdhsa_group_segment_fixed_size 0")
    e("  .amdhsa_kernarg_size 104")
    e("  .amdhsa_user_sgpr_count 2")
    e("  .amdhsa_user_sgpr_kernarg_segment_ptr 1")
    e("  .amdhsa_system_sgpr_workgroup_id_x 1")
    e(".end_amdhsa_kernel")

gen_attn()
gen_reduce()
e('.section .rodata,"a"')
e(".p2align 6")
desc("attn_kernel", 256, 256)
e(".p2align 6")
desc("reduce_kernel", 96, 96)

with open(sys.argv[1] if len(sys.argv) > 1 else OUT, "w") as f:
    f.write(HEADER + "\n".join(L) + "\n")
```

```python
import sys, os

NAME = "concat_heads__mha_block_cached__mha_block_cached__near_ridge"
OUT = f"cdna_kernels/{NAME}.s"
DIAG = int(os.environ.get("DIAG", "0"))
NT = " nt" if int(os.environ.get("NT", "0")) else ""
STF = os.environ.get("STF", "")
STF = (" " + STF) if STF else ""
PF = int(os.environ.get("PF", "0"))
STAG = int(os.environ.get("STAG", "0"))

L = []
def e(s=""):
    L.append(s)

def stamp(idx):
    if not DIAG:
        return
    e(f"s_memrealtime s[{64+2*idx}:{65+2*idx}]")
    e("s_waitcnt lgkmcnt(0)")

def stamp_flush(n, base, wreg="s51"):
    if not DIAG:
        return
    if os.environ.get("DBG"):
        lab = f"L_st_{len(L)}"
        e(f"s_cmp_lg_u32 {wreg}, 0")
        e(f"s_cbranch_scc1 {lab}")
        e("s_mov_b64 exec, 1")
        for i in range(1, n):
            e(f"s_sub_u32 s62, s{64+2*i}, s64")
            e("v_mov_b32 v20, s62")
            e(f"v_mov_b32 v22, {4*i}")
            e("global_atomic_umax v22, v20, s[94:95]")
            e(f"v_mov_b32 v22, {4*(i+4)}")
            e("global_atomic_add v22, v20, s[94:95]")
            e("s_nop 1")
        e("s_waitcnt vmcnt(0)")
        e(f"{lab}:")
        return
    lab = f"L_st_{len(L)}"
    e(f"s_cmp_lg_u32 {wreg}, 0")
    e(f"s_cbranch_scc1 {lab}")
    e("s_mov_b64 exec, 1")
    e("s_lshl_b32 s62, s2, 7")
    e(f"s_add_u32 s62, s62, {base}")
    e("v_mov_b32 v22, s62")
    for i in range(n):
        e(f"v_mov_b32 v20, s{64+2*i}")
        e(f"v_mov_b32 v21, s{65+2*i}")
        e(f"global_store_dwordx2 v22, v[20:21], s[38:39] offset:{8*i}")
        e("s_nop 1")
    e("s_waitcnt vmcnt(0)")
    e(f"{lab}:")

def vr(a, n):
    return f"v[{a}:{a+n-1}]"

HEADER = f"""; Kernarg layout for this problem (104 bytes, ptrs only, base s[0:1]):
; @launch kernel=attn_kernel grid=(256,1,1) block=(512,1,1) lds=163840
; @launch kernel=reduce_kernel grid=(576,1,1) block=(256,1,1) lds=0
.amdgcn_target "amdgcn-amd-amdhsa--gfx950"
.text
"""

class Cnt:
    def __init__(self, name):
        self.name = name
        self.ops = []
    def add(self, tag, n=1):
        self.ops += [tag] * n
        assert len(self.ops) <= (15 if self.name == "lgkmcnt" else 63), (self.name, len(self.ops))
    def wait(self, tag):
        idx = [i for i, t in enumerate(self.ops) if t == tag]
        if not idx:
            return
        last = max(idx)
        n = len(self.ops) - 1 - last
        e(f"s_waitcnt {self.name}({n})")
        self.ops = self.ops[last+1:]
    def wait_all(self):
        if self.ops:
            e(f"s_waitcnt {self.name}(0)")
        self.ops = []

VO = 24; SA = 88; SB = 120; VP = 152; FP = 168; VT = 200; VA = 212; VQ = 224
NFB = 8

def gen_attn():
    e(".globl attn_kernel")
    e(".p2align 8")
    e(".type attn_kernel,@function")
    e("attn_kernel:")
    e("s_cmp_ge_u32 s2, 256")
    e("s_cbranch_scc1 L_attn_done")
    e("s_load_dwordx2 s[38:39], s[0:1], 96")
    if DIAG: e("s_load_dwordx2 s[94:95], s[0:1], 88")
    e("s_and_b32 s3, s2, 7")
    e("s_and_b32 s4, s3, 1")
    e("s_lshr_b32 s3, s3, 1")
    e("s_lshr_b32 s47, s2, 3")
    e("s_and_b32 s52, s47, 3")
    e("s_lshl_b32 s3, s3, 2")
    e("s_add_u32 s52, s52, s3")
    e("s_lshr_b32 s5, s47, 2")
    e("s_mul_i32 s3, s4, 40")
    e("s_add_u32 s0, s0, s3")
    e("s_addc_u32 s1, s1, 0")
    e("s_load_dwordx8 s[28:35], s[0:1], 0")
    e("s_load_dwordx2 s[36:37], s[0:1], 32")
    e("v_mov_b32 v221, v0")
    e("v_lshrrev_b32 v1, 6, v0")
    e("v_and_b32 v0, 63, v0")
    e("s_nop 0")
    e("v_readfirstlane_b32 s51, v1")
    e("s_nop 3")
    e("s_and_b32 s7, s51, 3")
    e("s_lshr_b32 s53, s51, 2")
    e("s_lshl_b32 s6, s52, 1")
    e("s_add_u32 s6, s6, s53")
    e("s_lshl_b32 s54, s53, 16")
    e("v_lshrrev_b32 v1, 4, v0")
    e("v_and_b32 v2, 15, v0")
    e("v_lshlrev_b32 v3, 2, v1")
    e("v_xor_b32 v3, v3, v2")
    for j in range(4):
        e(f"v_xor_b32 v23, {j}, v3")
        e(f"v_lshlrev_b32 v23, 4, v23")
        e(f"v_lshl_add_u32 v{4+j}, v1, 8, v23")
        e(f"v_lshl_add_u32 v{18+j}, v1, 13, v23")
    e("v_lshrrev_b32 v22, 3, v0")
    e("v_mul_u32_u24 v22, 1152, v22")
    e("v_and_b32 v23, 7, v0")
    e("v_xor_b32 v23, v23, v1")
    e("v_lshl_add_u32 v200, v23, 4, v22")
    e("v_xor_b32 v23, 4, v23")
    e("v_lshl_add_u32 v201, v23, 4, v22")
    e("v_and_b32 v23, 7, v0")
    e("v_bfe_u32 v9, v0, 4, 1")
    e("v_lshlrev_b32 v9, 2, v9")
    e("v_xor_b32 v23, v23, v9")
    e("v_lshl_add_u32 v222, v23, 4, v22")
    e("v_and_b32 v23, 31, v0")
    e("v_lshrrev_b32 v22, 5, v0")
    e("v_and_b32 v8, 3, v23")
    e("v_lshlrev_b32 v8, 2, v8")
    e("v_bfe_u32 v9, v23, 2, 2")
    e("v_or_b32 v8, v8, v9")
    e("v_xor_b32 v8, v8, v22")
    e("v_lshlrev_b32 v8, 4, v8")
    e("v_lshl_add_u32 v8, v23, 8, v8")
    e("v_add_u32 v8, s54, v8")
    e("v_bfe_u32 v9, v23, 1, 3")
    e("v_xor_b32 v9, v9, v22")
    e("v_lshlrev_b32 v9, 4, v9")
    e("v_lshl_add_u32 v9, v23, 7, v9")
    e("s_lshl_b32 s3, s7, 12")
    e("v_add_u32 v202, s3, v9")
    for s in range(1, 4):
        e(f"v_xor_b32 v{202+s}, {s<<5}, v202")
    for s in range(4):
        e(f"v_add_u32 v{208+s}, 114688, v{202+s}")
    e("v_lshrrev_b32 v10, 2, v2")
    e("v_and_b32 v11, 1, v1")
    e("v_lshlrev_b32 v11, 1, v11")
    e("v_bfe_u32 v12, v2, 1, 1")
    e("v_or_b32 v11, v11, v12")
    e("v_and_b32 v12, 1, v2")
    e("v_lshlrev_b32 v12, 3, v12")
    e("v_add_u32 v12, s54, v12")
    e("v_xor_b32 v13, v11, v22")
    e("v_lshl_add_u32 v13, v10, 2, v13")
    e("v_lshl_add_u32 v13, v13, 4, v12")
    e("v_lshl_add_u32 v14, v22, 2, v10")
    e("v_lshl_add_u32 v9, v14, 8, v13")
    e("v_lshrrev_b32 v13, 1, v10")
    e("v_lshl_add_u32 v13, v13, 2, v11")
    e("v_lshl_add_u32 v13, v13, 4, v12")
    e("v_lshl_add_u32 v14, v22, 3, v10")
    e("v_lshl_add_u32 v223, v14, 7, v13")
    e("v_lshlrev_b32 v14, 1, v22")
    e("v_xor_b32 v13, v11, v14")
    e("v_lshl_add_u32 v13, v10, 2, v13")
    e("v_lshl_add_u32 v13, v13, 4, v12")
    e("v_lshl_add_u32 v14, v22, 3, v10")
    e("v_lshl_add_u32 v3, v14, 8, v13")
    for db in range(4):
        for u in range(2):
            e(f"v_xor_b32 v{VA+2*db+u}, {(db<<6)^(u<<4)}, v3")
    for s in range(8):
        e(f"v_xor_b32 v{10+s}, {s<<5}, v8")
    e("s_waitcnt lgkmcnt(0)")
    e("s_mul_i32 s3, s5, 147456")
    e("s_add_u32 s20, s28, s3")
    e("s_addc_u32 s21, s29, 0")
    e("s_and_b32 s21, s21, 0xffff")
    e("s_mov_b32 s22, 0" if os.environ.get("NOXW") else "s_mov_b32 s22, 147456")
    e("s_mov_b32 s23, 0x20000")
    e("s_lshl_b32 s3, s5, 5")
    e("s_add_u32 s3, s3, s6")
    e("s_lshl_b32 s3, s3, 18")
    e("s_add_u32 s8, s30, s3")
    e("s_addc_u32 s9, s31, 0")
    e("s_and_b32 s9, s9, 0xffff")
    e("s_mov_b32 s10, 262144")
    e("s_mov_b32 s11, 0x20000")
    e("s_add_u32 s12, s32, s3")
    e("s_addc_u32 s13, s33, 0")
    e("s_and_b32 s13, s13, 0xffff")
    e("s_mov_b32 s14, 262144")
    e("s_mov_b32 s15, 0x20000")
    e("s_mov_b32 s16, s34")
    e("s_and_b32 s17, s35, 0xffff")
    e("s_mov_b32 s18, 0" if os.environ.get("NOXW") else "s_mov_b32 s18, 4718592")
    e("s_mov_b32 s19, 0x20000")
    e("s_mov_b32 s56, s36")
    e("s_and_b32 s57, s37, 0xffff")
    e("s_mov_b32 s58, 0" if os.environ.get("NOXW") else "s_mov_b32 s58, 4718592")
    e("s_mov_b32 s59, 0x20000")
    e("s_lshl_b32 s3, s4, 3")
    e("s_add_u32 s3, s3, s5")
    e("s_lshl_b32 s3, s3, 4")
    e("s_add_u32 s3, s3, s52")
    e("s_mul_i32 s3, s3, 147456")
    e("s_mul_i32 s47, s7, 36864")
    e("s_add_u32 s3, s3, s47")
    e("s_add_u32 s24, s38, s3")
    e("s_addc_u32 s25, s39, 0")
    e("s_and_b32 s25, s25, 0xffff")
    e("s_mov_b32 s26, 36864")
    e("s_mov_b32 s27, 0x20000")
    e("s_lshl_b32 s44, s7, 12")
    e("s_add_u32 s55, s44, s54")
    e("s_mov_b32 s46, 0x3e0293ee")
    e("s_lshl_b32 s48, s7, 17")
    e("s_lshl_b32 s3, s6, 8")
    e("s_add_u32 s48, s48, s3")
    e("s_mul_i32 s49, s51, 18432")
    e("s_lshl_b32 s40, s51, 11")
    e("s_lshl_b32 s3, s52, 8")
    e("s_lshl_b32 s47, s7, 5")
    e("s_add_u32 s3, s3, s47")
    e("s_mul_i32 s60, s3, 1152")
    e("s_lshl_b32 s3, s53, 9")
    e("s_add_u32 s60, s60, s3")

    lg = Cnt("lgkmcnt")

    dmaq = []
    SPREAD = int(os.environ.get("SPREAD", "1"))
    def push(chunk):
        if os.environ.get("NODMA") and ("s[20:23]" in chunk[-1] or "s[16:19]" in chunk[-1] or "s[56:59]" in chunk[-1]): return
        if SPREAD: dmaq.append(chunk)
        else:
            for x in chunk: e(x)
    def drain(n=None):
        k = 0
        while dmaq and (n is None or k < n):
            for x in dmaq.pop(0): e(x)
            k += 1
    vm = Cnt("vmcnt")
    XADDR = [131072, 147456, 49152, 114688]
    def slot_of(u):
        return (u % 3) if u < 9 else ((u - 9 + 3) & 3)
    def issue_x(T):
        for j in range(2):
            push([f"s_add_u32 s3, s40, {XADDR[T&3] + j*1024}", "s_mov_b32 m0, s3",
                  f"s_add_u32 s50, s49, {j*9216 + 128*T}", f"buffer_load_dwordx4 v{200+j}, s[20:23], s50 offen lds"])
        vm.add(f"x{T}", 2)
    def issue_static(u):
        slot = slot_of(u)
        if u < 9:
            for j in range(4):
                push([f"s_add_u32 s3, s55, {slot*16384 + j*1024}", "s_mov_b32 m0, s3",
                      f"s_add_u32 s50, s48, {(64*u + 4*j)*8192}", f"buffer_load_dwordx4 v{18+j}, s[16:19], s50 offen lds"])
        elif u <= 41:
            if u == 9: srd, i = 8, 0
            elif u & 1 == 0: srd, i = 8, (u - 10) // 2 + 1
            else: srd, i = 12, (u - 11) // 2
            for j in range(4):
                c = []
                if j == 0:
                    c = [f"s_add_u32 s3, s55, {slot*16384}", "s_mov_b32 m0, s3", f"s_add_u32 s50, s44, {i*16384}"]
                c += [f"buffer_load_dwordx4 v{4+j}, s[{srd}:{srd+3}], s50 offen offset:{j*1024}{NT} lds"]
                push(c)
        else:
            tau = u - 42
            for j in range(4):
                push([f"s_add_u32 s3, s55, {slot*16384 + j*1024}", "s_mov_b32 m0, s3",
                      f"s_add_u32 s50, s60, {j*9216 + (tau&1)*128*1152 + (tau>>1)*128}",
                      f"buffer_load_dwordx4 v222, s[56:59], s50 offen lds"])
        vm.add(f"u{u}", 4)
    def kv_of(v):
        if v == 0: return 8, 0
        if v & 1: return 8, (v - 1) // 2 + 1
        return 12, (v - 2) // 2
    PFQ = int(os.environ.get("PFQ", "0"))
    def touch_static(v):
        if not (PF or PFQ): return
        srd, i = kv_of(v)
        push([f"s_add_u32 s41, s44, {i*16384}", f"buffer_load_dword v23, v221, s[{srd}:{srd+3}], s41 offen"])
        vm.add("pf", 1)
    def touch_dyn(srd, sreg):
        if not PF: return
        push([f"s_add_u32 s41, {sreg}, {(PF//2 - 1)*16384}", f"buffer_load_dword v23, v221, s[{srd}:{srd+3}], s41 offen"])
    def issue_dyn(srd, sreg, slot):
        for j in range(4):
            c = []
            if j == 0:
                c = [f"s_add_u32 s3, s55, {slot*16384}", "s_mov_b32 m0, s3", "s_nop 0"]
            c += [f"buffer_load_dwordx4 v{4+j}, s[{srd}:{srd+3}], {sreg} offen offset:{j*1024}{NT} lds"]
            if j == 3:
                c += [f"s_add_u32 {sreg}, {sreg}, 16384"]
            push(c)
        touch_dyn(srd, sreg)

    def sync(issue, vmwait=("s_waitcnt vmcnt(11)" if PF else "s_waitcnt vmcnt(8)")):
        drain()
        lg.wait_all()
        if callable(vmwait): vmwait()
        else: e(vmwait)
        e("s_barrier")
        if issue: issue()

    fcount = [0]
    def run_stream(mf, fillers, events, LA=6, pre=0):
        n_mm = sum(1 for m in mf if m.get('mm'))
        nxt = pre
        fi = 0
        for n in range(n_mm):
            for ev in events.get(n, []):
                ev()
            while nxt < len(mf) and nxt <= n + LA and mf[nxt].get('gate', 0) <= n:
                m = mf[nxt]
                m['buf'] = FP + 4 * (fcount[0] % NFB); fcount[0] += 1
                m['tag'] = f"f{fcount[0]}"
                m['rd'](m['buf'], m['tag'])
                nxt += 1
            m = mf[n]
            lg.wait(m['tag'])
            m['mm'](m['buf'])
            drain(1)
            k = fillers.get(n, [])
            for f in k:
                e(f)
        for ev in events.get(n_mm, []):
            ev()
        while nxt < len(mf):
            m = mf[nxt]
            m['buf'] = FP + 4 * (fcount[0] % NFB); fcount[0] += 1
            m['tag'] = f"f{fcount[0]}"
            m['rd'](m['buf'], m['tag'])
            nxt += 1
        return [m for m in mf if not m.get('mm')]

    def w_frag(slot, s, db, T, xf):
        def rd(buf, tag):
            for u in range(2):
                e(f"ds_read_b64_tr_b16 {vr(buf+2*u,2)}, v{VA+2*db+u} offset:{slot*16384 + s*4096 + u*1024}")
            lg.add(tag, 2)
        def mm(buf):
            c = "0" if (T == 0 and s == 0) else vr(VO + 16*db, 16)
            e(f"v_mfma_f32_32x32x16_bf16 {vr(VO+16*db,16)}, {vr(buf,4)}, {vr(xf+4*s,4)}, {c}")
        return dict(rd=rd, mm=mm)
    def k_frag(slot, s, kb, S):
        def rd(buf, tag):
            e(f"ds_read_b128 {vr(buf,4)}, v{10+s} offset:{slot*16384 + kb*8192}")
            lg.add(tag, 1)
        def mm(buf):
            c = "0" if s == 0 else vr(S+16*kb, 16)
            e(f"v_mfma_f32_32x32x16_bf16 {vr(S+16*kb,16)}, {vr(buf,4)}, {vr(VQ+4*s,4)}, {c}")
        return dict(rd=rd, mm=mm)
    def v_frag(slot, kb, t, db):
        def rd(buf, tag):
            for u in range(2):
                e(f"ds_read_b64_tr_b16 {vr(buf+2*u,2)}, v{VA+2*db+u} offset:{slot*16384 + kb*8192+t*4096+u*2048}")
            lg.add(tag, 2)
        def mm(buf):
            p = VP + 4*(2*kb + t)
            e(f"v_mfma_f32_32x32x16_bf16 {vr(VO+16*db,16)}, {vr(buf,4)}, {vr(p,4)}, {vr(VO+16*db,16)}")
        return dict(rd=rd, mm=mm)
    def strip(m):
        m2 = dict(m); m2.pop('mm'); return m2
    def carry(pend, full):
        for a, b in zip(pend, full):
            b['buf'] = a['buf']; b['tag'] = a['tag']
        return len(pend)

    stamp(0)
    if STAG:
        e("s_cmp_eq_u32 s53, 0")
        e("s_cbranch_scc1 L_stag0")
        for _ in range(STAG):
            e("s_barrier")
        e("L_stag0:")
    WARM = int(os.environ.get("WARM", "1"))
    e("s_lshr_b32 s61, s2, 3")
    e("s_and_b32 s63, s2, 7")
    e("s_lshr_b32 s63, s63, 1")
    e("s_mov_b32 s32, s28")
    e("s_and_b32 s33, s29, 0xffff")
    e("s_mov_b32 s34, 1179648")
    e("s_mov_b32 s35, 0x20000")
    e("s_mul_i32 s3, s61, 288")
    e("v_add_u32 v220, s3, v221")
    e("v_lshlrev_b32 v220, 7, v220")
    e("v_cmp_gt_u32 vcc, 288, v221")
    e("v_mov_b32 v23, 0x40000000")
    e("s_nop 1")
    e("v_cndmask_b32 v220, v23, v220, vcc")
    e("s_mul_i32 s3, s61, 18")
    e("v_lshrrev_b32 v22, 4, v221")
    e("v_add_u32 v22, s3, v22")
    e("v_lshlrev_b32 v22, 13, v22")
    e("v_and_b32 v206, 15, v221")
    e("v_lshl_add_u32 v22, v206, 7, v22")
    e("s_lshl_b32 s3, s63, 11")
    e("v_add_u32 v22, s3, v22")
    e("v_cndmask_b32 v22, v23, v22, vcc")
    e("v_lshlrev_b32 v221, 6, v0")
    issue_x(0); issue_static(0); issue_x(1); issue_static(1); issue_x(2); issue_x(3)
    drain()
    if int(os.environ.get("WARMQ", "0")):
        e("buffer_load_dword v207, v220, s[32:35], 0 offen")
        e("buffer_load_dword v206, v22, s[16:19], 0 offen")
        vm.add("warm", 2)
    XFB = [SA, SA + 16]
    def xread(T):
        for s in range(4):
            a = XADDR[T&3]
            if a < 65536:
                e(f"ds_read_b128 {vr(XFB[T&1]+4*s,4)}, v{202+s} offset:{a}")
            else:
                e(f"ds_read_b128 {vr(XFB[T&1]+4*s,4)}, v{208+s} offset:{a-114688}")
        lg.add(f"x{T}", 4)
    def vmw(*tags):
        def f():
            idx = [max([i for i, t in enumerate(vm.ops) if t == tg], default=-1) for tg in tags]
            tg = tags[idx.index(max(idx))]
            if WARM: pass
            vm.wait(tg)
        return f
    sync(None, vmwait=vmw("x0"))
    xread(0)
    ntouch = PF + 4
    tq = list(range(ntouch))
    def touch_some(k):
        for _ in range(k):
            if tq: touch_static(tq.pop(0))
    per = -(-(ntouch - 2) // 8)
    def touch_q(k):
        if PFQ:
            k0 = int(os.environ.get("PFQ0", "1"))
            if k0 <= k < k0 + PFQ: touch_static(k - k0)
            return
        if not PF: return
        if k <= 7:
            touch_some(max(min(per, len(tq) - 2), 0))
        else:
            touch_some(1)
    sync(lambda: (issue_static(2), issue_x(4), touch_q(0)), vmwait=vmw("u0", "x1"))
    pend = []
    for T in range(9):
        mf = [w_frag(T % 3, s, db, T, XFB[T&1]) for s in range(4) for db in range(4)]
        pre = carry(pend, mf)
        events = {}
        if T < 8:
            events[4] = [lambda T=T: xread(T + 1)]
            def iss(T=T):
                if T + 3 <= 8: issue_static(T + 3)
                if T + 5 <= 8: issue_x(T + 5)
                if T + 1 == 7: (issue_static(9), issue_static(10))
                if T + 1 == 8: issue_static(11)
                touch_q(T + 1)
            tags = (f"u{T+1}", f"x{T+2}") if T + 2 <= 8 else (f"u{T+1}",)
            events[12] = [lambda T=T, iss=iss, tags=tags: sync(iss, vmwait=vmw(*tags))]
            nxtf = [strip(w_frag((T + 1) % 3, 0, db, T + 1, XFB[(T+1)&1])) for db in range(4)]
            for m in nxtf: m['gate'] = 12
            mf += nxtf
        else:
            events[12] = [lambda: sync(lambda: (issue_static(12), touch_q(9)), vmwait=vmw("u9"))]
        if False:
            events.setdefault(13, []).append(lambda T=T: e(f"s_memrealtime s[{64+2*(4+(0,1,2,4,6,8).index(T))}:{65+2*(4+(0,1,2,4,6,8).index(T))}]"))
        pend = run_stream(mf, {}, events, pre=pre, LA=int(os.environ.get('QLA','4')))
    drain()
    stamp(1)
    e("s_nop 15")
    for db in range(4):
        for t in range(2):
            F = VQ + 4 * (2*db + t)
            a = VO + 16*db + 8*t
            for j in range(4):
                e(f"v_cvt_pk_bf16_f32 v{F+j}, v{a+2*j}, v{a+2*j+1}")
    e("s_nop 1")
    for sp in range(8):
        F = VQ + 4*sp
        e(f"v_permlane32_swap_b32 v{F}, v{F+2}")
        e(f"v_permlane32_swap_b32 v{F+1}, v{F+3}")
    for k in range(8):
        db, u = k >> 1, k & 1
        e(f"v_xor_b32 v{VA+k}, {(db<<6)^(u<<5)}, v9")
    e("v_mov_b32 v18, 0xff800000")
    e("v_mov_b32 v21, 0xff800000")
    e("v_mov_b32 v19, 0")
    e("s_add_u32 s43, s44, 16384")
    e("s_add_u32 s42, s44, 49152")
    e("s_mov_b32 s45, 0")

    def max_ops(S):
        ops = []
        for c in range(4):
            b0 = S + 8*c
            ops.append(f"v_max3_f32 v{VT+c}, v{b0}, v{b0+1}, v{b0+2}")
        for c in range(4):
            b0 = S + 8*c
            ops.append(f"v_max3_f32 v{VT+c}, v{VT+c}, v{b0+3}, v{b0+4}")
        for c in range(4):
            b0 = S + 8*c
            ops.append(f"v_max3_f32 v{VT+c}, v{VT+c}, v{b0+5}, v{b0+6}")
        for c in range(4):
            b0 = S + 8*c
            ops.append(f"v_max_f32 v{VT+c}, v{VT+c}, v{b0+7}")
        ops.append(f"v_max3_f32 v{VT}, v{VT}, v{VT+1}, v{VT+2}")
        ops.append(f"v_max_f32 v{VT}, v{VT}, v{VT+3}")
        ops.append(f"v_mov_b32 v{VT+1}, v{VT}")
        ops.append("s_nop 1")
        ops.append(f"v_permlane32_swap_b32 v{VT}, v{VT+1}")
        ops.append(f"v_max_f32 v{VT}, v{VT}, v{VT+1}")
        ops.append(f"v_mul_f32 v{VT+4}, s46, v{VT}")
        ops.append(f"v_cmp_gt_f32 vcc, v{VT+4}, v21")
        return ops
    lab_ctr = [0]
    def rescale_check():
        lab = f"L_nors_{lab_ctr[0]}"; lab_ctr[0] += 1
        e(f"s_cbranch_vccz {lab}")
        e("s_nop 15")
        e(f"v_max_f32 v{VT+5}, v18, v{VT+4}")
        e(f"v_sub_f32 v{VT+6}, v18, v{VT+5}")
        e(f"v_exp_f32 v20, v{VT+6}")
        e(f"v_mov_b32 v18, v{VT+5}")
        e(f"v_add_f32 v21, 0x41000000, v{VT+5}")
        e(f"v_mul_f32 v19, v20, v19")
        for i in range(64):
            e(f"v_mul_f32 v{VO+i}, v20, v{VO+i}")
        e(f"{lab}:")
    def exp_ops(S, kb):
        b0 = S + 16*kb
        acc = [VT+8+2*kb, VT+9+2*kb]
        ops = []
        G = 4
        for gidx in range(6):
            if gidx < 4:
                for k in range(G):
                    i = b0 + G*gidx + k
                    ops.append(f"v_fma_f32 v{i}, v{i}, s46, -v18")
            if 1 <= gidx < 5:
                for k in range(G):
                    i = b0 + G*(gidx-1) + k
                    ops.append(f"v_exp_f32 v{i}, v{i}")
            if 2 <= gidx:
                g2 = gidx - 2
                i = b0 + G*g2
                if g2 == 0:
                    ops.append(f"v_add_f32 v{acc[0]}, v{i}, v{i+1}")
                    ops.append(f"v_add_f32 v{acc[1]}, v{i+2}, v{i+3}")
                else:
                    ops.append(f"v_add_f32 v{acc[0]}, v{acc[0]}, v{i}")
                    ops.append(f"v_add_f32 v{acc[1]}, v{acc[1]}, v{i+2}")
                    ops.append(f"v_add_f32 v{acc[0]}, v{acc[0]}, v{i+1}")
                    ops.append(f"v_add_f32 v{acc[1]}, v{acc[1]}, v{i+3}")
                p = VP + 8*kb + 2*g2
                ops.append(f"v_cvt_pk_bf16_f32 v{p}, v{i}, v{i+1}")
                ops.append(f"v_cvt_pk_bf16_f32 v{p+1}, v{i+2}, v{i+3}")
        ops.append(f"v_add_f32 v{acc[0]}, v{acc[0]}, v{acc[1]}")
        ops.append(f"v_add_f32 v19, v19, v{acc[0]}")
        return ops
    def spread(ops, positions):
        d = {}
        n = len(positions)
        per = len(ops) / n
        for k, op in enumerate(ops):
            p = positions[min(n-1, int(k / per))]
            d.setdefault(p, []).append(op)
        return d

    mf = [k_frag(3, s, kb, SA) for s in range(8) for kb in range(2)]
    zero_ops = [f"v_mov_b32 v{VO+i}, 0" for i in range(64)]
    e("s_nop 1")
    nxtf = [strip(k_frag(0, s, kb, SB)) for s in range(2) for kb in range(2)]
    for m in nxtf: m['gate'] = 12
    events = {12: [lambda: sync(lambda: issue_dyn(12, "s43", 3), vmwait=vmw("u10"))]}
    pend = run_stream(mf + nxtf, spread(zero_ops, list(range(16))), events)
    drain()
    e("s_nop 7")
    e("s_nop 7")
    for op in max_ops(SA):
        e(op)

    def iteration(par, pend, issue_mid, issue_end, doS=True, nextS=True, end_sync=True, wmid=None, wend=None):
        Scur, Snx = (SA, SB) if par == 0 else (SB, SA)
        kslot, vslot, k2slot = (0, 1, 2) if par == 0 else (2, 3, 0)
        rescale_check()
        ex0 = exp_ops(Scur, 0); ex1 = exp_ops(Scur, 1)
        mf = []
        events = {}
        fill = {}
        if doS:
            mf += [k_frag(kslot, s, kb, Snx) for s in range(8) for kb in range(2)]
            pre = carry(pend, mf)
            base = 16
            cut = 24
            fill.update(spread(ex0 + ex1[:cut], list(range(0, 15))))
            events[12] = [lambda: sync(issue_mid, **({'vmwait': wmid} if wmid else {}))]
            vgate = 12
        else:
            pre = 0
            base = 0
            cut = 24
            sync(issue_mid, **({'vmwait': wmid} if wmid else {}))
            vgate = 0
        vf = [v_frag(vslot, kb, t, db) for kb in range(2) for t in range(2) for db in range(4)]
        for m in vf: m['gate'] = vgate
        mf += vf
        if not doS:
            events[0] = [lambda: [e(op) for op in ex0 + ex1[:cut]] and None]
        for p, ops in spread(ex1[cut:], list(range(base, base + 7))).items():
            fill.setdefault(p, []).extend(ops)
        if nextS:
            for p, ops in spread(max_ops(Snx), list(range(base + 8, base + 16))).items():
                fill.setdefault(p, []).extend(ops)
        if end_sync:
            events[base + 12] = [lambda: sync(issue_end, **({'vmwait': wend} if wend else {}))]
        if doS and nextS and end_sync == True:
            nx = [strip(k_frag(k2slot, s, kb, Scur)) for s in range(2) for kb in range(2)]
            for m in nx: m['gate'] = base + 12
            mf += nx
        r = run_stream(mf, fill, events, pre=pre)
        drain()
        return r

    st0 = (len(lg.ops), fcount[0] % NFB, [ (m['buf']) for m in pend])
    e("L_loop:")
    pend = iteration(0, pend, lambda: issue_dyn(8, "s42", 0), lambda: issue_dyn(12, "s43", 1))
    pend = iteration(1, pend, lambda: issue_dyn(8, "s42", 2), lambda: issue_dyn(12, "s43", 3))
    st1 = (len(lg.ops), fcount[0] % NFB, [ (m['buf']) for m in pend])
    assert st0 == st1, (st0, st1)
    assert not dmaq
    e("s_add_u32 s45, s45, 1")
    e("s_cmp_lt_u32 s45, 7")
    e("s_cbranch_scc1 L_loop")
    pfo = ["pf"] if PF else []
    vm.ops = ["v14"]*4 + pfo + ["k16"]*4 + pfo + ["v15"]*4 + pfo
    pend = iteration(0, pend, lambda: issue_static(42), lambda: issue_static(43), end_sync="nok", wmid=vmw("v14"), wend=vmw("k16"))
    drain()
    if WARM:
        e("s_cmp_ge_u32 s51, 5")
        e("s_cbranch_scc1 L_nowarm2")
        e("s_mul_i32 s3, s63, 1179648")
        e("buffer_load_dword v220, v220, s[56:59], s3 offen")
        e("L_nowarm2:")
    pend = iteration(1, pend, lambda: issue_static(44), None, doS=False, nextS=False, end_sync=False, wmid=vmw("v15"))
    drain()
    stamp(2)
    e(f"v_mov_b32 v{VT+1}, v19")
    e("s_nop 1")
    e(f"v_permlane32_swap_b32 v19, v{VT+1}")
    e(f"v_add_f32 v19, v19, v{VT+1}")
    e("v_rcp_f32 v20, v19")
    e("v_lshlrev_b32 v1, 4, v0")
    XS = slot_of(41)*16384
    e("s_lshl_b32 s3, s51, 12")
    e("s_add_u32 s3, s3, 131072")
    e("v_add_u32 v2, s3, v1")
    e(f"s_add_u32 s3, s55, {XS}")
    e("v_add_u32 v3, s3, v1")
    e("s_nop 7")
    for i in range(64):
        e(f"v_mul_f32 v{VO+i}, v20, v{VO+i}")
    OWN = SA
    for db in range(4):
        for t in range(2):
            F = OWN + 4 * (2*db + t)
            a = VO + 16*db + 8*t
            for j in range(4):
                e(f"v_cvt_pk_bf16_f32 v{F+j}, v{a+2*j}, v{a+2*j+1}")
    e("s_nop 1")
    for sp in range(8):
        F = OWN + 4*sp
        e(f"v_permlane32_swap_b32 v{F}, v{F+2}")
        e(f"v_permlane32_swap_b32 v{F+1}, v{F+3}")
    if STAG:
        e("s_cmp_eq_u32 s53, 1")
        e("s_cbranch_scc1 L_stag1")
        for _ in range(STAG):
            e("s_barrier")
        e("L_stag1:")
    e("s_barrier")
    for k in range(4):
        e(f"ds_write_b128 v2, {vr(OWN+4*k,4)} offset:{k*1024}")
        e(f"ds_write_b128 v3, {vr(OWN+16+4*k,4)} offset:{k*1024}")
    e("s_add_u32 s3, s44, 131072")
    e("v_add_u32 v2, s3, v1")
    e(f"s_add_u32 s3, s44, {XS}")
    e("v_add_u32 v3, s3, v1")
    e("v_add_u32 v21, 65536, v3")
    e("s_waitcnt lgkmcnt(0)")
    e("s_barrier")
    H = [VQ, SB]
    for hh in range(2):
        for k in range(4):
            e(f"ds_read_b128 {vr(H[hh]+4*k,4)}, v2 offset:{hh*16384 + k*1024}")
        for k in range(4):
            e(f"ds_read_b128 {vr(H[hh]+16+4*k,4)}, v{3 if hh == 0 else 21} offset:{k*1024}")
        e("s_waitcnt lgkmcnt(0)")
    e("v_xor_b32 v11, 64, v223")
    e("v_mov_b32 v10, v223")
    PK = SA
    def o_frag(slot, sp, nb, hh, acc):
        def rd(buf, tag):
            for u in range(2):
                e(f"ds_read_b64_tr_b16 {vr(buf+2*u,2)}, v{10+nb} offset:{slot*16384 + sp*2048 + u*512}")
            lg.add(tag, 2)
        def mm(buf):
            c = "0" if (hh == 0 and sp == 0) else vr(acc + 16*nb, 16)
            e(f"v_mfma_f32_32x32x16_bf16 {vr(acc+16*nb,16)}, {vr(buf,4)}, {vr(H[hh]+4*sp,4)}, {c}")
        return dict(rd=rd, mm=mm)
    def store_ops(ntl):
        acc = VO + 32 * (ntl & 1)
        def f():
            drain()
            for nb in range(2):
                for j in range(8):
                    e(f"v_cvt_pk_bf16_f32 v{PK+8*nb+j}, v{acc+16*nb+2*j}, v{acc+16*nb+2*j+1}")
            e(f"s_lshl_b32 s61, s53, 14")
            e(f"s_add_u32 s61, s61, {ntl*4096}")
            for nb in range(2):
                if (ntl == 4 and nb == 1) or (ntl == 0 and nb == 0):
                    cond = 0 if (ntl == 4) else 1
                    e(f"s_cmp_eq_u32 s53, {cond}")
                    e(f"s_cselect_b32 s47, 0x10000000, s61")
                    sreg = "s47"
                else:
                    sreg = "s61"
                for tt in range(2):
                    e(f"buffer_store_dwordx4 {vr(PK+8*nb+4*tt,4)}, v1, s[24:27], {sreg} offen offset:{nb*2048 + tt*1024}{STF}")
                    vm.add("st", 1)
        return f
    def osync(tau):
        def iss():
            if tau + 3 < 10:
                issue_static(42 + tau + 3)
        sync(iss, vmwait=lambda: vm.wait(f"u{42+tau}"))
    if DIAG and os.environ.get("TAILST"): stamp(4)
    osync(0)
    if DIAG and os.environ.get("TAILST"): stamp(5)
    pend = []
    for tau in range(10):
        slot = slot_of(42 + tau)
        ntl = tau >> 1; hh = tau & 1
        acc = VO + 32 * (ntl & 1)
        mf = [o_frag(slot, sp, nb, hh, acc) for sp in range(8) for nb in range(2)]
        pre = carry(pend, mf)
        events = {}
        if hh == 0 and ntl > 0:
            events[6] = [store_ops(ntl - 1)]
        if tau < 9:
            events[12] = [lambda tau=tau: osync(tau + 1)]
            nx = [strip(o_frag(slot_of(43 + tau), sp, nb, 0, 0)) for sp in range(2) for nb in range(2)]
            for m in nx: m['gate'] = 12
            mf += nx
        if DIAG and os.environ.get("TAILST") and tau in (2, 5, 8):
            events.setdefault(13, []).append(lambda tau=tau: e(f"s_memrealtime s[{64+2*(6+(2,5,8).index(tau))}:{65+2*(6+(2,5,8).index(tau))}]"))
        pend = run_stream(mf, {}, events, pre=pre)
    e("s_nop 15")
    store_ops(4)()
    if DIAG and os.environ.get("TAILST"): stamp(9)
    e("s_waitcnt vmcnt(0)")
    stamp(3)
    stamp_flush(4, 67108864)
    e("L_attn_done:")
    e("s_endpgm")

def gen_reduce():
    e(".globl reduce_kernel")
    e(".p2align 8")
    e(".type reduce_kernel,@function")
    e("reduce_kernel:")
    e("s_cmp_ge_u32 s2, 576")
    e("s_cbranch_scc1 L_rd_done")
    e("s_load_dwordx2 s[38:39], s[0:1], 96")
    e("s_load_dwordx2 s[36:37], s[0:1], 80")
    e("v_lshrrev_b32 v1, 6, v0")
    e("v_and_b32 v0, 63, v0")
    e("s_nop 0")
    e("v_readfirstlane_b32 s7, v1")
    e("s_nop 3")
    e("s_lshl_b32 s3, s2, 2")
    e("s_add_u32 s3, s3, s7")
    e("s_mul_i32 s4, s3, 58255")
    e("s_lshr_b32 s4, s4, 23")
    e("s_mul_i32 s5, s4, 144")
    e("s_sub_u32 s5, s3, s5")
    e("s_mul_i32 s6, s5, 1821")
    e("s_lshr_b32 s6, s6, 16")
    e("s_mul_i32 s8, s6, 36")
    e("s_sub_u32 s8, s5, s8")
    e("v_lshlrev_b32 v1, 4, v0")
    e("s_waitcnt lgkmcnt(0)")
    e("s_mul_i32 s9, s4, 2359296")
    e("s_lshl_b32 s10, s5, 10")
    e("s_add_u32 s9, s9, s10")
    e("s_add_u32 s12, s38, s9")
    e("s_addc_u32 s13, s39, 0")
    e("s_and_b32 s13, s13, 0xffff")
    e("s_mov_b32 s14, 2359296")
    e("s_mov_b32 s15, 0x20000")
    e("s_mov_b32 s16, s36")
    e("s_and_b32 s17, s37, 0xffff")
    e("s_mov_b32 s18, 2359296")
    e("s_mov_b32 s19, 0x20000")
    for p in range(16):
        e(f"s_mov_b32 s20, {p*147456}")
        e(f"buffer_load_dwordx4 {vr(8+4*p,4)}, v1, s[12:15], s20 offen")
    e("s_and_b32 s9, s4, 7")
    e("s_lshr_b32 s10, s4, 3")
    e("s_lshl_b32 s9, s9, 7")
    e("s_lshl_b32 s11, s6, 5")
    e("s_add_u32 s9, s9, s11")
    e("v_and_b32 v2, 31, v0")
    e("v_add_u32 v2, s9, v2")
    e("v_mul_u32_u24 v2, 2304, v2")
    e("v_lshrrev_b32 v3, 5, v0")
    e("v_lshl_add_u32 v2, v3, 4, v2")
    e("s_mul_i32 s10, s10, 1152")
    e("s_lshl_b32 s11, s8, 5")
    e("s_add_u32 s10, s10, s11")
    e("v_add_u32 v2, s10, v2")
    A = 80
    for p in range(16):
        e(f"s_waitcnt vmcnt({15-p})")
        for k in range(4):
            src = 8 + 4*p + k
            if p == 0:
                e(f"v_lshlrev_b32 v{A+2*k}, 16, v{src}")
                e(f"v_and_b32 v{A+2*k+1}, 0xffff0000, v{src}")
            else:
                e(f"v_lshlrev_b32 v{A+8+2*k}, 16, v{src}")
                e(f"v_and_b32 v{A+8+2*k+1}, 0xffff0000, v{src}")
        if p > 0:
            for k in range(8):
                e(f"v_add_f32 v{A+k}, v{A+k}, v{A+8+k}")
    for k in range(4):
        e(f"v_cvt_pk_bf16_f32 v{4+k}, v{A+2*k}, v{A+2*k+1}")
    e("s_nop 1")
    e("v_permlane32_swap_b32 v4, v6")
    e("v_permlane32_swap_b32 v5, v7")
    e("buffer_store_dwordx4 v[4:7], v2, s[16:19], 0 offen")
    e("s_waitcnt vmcnt(0)")
    e("L_rd_done:")
    e("s_endpgm")

def desc(name, vgpr, accum, sgpr=(100 if DIAG else 64)):
    e(f".amdhsa_kernel {name}")
    e(f"  .amdhsa_next_free_vgpr {vgpr}")
    e(f"  .amdhsa_next_free_sgpr {sgpr}")
    e(f"  .amdhsa_accum_offset {accum}")
    e("  .amdhsa_group_segment_fixed_size 0")
    e("  .amdhsa_kernarg_size 104")
    e("  .amdhsa_user_sgpr_count 2")
    e("  .amdhsa_user_sgpr_kernarg_segment_ptr 1")
    e("  .amdhsa_system_sgpr_workgroup_id_x 1")
    e(".end_amdhsa_kernel")

gen_attn()
gen_reduce()
e('.section .rodata,"a"')
e(".p2align 6")
desc("attn_kernel", 256, 256)
e(".p2align 6")
desc("reduce_kernel", 96, 96)

with open(sys.argv[1] if len(sys.argv) > 1 else OUT, "w") as f:
    f.write(HEADER + "\n".join(L) + "\n")
```

```python
import sys, os

NAME = "concat_heads__mha_block_cached__mha_block_cached__near_ridge"
OUT = f"cdna_kernels/{NAME}.s"
DIAG = int(os.environ.get("DIAG", "0"))
NT = " nt" if int(os.environ.get("NT", "0")) else ""
STF = os.environ.get("STF", "")
STF = (" " + STF) if STF else ""
PF = int(os.environ.get("PF", "0"))
STAG = int(os.environ.get("STAG", "0"))

L = []
def e(s=""):
    L.append(s)

def stamp(idx):
    if not DIAG:
        return
    e(f"s_memrealtime s[{64+2*idx}:{65+2*idx}]")
    e("s_waitcnt lgkmcnt(0)")

def stamp_flush(n, base, wreg="s51"):
    if not DIAG:
        return
    if os.environ.get("DBG"):
        lab = f"L_st_{len(L)}"
        e(f"s_cmp_lg_u32 {wreg}, 0")
        e(f"s_cbranch_scc1 {lab}")
        e("s_mov_b64 exec, 1")
        for i in range(1, n):
            e(f"s_sub_u32 s62, s{64+2*i}, s64")
            e("v_mov_b32 v20, s62")
            e(f"v_mov_b32 v22, {4*i}")
            e("global_atomic_umax v22, v20, s[94:95]")
            e(f"v_mov_b32 v22, {4*(i+4)}")
            e("global_atomic_add v22, v20, s[94:95]")
            e("s_nop 1")
        e("s_waitcnt vmcnt(0)")
        e(f"{lab}:")
        return
    lab = f"L_st_{len(L)}"
    e(f"s_cmp_lg_u32 {wreg}, 0")
    e(f"s_cbranch_scc1 {lab}")
    e("s_mov_b64 exec, 1")
    e("s_lshl_b32 s62, s2, 7")
    e(f"s_add_u32 s62, s62, {base}")
    e("v_mov_b32 v22, s62")
    for i in range(n):
        e(f"v_mov_b32 v20, s{64+2*i}")
        e(f"v_mov_b32 v21, s{65+2*i}")
        e(f"global_store_dwordx2 v22, v[20:21], s[38:39] offset:{8*i}")
        e("s_nop 1")
    e("s_waitcnt vmcnt(0)")
    e(f"{lab}:")

def vr(a, n):
    return f"v[{a}:{a+n-1}]"

HEADER = f"""; Kernarg layout for this problem (104 bytes, ptrs only, base s[0:1]):
; @launch kernel=attn_kernel grid=(256,1,1) block=(512,1,1) lds=163840
; @launch kernel=reduce_kernel grid=(576,1,1) block=(256,1,1) lds=0
.amdgcn_target "amdgcn-amd-amdhsa--gfx950"
.text
"""

class Cnt:
    def __init__(self, name):
        self.name = name
        self.ops = []
    def add(self, tag, n=1):
        self.ops += [tag] * n
        assert len(self.ops) <= (15 if self.name == "lgkmcnt" else 63), (self.name, len(self.ops))
    def wait(self, tag):
        idx = [i for i, t in enumerate(self.ops) if t == tag]
        if not idx:
            return
        last = max(idx)
        n = len(self.ops) - 1 - last
        e(f"s_waitcnt {self.name}({n})")
        self.ops = self.ops[last+1:]
    def wait_all(self):
        if self.ops:
            e(f"s_waitcnt {self.name}(0)")
        self.ops = []

VO = 24; SA = 88; SB = 120; VP = 152; FP = 168; VT = 200; VA = 212; VQ = 224
NFB = 8

def gen_attn():
    e(".globl attn_kernel")
    e(".p2align 8")
    e(".type attn_kernel,@function")
    e("attn_kernel:")
    e("s_cmp_ge_u32 s2, 256")
    e("s_cbranch_scc1 L_attn_done")
    e("s_load_dwordx2 s[38:39], s[0:1], 96")
    if DIAG: e("s_load_dwordx2 s[94:95], s[0:1], 88")
    e("s_and_b32 s3, s2, 7")
    e("s_and_b32 s4, s3, 1")
    e("s_lshr_b32 s3, s3, 1")
    e("s_lshr_b32 s47, s2, 3")
    e("s_and_b32 s52, s47, 3")
    e("s_lshl_b32 s3, s3, 2")
    e("s_add_u32 s52, s52, s3")
    e("s_lshr_b32 s5, s47, 2")
    e("s_mul_i32 s3, s4, 40")
    e("s_add_u32 s0, s0, s3")
    e("s_addc_u32 s1, s1, 0")
    e("s_load_dwordx8 s[28:35], s[0:1], 0")
    e("s_load_dwordx2 s[36:37], s[0:1], 32")
    e("v_mov_b32 v221, v0")
    e("v_lshrrev_b32 v1, 6, v0")
    e("v_and_b32 v0, 63, v0")
    e("s_nop 0")
    e("v_readfirstlane_b32 s51, v1")
    e("s_nop 3")
    e("s_and_b32 s7, s51, 3")
    e("s_lshr_b32 s53, s51, 2")
    e("s_lshl_b32 s6, s52, 1")
    e("s_add_u32 s6, s6, s53")
    e("s_lshl_b32 s54, s53, 16")
    e("v_lshrrev_b32 v1, 4, v0")
    e("v_and_b32 v2, 15, v0")
    e("v_lshlrev_b32 v3, 2, v1")
    e("v_xor_b32 v3, v3, v2")
    for j in range(4):
        e(f"v_xor_b32 v23, {j}, v3")
        e(f"v_lshlrev_b32 v23, 4, v23")
        e(f"v_lshl_add_u32 v{4+j}, v1, 8, v23")
        e(f"v_lshl_add_u32 v{18+j}, v1, 13, v23")
    e("v_lshrrev_b32 v22, 3, v0")
    e("v_mul_u32_u24 v22, 1152, v22")
    e("v_and_b32 v23, 7, v0")
    e("v_xor_b32 v23, v23, v1")
    e("v_lshl_add_u32 v200, v23, 4, v22")
    e("v_xor_b32 v23, 4, v23")
    e("v_lshl_add_u32 v201, v23, 4, v22")
    e("v_and_b32 v23, 7, v0")
    e("v_bfe_u32 v9, v0, 4, 1")
    e("v_lshlrev_b32 v9, 2, v9")
    e("v_xor_b32 v23, v23, v9")
    e("v_lshl_add_u32 v222, v23, 4, v22")
    e("v_and_b32 v23, 31, v0")
    e("v_lshrrev_b32 v22, 5, v0")
    e("v_and_b32 v8, 3, v23")
    e("v_lshlrev_b32 v8, 2, v8")
    e("v_bfe_u32 v9, v23, 2, 2")
    e("v_or_b32 v8, v8, v9")
    e("v_xor_b32 v8, v8, v22")
    e("v_lshlrev_b32 v8, 4, v8")
    e("v_lshl_add_u32 v8, v23, 8, v8")
    e("v_add_u32 v8, s54, v8")
    e("v_bfe_u32 v9, v23, 1, 3")
    e("v_xor_b32 v9, v9, v22")
    e("v_lshlrev_b32 v9, 4, v9")
    e("v_lshl_add_u32 v9, v23, 7, v9")
    e("s_lshl_b32 s3, s7, 12")
    e("v_add_u32 v202, s3, v9")
    for s in range(1, 4):
        e(f"v_xor_b32 v{202+s}, {s<<5}, v202")
    for s in range(4):
        e(f"v_add_u32 v{208+s}, 114688, v{202+s}")
    e("v_lshrrev_b32 v10, 2, v2")
    e("v_and_b32 v11, 1, v1")
    e("v_lshlrev_b32 v11, 1, v11")
    e("v_bfe_u32 v12, v2, 1, 1")
    e("v_or_b32 v11, v11, v12")
    e("v_and_b32 v12, 1, v2")
    e("v_lshlrev_b32 v12, 3, v12")
    e("v_add_u32 v12, s54, v12")
    e("v_xor_b32 v13, v11, v22")
    e("v_lshl_add_u32 v13, v10, 2, v13")
    e("v_lshl_add_u32 v13, v13, 4, v12")
    e("v_lshl_add_u32 v14, v22, 2, v10")
    e("v_lshl_add_u32 v9, v14, 8, v13")
    e("v_lshrrev_b32 v13, 1, v10")
    e("v_lshl_add_u32 v13, v13, 2, v11")
    e("v_lshl_add_u32 v13, v13, 4, v12")
    e("v_lshl_add_u32 v14, v22, 3, v10")
    e("v_lshl_add_u32 v223, v14, 7, v13")
    e("v_lshlrev_b32 v14, 1, v22")
    e("v_xor_b32 v13, v11, v14")
    e("v_lshl_add_u32 v13, v10, 2, v13")
    e("v_lshl_add_u32 v13, v13, 4, v12")
    e("v_lshl_add_u32 v14, v22, 3, v10")
    e("v_lshl_add_u32 v3, v14, 8, v13")
    for db in range(4):
        for u in range(2):
            e(f"v_xor_b32 v{VA+2*db+u}, {(db<<6)^(u<<4)}, v3")
    for s in range(8):
        e(f"v_xor_b32 v{10+s}, {s<<5}, v8")
    e("s_waitcnt lgkmcnt(0)")
    e("s_mul_i32 s3, s5, 147456")
    e("s_add_u32 s20, s28, s3")
    e("s_addc_u32 s21, s29, 0")
    e("s_and_b32 s21, s21, 0xffff")
    e("s_mov_b32 s22, 0" if os.environ.get("NOXW") else "s_mov_b32 s22, 147456")
    e("s_mov_b32 s23, 0x20000")
    e("s_lshl_b32 s3, s5, 5")
    e("s_add_u32 s3, s3, s6")
    e("s_lshl_b32 s3, s3, 18")
    e("s_add_u32 s8, s30, s3")
    e("s_addc_u32 s9, s31, 0")
    e("s_and_b32 s9, s9, 0xffff")
    e("s_mov_b32 s10, 262144")
    e("s_mov_b32 s11, 0x20000")
    e("s_add_u32 s12, s32, s3")
    e("s_addc_u32 s13, s33, 0")
    e("s_and_b32 s13, s13, 0xffff")
    e("s_mov_b32 s14, 262144")
    e("s_mov_b32 s15, 0x20000")
    e("s_mov_b32 s16, s34")
    e("s_and_b32 s17, s35, 0xffff")
    e("s_mov_b32 s18, 0" if os.environ.get("NOXW") else "s_mov_b32 s18, 4718592")
    e("s_mov_b32 s19, 0x20000")
    e("s_mov_b32 s56, s36")
    e("s_and_b32 s57, s37, 0xffff")
    e("s_mov_b32 s58, 0" if os.environ.get("NOXW") else "s_mov_b32 s58, 4718592")
    e("s_mov_b32 s59, 0x20000")
    e("s_lshl_b32 s3, s4, 3")
    e("s_add_u32 s3, s3, s5")
    e("s_lshl_b32 s3, s3, 4")
    e("s_add_u32 s3, s3, s52")
    e("s_mul_i32 s3, s3, 147456")
    e("s_mul_i32 s47, s7, 36864")
    e("s_add_u32 s3, s3, s47")
    e("s_add_u32 s24, s38, s3")
    e("s_addc_u32 s25, s39, 0")
    e("s_and_b32 s25, s25, 0xffff")
    e("s_mov_b32 s26, 36864")
    e("s_mov_b32 s27, 0x20000")
    e("s_lshl_b32 s44, s7, 12")
    e("s_add_u32 s55, s44, s54")
    e("s_mov_b32 s46, 0x3e0293ee")
    e("s_lshl_b32 s48, s7, 17")
    e("s_lshl_b32 s3, s6, 8")
    e("s_add_u32 s48, s48, s3")
    e("s_mul_i32 s49, s51, 18432")
    e("s_lshl_b32 s40, s51, 11")
    e("s_lshl_b32 s3, s52, 8")
    e("s_lshl_b32 s47, s7, 5")
    e("s_add_u32 s3, s3, s47")
    e("s_mul_i32 s60, s3, 1152")
    e("s_add_u32 s37, s60, 512")
    e("s_mul_i32 s3, s53, 640")
    e("s_add_u32 s60, s60, s3")

    lg = Cnt("lgkmcnt")

    dmaq = []
    SPREAD = int(os.environ.get("SPREAD", "1"))
    def push(chunk):
        if os.environ.get("NODMA") and ("s[20:23]" in chunk[-1] or "s[16:19]" in chunk[-1] or "s[56:59]" in chunk[-1]): return
        if SPREAD: dmaq.append(chunk)
        else:
            for x in chunk: e(x)
    def drain(n=None):
        k = 0
        while dmaq and (n is None or k < n):
            for x in dmaq.pop(0): e(x)
            k += 1
    vm = Cnt("vmcnt")
    XADDR = [131072, 147456, 49152, 114688]
    def slot_of(u):
        return (u % 3) if u < 9 else ((u - 9 + 3) & 3)
    def issue_x(T):
        for j in range(2):
            push([f"s_add_u32 s3, s40, {XADDR[T&3] + j*1024}", "s_mov_b32 m0, s3",
                  f"s_add_u32 s50, s49, {j*9216 + 128*T}", f"buffer_load_dwordx4 v{200+j}, s[20:23], s50 offen lds"])
        vm.add(f"x{T}", 2)
    def issue_static(u):
        slot = slot_of(u)
        if u < 9:
            for j in range(4):
                push([f"s_add_u32 s3, s55, {slot*16384 + j*1024}", "s_mov_b32 m0, s3",
                      f"s_add_u32 s50, s48, {(64*u + 4*j)*8192}", f"buffer_load_dwordx4 v{18+j}, s[16:19], s50 offen lds"])
        elif u <= 41:
            if u == 9: srd, i = 8, 0
            elif u & 1 == 0: srd, i = 8, (u - 10) // 2 + 1
            else: srd, i = 12, (u - 11) // 2
            for j in range(4):
                c = []
                if j == 0:
                    c = [f"s_add_u32 s3, s55, {slot*16384}", "s_mov_b32 m0, s3", f"s_add_u32 s50, s44, {i*16384}"]
                c += [f"buffer_load_dwordx4 v{4+j}, s[{srd}:{srd+3}], s50 offen offset:{j*1024}{NT} lds"]
                push(c)
        else:
            tau = u - 42
            for j in range(4):
                push([f"s_add_u32 s3, s55, {slot*16384 + j*1024}", "s_mov_b32 m0, s3",
                      (f"s_add_u32 s50, s60, {j*9216 + (tau&1)*128*1152 + (tau>>1)*128}" if tau < 8 else f"s_add_u32 s50, s37, {j*9216 + (tau&1)*128*1152}"),
                      f"buffer_load_dwordx4 v222, s[56:59], s50 offen lds"])
        vm.add(f"u{u}", 4)
    def kv_of(v):
        if v == 0: return 8, 0
        if v & 1: return 8, (v - 1) // 2 + 1
        return 12, (v - 2) // 2
    PFQ = int(os.environ.get("PFQ", "0"))
    def touch_static(v):
        if not (PF or PFQ): return
        srd, i = kv_of(v)
        push([f"s_add_u32 s41, s44, {i*16384}", f"buffer_load_dword v23, v221, s[{srd}:{srd+3}], s41 offen"])
        vm.add("pf", 1)
    def touch_dyn(srd, sreg):
        if not PF: return
        push([f"s_add_u32 s41, {sreg}, {(PF//2 - 1)*16384}", f"buffer_load_dword v23, v221, s[{srd}:{srd+3}], s41 offen"])
    def issue_dyn(srd, sreg, slot):
        for j in range(4):
            c = []
            if j == 0:
                c = [f"s_add_u32 s3, s55, {slot*16384}", "s_mov_b32 m0, s3", "s_nop 0"]
            c += [f"buffer_load_dwordx4 v{4+j}, s[{srd}:{srd+3}], {sreg} offen offset:{j*1024}{NT} lds"]
            if j == 3:
                c += [f"s_add_u32 {sreg}, {sreg}, 16384"]
            push(c)
        touch_dyn(srd, sreg)

    def sync(issue, vmwait=("s_waitcnt vmcnt(11)" if PF else "s_waitcnt vmcnt(8)")):
        drain()
        lg.wait_all()
        if callable(vmwait): vmwait()
        else: e(vmwait)
        e("s_barrier")
        if issue: issue()

    fcount = [0]
    def run_stream(mf, fillers, events, LA=6, pre=0):
        n_mm = sum(1 for m in mf if m.get('mm'))
        nxt = pre
        fi = 0
        for n in range(n_mm):
            for ev in events.get(n, []):
                ev()
            while nxt < len(mf) and nxt <= n + LA and mf[nxt].get('gate', 0) <= n:
                m = mf[nxt]
                m['buf'] = FP + 4 * (fcount[0] % NFB); fcount[0] += 1
                m['tag'] = f"f{fcount[0]}"
                m['rd'](m['buf'], m['tag'])
                nxt += 1
            m = mf[n]
            lg.wait(m['tag'])
            m['mm'](m['buf'])
            drain(1)
            k = fillers.get(n, [])
            for f in k:
                e(f)
        for ev in events.get(n_mm, []):
            ev()
        while nxt < len(mf):
            m = mf[nxt]
            m['buf'] = FP + 4 * (fcount[0] % NFB); fcount[0] += 1
            m['tag'] = f"f{fcount[0]}"
            m['rd'](m['buf'], m['tag'])
            nxt += 1
        return [m for m in mf if not m.get('mm')]

    def w_frag(slot, s, db, T, xf):
        def rd(buf, tag):
            for u in range(2):
                e(f"ds_read_b64_tr_b16 {vr(buf+2*u,2)}, v{VA+2*db+u} offset:{slot*16384 + s*4096 + u*1024}")
            lg.add(tag, 2)
        def mm(buf):
            c = "0" if (T == 0 and s == 0) else vr(VO + 16*db, 16)
            e(f"v_mfma_f32_32x32x16_bf16 {vr(VO+16*db,16)}, {vr(buf,4)}, {vr(xf+4*s,4)}, {c}")
        return dict(rd=rd, mm=mm)
    def k_frag(slot, s, kb, S):
        def rd(buf, tag):
            e(f"ds_read_b128 {vr(buf,4)}, v{10+s} offset:{slot*16384 + kb*8192}")
            lg.add(tag, 1)
        def mm(buf):
            c = "0" if s == 0 else vr(S+16*kb, 16)
            e(f"v_mfma_f32_32x32x16_bf16 {vr(S+16*kb,16)}, {vr(buf,4)}, {vr(VQ+4*s,4)}, {c}")
        return dict(rd=rd, mm=mm)
    def v_frag(slot, kb, t, db):
        def rd(buf, tag):
            for u in range(2):
                e(f"ds_read_b64_tr_b16 {vr(buf+2*u,2)}, v{VA+2*db+u} offset:{slot*16384 + kb*8192+t*4096+u*2048}")
            lg.add(tag, 2)
        def mm(buf):
            p = VP + 4*(2*kb + t)
            e(f"v_mfma_f32_32x32x16_bf16 {vr(VO+16*db,16)}, {vr(buf,4)}, {vr(p,4)}, {vr(VO+16*db,16)}")
        return dict(rd=rd, mm=mm)
    def strip(m):
        m2 = dict(m); m2.pop('mm'); return m2
    def carry(pend, full):
        for a, b in zip(pend, full):
            b['buf'] = a['buf']; b['tag'] = a['tag']
        return len(pend)

    stamp(0)
    if STAG:
        e("s_cmp_eq_u32 s53, 0")
        e("s_cbranch_scc1 L_stag0")
        for _ in range(STAG):
            e("s_barrier")
        e("L_stag0:")
    WARM = int(os.environ.get("WARM", "1"))
    e("s_lshr_b32 s61, s2, 3")
    e("s_and_b32 s63, s2, 7")
    e("s_lshr_b32 s63, s63, 1")
    e("s_mov_b32 s32, s28")
    e("s_and_b32 s33, s29, 0xffff")
    e("s_mov_b32 s34, 1179648")
    e("s_mov_b32 s35, 0x20000")
    e("s_mul_i32 s3, s61, 288")
    e("v_add_u32 v220, s3, v221")
    e("v_lshlrev_b32 v220, 7, v220")
    e("v_cmp_gt_u32 vcc, 288, v221")
    e("v_mov_b32 v23, 0x40000000")
    e("s_nop 1")
    e("v_cndmask_b32 v220, v23, v220, vcc")
    e("s_mul_i32 s3, s61, 18")
    e("v_lshrrev_b32 v22, 4, v221")
    e("v_add_u32 v22, s3, v22")
    e("v_lshlrev_b32 v22, 13, v22")
    e("v_and_b32 v206, 15, v221")
    e("v_lshl_add_u32 v22, v206, 7, v22")
    e("s_lshl_b32 s3, s63, 11")
    e("v_add_u32 v22, s3, v22")
    e("v_cndmask_b32 v22, v23, v22, vcc")
    e("v_lshlrev_b32 v221, 6, v0")
    issue_x(0); issue_static(0); issue_x(1); issue_static(1); issue_x(2); issue_x(3)
    drain()
    if int(os.environ.get("WARMQ", "0")):
        e("buffer_load_dword v207, v220, s[32:35], 0 offen")
        e("buffer_load_dword v206, v22, s[16:19], 0 offen")
        vm.add("warm", 2)
    XFB = [SA, SA + 16]
    def xread(T):
        for s in range(4):
            a = XADDR[T&3]
            if a < 65536:
                e(f"ds_read_b128 {vr(XFB[T&1]+4*s,4)}, v{202+s} offset:{a}")
            else:
                e(f"ds_read_b128 {vr(XFB[T&1]+4*s,4)}, v{208+s} offset:{a-114688}")
        lg.add(f"x{T}", 4)
    def vmw(*tags):
        def f():
            idx = [max([i for i, t in enumerate(vm.ops) if t == tg], default=-1) for tg in tags]
            tg = tags[idx.index(max(idx))]
            if WARM: pass
            vm.wait(tg)
        return f
    sync(None, vmwait=vmw("x0"))
    xread(0)
    ntouch = PF + 4
    tq = list(range(ntouch))
    def touch_some(k):
        for _ in range(k):
            if tq: touch_static(tq.pop(0))
    per = -(-(ntouch - 2) // 8)
    def touch_q(k):
        if PFQ:
            k0 = int(os.environ.get("PFQ0", "1"))
            if k0 <= k < k0 + PFQ: touch_static(k - k0)
            return
        if not PF: return
        if k <= 7:
            touch_some(max(min(per, len(tq) - 2), 0))
        else:
            touch_some(1)
    sync(lambda: (issue_static(2), issue_x(4), touch_q(0)), vmwait=vmw("u0", "x1"))
    pend = []
    for T in range(9):
        mf = [w_frag(T % 3, s, db, T, XFB[T&1]) for s in range(4) for db in range(4)]
        pre = carry(pend, mf)
        events = {}
        if T < 8:
            events[4] = [lambda T=T: xread(T + 1)]
            def iss(T=T):
                if T + 3 <= 8: issue_static(T + 3)
                if T + 5 <= 8: issue_x(T + 5)
                if T + 1 == 7: (issue_static(9), issue_static(10))
                if T + 1 == 8: issue_static(11)
                touch_q(T + 1)
            tags = (f"u{T+1}", f"x{T+2}") if T + 2 <= 8 else (f"u{T+1}",)
            events[12] = [lambda T=T, iss=iss, tags=tags: sync(iss, vmwait=vmw(*tags))]
            nxtf = [strip(w_frag((T + 1) % 3, 0, db, T + 1, XFB[(T+1)&1])) for db in range(4)]
            for m in nxtf: m['gate'] = 12
            mf += nxtf
        else:
            events[12] = [lambda: sync(lambda: (issue_static(12), touch_q(9)), vmwait=vmw("u9"))]
        if False:
            events.setdefault(13, []).append(lambda T=T: e(f"s_memrealtime s[{64+2*(4+(0,1,2,4,6,8).index(T))}:{65+2*(4+(0,1,2,4,6,8).index(T))}]"))
        pend = run_stream(mf, {}, events, pre=pre, LA=int(os.environ.get('QLA','4')))
    drain()
    stamp(1)
    e("s_nop 15")
    for db in range(4):
        for t in range(2):
            F = VQ + 4 * (2*db + t)
            a = VO + 16*db + 8*t
            for j in range(4):
                e(f"v_cvt_pk_bf16_f32 v{F+j}, v{a+2*j}, v{a+2*j+1}")
    e("s_nop 1")
    for sp in range(8):
        F = VQ + 4*sp
        e(f"v_permlane32_swap_b32 v{F}, v{F+2}")
        e(f"v_permlane32_swap_b32 v{F+1}, v{F+3}")
    for k in range(8):
        db, u = k >> 1, k & 1
        e(f"v_xor_b32 v{VA+k}, {(db<<6)^(u<<5)}, v9")
    e("v_mov_b32 v18, 0xff800000")
    e("v_mov_b32 v21, 0xff800000")
    e("v_mov_b32 v19, 0")
    e("s_add_u32 s43, s44, 16384")
    e("s_add_u32 s42, s44, 49152")
    e("s_mov_b32 s45, 0")

    def max_ops(S):
        ops = []
        for c in range(4):
            b0 = S + 8*c
            ops.append(f"v_max3_f32 v{VT+c}, v{b0}, v{b0+1}, v{b0+2}")
        for c in range(4):
            b0 = S + 8*c
            ops.append(f"v_max3_f32 v{VT+c}, v{VT+c}, v{b0+3}, v{b0+4}")
        for c in range(4):
            b0 = S + 8*c
            ops.append(f"v_max3_f32 v{VT+c}, v{VT+c}, v{b0+5}, v{b0+6}")
        for c in range(4):
            b0 = S + 8*c
            ops.append(f"v_max_f32 v{VT+c}, v{VT+c}, v{b0+7}")
        ops.append(f"v_max3_f32 v{VT}, v{VT}, v{VT+1}, v{VT+2}")
        ops.append(f"v_max_f32 v{VT}, v{VT}, v{VT+3}")
        ops.append(f"v_mov_b32 v{VT+1}, v{VT}")
        ops.append("s_nop 1")
        ops.append(f"v_permlane32_swap_b32 v{VT}, v{VT+1}")
        ops.append(f"v_max_f32 v{VT}, v{VT}, v{VT+1}")
        ops.append(f"v_mul_f32 v{VT+4}, s46, v{VT}")
        ops.append(f"v_cmp_gt_f32 vcc, v{VT+4}, v21")
        return ops
    lab_ctr = [0]
    def rescale_check():
        lab = f"L_nors_{lab_ctr[0]}"; lab_ctr[0] += 1
        e(f"s_cbranch_vccz {lab}")
        e("s_nop 15")
        e(f"v_max_f32 v{VT+5}, v18, v{VT+4}")
        e(f"v_sub_f32 v{VT+6}, v18, v{VT+5}")
        e(f"v_exp_f32 v20, v{VT+6}")
        e(f"v_mov_b32 v18, v{VT+5}")
        e(f"v_add_f32 v21, 0x41000000, v{VT+5}")
        e(f"v_mul_f32 v19, v20, v19")
        for i in range(64):
            e(f"v_mul_f32 v{VO+i}, v20, v{VO+i}")
        e(f"{lab}:")
    def exp_ops(S, kb):
        b0 = S + 16*kb
        acc = [VT+8+2*kb, VT+9+2*kb]
        ops = []
        G = 4
        for gidx in range(6):
            if gidx < 4:
                for k in range(G):
                    i = b0 + G*gidx + k
                    ops.append(f"v_fma_f32 v{i}, v{i}, s46, -v18")
            if 1 <= gidx < 5:
                for k in range(G):
                    i = b0 + G*(gidx-1) + k
                    ops.append(f"v_exp_f32 v{i}, v{i}")
            if 2 <= gidx:
                g2 = gidx - 2
                i = b0 + G*g2
                if g2 == 0:
                    ops.append(f"v_add_f32 v{acc[0]}, v{i}, v{i+1}")
                    ops.append(f"v_add_f32 v{acc[1]}, v{i+2}, v{i+3}")
                else:
                    ops.append(f"v_add_f32 v{acc[0]}, v{acc[0]}, v{i}")
                    ops.append(f"v_add_f32 v{acc[1]}, v{acc[1]}, v{i+2}")
                    ops.append(f"v_add_f32 v{acc[0]}, v{acc[0]}, v{i+1}")
                    ops.append(f"v_add_f32 v{acc[1]}, v{acc[1]}, v{i+3}")
                p = VP + 8*kb + 2*g2
                ops.append(f"v_cvt_pk_bf16_f32 v{p}, v{i}, v{i+1}")
                ops.append(f"v_cvt_pk_bf16_f32 v{p+1}, v{i+2}, v{i+3}")
        ops.append(f"v_add_f32 v{acc[0]}, v{acc[0]}, v{acc[1]}")
        ops.append(f"v_add_f32 v19, v19, v{acc[0]}")
        return ops
    def spread(ops, positions):
        d = {}
        n = len(positions)
        per = len(ops) / n
        for k, op in enumerate(ops):
            p = positions[min(n-1, int(k / per))]
            d.setdefault(p, []).append(op)
        return d

    mf = [k_frag(3, s, kb, SA) for s in range(8) for kb in range(2)]
    zero_ops = [f"v_mov_b32 v{VO+i}, 0" for i in range(64)]
    e("s_nop 1")
    nxtf = [strip(k_frag(0, s, kb, SB)) for s in range(2) for kb in range(2)]
    for m in nxtf: m['gate'] = 12
    events = {12: [lambda: sync(lambda: issue_dyn(12, "s43", 3), vmwait=vmw("u10"))]}
    pend = run_stream(mf + nxtf, spread(zero_ops, list(range(16))), events)
    drain()
    e("s_nop 7")
    e("s_nop 7")
    for op in max_ops(SA):
        e(op)

    def iteration(par, pend, issue_mid, issue_end, doS=True, nextS=True, end_sync=True, wmid=None, wend=None):
        Scur, Snx = (SA, SB) if par == 0 else (SB, SA)
        kslot, vslot, k2slot = (0, 1, 2) if par == 0 else (2, 3, 0)
        rescale_check()
        ex0 = exp_ops(Scur, 0); ex1 = exp_ops(Scur, 1)
        mf = []
        events = {}
        fill = {}
        if doS:
            mf += [k_frag(kslot, s, kb, Snx) for s in range(8) for kb in range(2)]
            pre = carry(pend, mf)
            base = 16
            cut = 24
            fill.update(spread(ex0 + ex1[:cut], list(range(0, 15))))
            events[12] = [lambda: sync(issue_mid, **({'vmwait': wmid} if wmid else {}))]
            vgate = 12
        else:
            pre = 0
            base = 0
            cut = 24
            sync(issue_mid, **({'vmwait': wmid} if wmid else {}))
            vgate = 0
        vf = [v_frag(vslot, kb, t, db) for kb in range(2) for t in range(2) for db in range(4)]
        for m in vf: m['gate'] = vgate
        mf += vf
        if not doS:
            events[0] = [lambda: [e(op) for op in ex0 + ex1[:cut]] and None]
        for p, ops in spread(ex1[cut:], list(range(base, base + 7))).items():
            fill.setdefault(p, []).extend(ops)
        if nextS:
            for p, ops in spread(max_ops(Snx), list(range(base + 8, base + 16))).items():
                fill.setdefault(p, []).extend(ops)
        if end_sync:
            events[base + 12] = [lambda: sync(issue_end, **({'vmwait': wend} if wend else {}))]
        if doS and nextS and end_sync == True:
            nx = [strip(k_frag(k2slot, s, kb, Scur)) for s in range(2) for kb in range(2)]
            for m in nx: m['gate'] = base + 12
            mf += nx
        r = run_stream(mf, fill, events, pre=pre)
        drain()
        return r

    st0 = (len(lg.ops), fcount[0] % NFB, [ (m['buf']) for m in pend])
    e("L_loop:")
    pend = iteration(0, pend, lambda: issue_dyn(8, "s42", 0), lambda: issue_dyn(12, "s43", 1))
    pend = iteration(1, pend, lambda: issue_dyn(8, "s42", 2), lambda: issue_dyn(12, "s43", 3))
    st1 = (len(lg.ops), fcount[0] % NFB, [ (m['buf']) for m in pend])
    assert st0 == st1, (st0, st1)
    assert not dmaq
    e("s_add_u32 s45, s45, 1")
    e("s_cmp_lt_u32 s45, 7")
    e("s_cbranch_scc1 L_loop")
    pfo = ["pf"] if PF else []
    vm.ops = ["v14"]*4 + pfo + ["k16"]*4 + pfo + ["v15"]*4 + pfo
    pend = iteration(0, pend, lambda: issue_static(42), lambda: issue_static(43), end_sync="nok", wmid=vmw("v14"), wend=vmw("k16"))
    drain()
    if WARM:
        e("s_cmp_ge_u32 s51, 5")
        e("s_cbranch_scc1 L_nowarm2")
        e("s_mul_i32 s3, s63, 1179648")
        e("buffer_load_dword v220, v220, s[56:59], s3 offen")
        e("L_nowarm2:")
    pend = iteration(1, pend, lambda: issue_static(44), None, doS=False, nextS=False, end_sync=False, wmid=vmw("v15"))
    drain()
    stamp(2)
    e(f"v_mov_b32 v{VT+1}, v19")
    e("s_nop 1")
    e(f"v_permlane32_swap_b32 v19, v{VT+1}")
    e(f"v_add_f32 v19, v19, v{VT+1}")
    e("v_rcp_f32 v20, v19")
    e("v_lshlrev_b32 v1, 4, v0")
    XS = slot_of(41)*16384
    e("s_lshl_b32 s3, s51, 12")
    e("s_add_u32 s3, s3, 131072")
    e("v_add_u32 v2, s3, v1")
    e(f"s_add_u32 s3, s55, {XS}")
    e("v_add_u32 v3, s3, v1")
    e("s_nop 7")
    for i in range(64):
        e(f"v_mul_f32 v{VO+i}, v20, v{VO+i}")
    OWN = SA
    for db in range(4):
        for t in range(2):
            F = OWN + 4 * (2*db + t)
            a = VO + 16*db + 8*t
            for j in range(4):
                e(f"v_cvt_pk_bf16_f32 v{F+j}, v{a+2*j}, v{a+2*j+1}")
    e("s_nop 1")
    for sp in range(8):
        F = OWN + 4*sp
        e(f"v_permlane32_swap_b32 v{F}, v{F+2}")
        e(f"v_permlane32_swap_b32 v{F+1}, v{F+3}")
    if STAG:
        e("s_cmp_eq_u32 s53, 1")
        e("s_cbranch_scc1 L_stag1")
        for _ in range(STAG):
            e("s_barrier")
        e("L_stag1:")
    e("s_barrier")
    for k in range(4):
        e(f"ds_write_b128 v2, {vr(OWN+4*k,4)} offset:{k*1024}")
        e(f"ds_write_b128 v3, {vr(OWN+16+4*k,4)} offset:{k*1024}")
    e("s_add_u32 s3, s44, 131072")
    e("v_add_u32 v2, s3, v1")
    e(f"s_add_u32 s3, s44, {XS}")
    e("v_add_u32 v3, s3, v1")
    e("v_add_u32 v21, 65536, v3")
    e("s_waitcnt lgkmcnt(0)")
    e("s_barrier")
    H = [VQ, SB]
    for hh in range(2):
        for k in range(4):
            e(f"ds_read_b128 {vr(H[hh]+4*k,4)}, v2 offset:{hh*16384 + k*1024}")
        for k in range(4):
            e(f"ds_read_b128 {vr(H[hh]+16+4*k,4)}, v{3 if hh == 0 else 21} offset:{k*1024}")
        e("s_waitcnt lgkmcnt(0)")
    e("v_xor_b32 v11, 64, v223")
    e("v_mov_b32 v10, v223")
    e("s_lshl_b32 s3, s53, 6")
    e("v_xor_b32 v12, s3, v223")
    PK = SA
    def o_frag(slot, sp, nb, hh, acc):
        def rd(buf, tag):
            for u in range(2):
                e(f"ds_read_b64_tr_b16 {vr(buf+2*u,2)}, v{10+nb} offset:{slot*16384 + sp*2048 + u*512}")
            lg.add(tag, 2)
        def mm(buf):
            a = acc + 16*(nb & 1)
            c = "0" if (hh == 0 and sp == 0) else vr(a, 16)
            e(f"v_mfma_f32_32x32x16_bf16 {vr(a,16)}, {vr(buf,4)}, {vr(H[hh]+4*sp,4)}, {c}")
        return dict(rd=rd, mm=mm)
    def store_ops(ntl):
        acc = VO + 32 * (ntl & 1)
        def f():
            drain()
            nbs = range(2) if ntl < 4 else range(1)
            for nb in nbs:
                for j in range(8):
                    e(f"v_cvt_pk_bf16_f32 v{PK+8*nb+j}, v{acc+16*nb+2*j}, v{acc+16*nb+2*j+1}")
            if ntl < 4:
                e(f"s_mul_i32 s61, s53, 20480")
                e(f"s_add_u32 s61, s61, {ntl*4096}")
            else:
                e(f"s_lshl_b32 s61, s53, 11")
                e(f"s_add_u32 s61, s61, 16384")
            for nb in nbs:
                for tt in range(2):
                    e(f"buffer_store_dwordx4 {vr(PK+8*nb+4*tt,4)}, v1, s[24:27], s61 offen offset:{nb*2048 + tt*1024}{STF}")
                    vm.add("st", 1)
        return f
    def osync(tau):
        def iss():
            if tau + 3 < 10:
                issue_static(42 + tau + 3)
        sync(iss, vmwait=lambda: vm.wait(f"u{42+tau}"))
    if DIAG and os.environ.get("TAILST"): stamp(4)
    osync(0)
    if DIAG and os.environ.get("TAILST"): stamp(5)
    pend = []
    for tau in range(10):
        slot = slot_of(42 + tau)
        ntl = tau >> 1; hh = tau & 1
        acc = VO + 32 * (ntl & 1)
        def frs(tau):
            return [(sp, nb) for sp in range(8) for nb in range(2)] if tau < 8 else [(sp, 2) for sp in range(8)]
        mf = [o_frag(slot, sp, nb, hh, acc) for sp, nb in frs(tau)]
        nm = len(mf)
        pre = carry(pend, mf)
        events = {}
        if hh == 0 and ntl > 0:
            events[6 if nm == 16 else 3] = [store_ops(ntl - 1)]
        if tau < 9:
            events[nm - 4] = [lambda tau=tau: osync(tau + 1)]
            nx = [strip(o_frag(slot_of(43 + tau), sp, nb, 0, 0)) for sp, nb in frs(tau + 1)[:4]]
            for m in nx: m['gate'] = nm - 4
            mf += nx
        if DIAG and os.environ.get("TAILST") and tau in (2, 5, 8):
            events.setdefault(13, []).append(lambda tau=tau: e(f"s_memrealtime s[{64+2*(6+(2,5,8).index(tau))}:{65+2*(6+(2,5,8).index(tau))}]"))
        pend = run_stream(mf, {}, events, pre=pre)
    e("s_nop 15")
    store_ops(4)()
    if DIAG and os.environ.get("TAILST"): stamp(9)
    e("s_waitcnt vmcnt(0)")
    stamp(3)
    stamp_flush(4, 67108864)
    e("L_attn_done:")
    e("s_endpgm")

def gen_reduce():
    e(".globl reduce_kernel")
    e(".p2align 8")
    e(".type reduce_kernel,@function")
    e("reduce_kernel:")
    e("s_cmp_ge_u32 s2, 576")
    e("s_cbranch_scc1 L_rd_done")
    e("s_load_dwordx2 s[38:39], s[0:1], 96")
    e("s_load_dwordx2 s[36:37], s[0:1], 80")
    e("v_lshrrev_b32 v1, 6, v0")
    e("v_and_b32 v0, 63, v0")
    e("s_nop 0")
    e("v_readfirstlane_b32 s7, v1")
    e("s_nop 3")
    e("s_lshl_b32 s3, s2, 2")
    e("s_add_u32 s3, s3, s7")
    e("s_mul_i32 s4, s3, 58255")
    e("s_lshr_b32 s4, s4, 23")
    e("s_mul_i32 s5, s4, 144")
    e("s_sub_u32 s5, s3, s5")
    e("s_mul_i32 s6, s5, 1821")
    e("s_lshr_b32 s6, s6, 16")
    e("s_mul_i32 s8, s6, 36")
    e("s_sub_u32 s8, s5, s8")
    e("v_lshlrev_b32 v1, 4, v0")
    e("s_waitcnt lgkmcnt(0)")
    e("s_mul_i32 s9, s4, 2359296")
    e("s_lshl_b32 s10, s5, 10")
    e("s_add_u32 s9, s9, s10")
    e("s_add_u32 s12, s38, s9")
    e("s_addc_u32 s13, s39, 0")
    e("s_and_b32 s13, s13, 0xffff")
    e("s_mov_b32 s14, 2359296")
    e("s_mov_b32 s15, 0x20000")
    e("s_mov_b32 s16, s36")
    e("s_and_b32 s17, s37, 0xffff")
    e("s_mov_b32 s18, 2359296")
    e("s_mov_b32 s19, 0x20000")
    for p in range(16):
        e(f"s_mov_b32 s20, {p*147456}")
        e(f"buffer_load_dwordx4 {vr(8+4*p,4)}, v1, s[12:15], s20 offen")
    e("s_and_b32 s9, s4, 7")
    e("s_lshr_b32 s10, s4, 3")
    e("s_lshl_b32 s9, s9, 7")
    e("s_lshl_b32 s11, s6, 5")
    e("s_add_u32 s9, s9, s11")
    e("v_and_b32 v2, 31, v0")
    e("v_add_u32 v2, s9, v2")
    e("v_mul_u32_u24 v2, 2304, v2")
    e("v_lshrrev_b32 v3, 5, v0")
    e("v_lshl_add_u32 v2, v3, 4, v2")
    e("s_mul_i32 s10, s10, 1152")
    e("s_lshl_b32 s11, s8, 5")
    e("s_add_u32 s10, s10, s11")
    e("v_add_u32 v2, s10, v2")
    A = 80
    for p in range(16):
        e(f"s_waitcnt vmcnt({15-p})")
        for k in range(4):
            src = 8 + 4*p + k
            if p == 0:
                e(f"v_lshlrev_b32 v{A+2*k}, 16, v{src}")
                e(f"v_and_b32 v{A+2*k+1}, 0xffff0000, v{src}")
            else:
                e(f"v_lshlrev_b32 v{A+8+2*k}, 16, v{src}")
                e(f"v_and_b32 v{A+8+2*k+1}, 0xffff0000, v{src}")
        if p > 0:
            for k in range(8):
                e(f"v_add_f32 v{A+k}, v{A+k}, v{A+8+k}")
    for k in range(4):
        e(f"v_cvt_pk_bf16_f32 v{4+k}, v{A+2*k}, v{A+2*k+1}")
    e("s_nop 1")
    e("v_permlane32_swap_b32 v4, v6")
    e("v_permlane32_swap_b32 v5, v7")
    e("buffer_store_dwordx4 v[4:7], v2, s[16:19], 0 offen")
    e("s_waitcnt vmcnt(0)")
    e("L_rd_done:")
    e("s_endpgm")

def desc(name, vgpr, accum, sgpr=(100 if DIAG else 64)):
    e(f".amdhsa_kernel {name}")
    e(f"  .amdhsa_next_free_vgpr {vgpr}")
    e(f"  .amdhsa_next_free_sgpr {sgpr}")
    e(f"  .amdhsa_accum_offset {accum}")
    e("  .amdhsa_group_segment_fixed_size 0")
    e("  .amdhsa_kernarg_size 104")
    e("  .amdhsa_user_sgpr_count 2")
    e("  .amdhsa_user_sgpr_kernarg_segment_ptr 1")
    e("  .amdhsa_system_sgpr_workgroup_id_x 1")
    e(".end_amdhsa_kernel")

gen_attn()
gen_reduce()
e('.section .rodata,"a"')
e(".p2align 6")
desc("attn_kernel", 256, 256)
e(".p2align 6")
desc("reduce_kernel", 96, 96)

with open(sys.argv[1] if len(sys.argv) > 1 else OUT, "w") as f:
    f.write(HEADER + "\n".join(L) + "\n")
```

```python
import sys, os

NAME = "concat_heads__mha_block_cached__mha_block_cached__near_ridge"
OUT = f"cdna_kernels/{NAME}.s"
DIAG = int(os.environ.get("DIAG", "0"))
NT = " nt" if int(os.environ.get("NT", "0")) else ""
STF = os.environ.get("STF", "")
STF = (" " + STF) if STF else ""
PF = int(os.environ.get("PF", "0"))
RLF = os.environ.get("RLF", "")
RLF = (" " + RLF) if RLF else ""
PRIO = int(os.environ.get("PRIO", "0"))
STAG = int(os.environ.get("STAG", "0"))

L = []
def e(s=""):
    L.append(s)

def stamp(idx):
    if not DIAG:
        return
    e(f"s_memrealtime s[{64+2*idx}:{65+2*idx}]")
    e("s_waitcnt lgkmcnt(0)")

def stamp_flush(n, base, wreg="s51"):
    if not DIAG:
        return
    if os.environ.get("DBG"):
        lab = f"L_st_{len(L)}"
        e(f"s_cmp_lg_u32 {wreg}, 0")
        e(f"s_cbranch_scc1 {lab}")
        e("s_mov_b64 exec, 1")
        for i in range(1, n):
            e(f"s_sub_u32 s62, s{64+2*i}, s64")
            e("v_mov_b32 v20, s62")
            e(f"v_mov_b32 v22, {4*i}")
            e("global_atomic_umax v22, v20, s[94:95]")
            e(f"v_mov_b32 v22, {4*(i+4)}")
            e("global_atomic_add v22, v20, s[94:95]")
            e("s_nop 1")
        e("s_waitcnt vmcnt(0)")
        e(f"{lab}:")
        return
    lab = f"L_st_{len(L)}"
    e(f"s_cmp_lg_u32 {wreg}, 0")
    e(f"s_cbranch_scc1 {lab}")
    e("s_mov_b64 exec, 1")
    e("s_lshl_b32 s62, s2, 7")
    e(f"s_add_u32 s62, s62, {base}")
    e("v_mov_b32 v22, s62")
    for i in range(n):
        e(f"v_mov_b32 v20, s{64+2*i}")
        e(f"v_mov_b32 v21, s{65+2*i}")
        e(f"global_store_dwordx2 v22, v[20:21], s[38:39] offset:{8*i}")
        e("s_nop 1")
    e("s_waitcnt vmcnt(0)")
    e(f"{lab}:")

def vr(a, n):
    return f"v[{a}:{a+n-1}]"

HEADER = f"""; Kernarg layout for this problem (104 bytes, ptrs only, base s[0:1]):
; @launch kernel=attn_kernel grid=(256,1,1) block=(512,1,1) lds=163840
; @launch kernel=reduce_kernel grid=(576,1,1) block=(256,1,1) lds=0
.amdgcn_target "amdgcn-amd-amdhsa--gfx950"
.text
"""

class Cnt:
    def __init__(self, name):
        self.name = name
        self.ops = []
    def add(self, tag, n=1):
        self.ops += [tag] * n
        assert len(self.ops) <= (15 if self.name == "lgkmcnt" else 63), (self.name, len(self.ops))
    def wait(self, tag):
        idx = [i for i, t in enumerate(self.ops) if t == tag]
        if not idx:
            return
        last = max(idx)
        n = len(self.ops) - 1 - last
        e(f"s_waitcnt {self.name}({n})")
        self.ops = self.ops[last+1:]
    def wait_all(self):
        if self.ops:
            e(f"s_waitcnt {self.name}(0)")
        self.ops = []

VO = 24; SA = 88; SB = 120; VP = 152; FP = 168; VT = 200; VA = 212; VQ = 224
NFB = 8

def gen_attn():
    e(".globl attn_kernel")
    e(".p2align 8")
    e(".type attn_kernel,@function")
    e("attn_kernel:")
    e("s_cmp_ge_u32 s2, 256")
    e("s_cbranch_scc1 L_attn_done")
    e("s_load_dwordx2 s[38:39], s[0:1], 96")
    if DIAG: e("s_load_dwordx2 s[94:95], s[0:1], 88")
    e("s_and_b32 s3, s2, 7")
    e("s_and_b32 s4, s3, 1")
    e("s_lshr_b32 s3, s3, 1")
    e("s_lshr_b32 s47, s2, 3")
    e("s_and_b32 s52, s47, 3")
    e("s_lshl_b32 s3, s3, 2")
    e("s_add_u32 s52, s52, s3")
    e("s_lshr_b32 s5, s47, 2")
    e("s_mul_i32 s3, s4, 40")
    e("s_add_u32 s0, s0, s3")
    e("s_addc_u32 s1, s1, 0")
    e("s_load_dwordx8 s[28:35], s[0:1], 0")
    e("s_load_dwordx2 s[36:37], s[0:1], 32")
    e("v_mov_b32 v221, v0")
    e("v_lshrrev_b32 v1, 6, v0")
    e("v_and_b32 v0, 63, v0")
    e("s_nop 0")
    e("v_readfirstlane_b32 s51, v1")
    e("s_nop 3")
    e("s_and_b32 s7, s51, 3")
    e("s_lshr_b32 s53, s51, 2")
    e("s_lshl_b32 s6, s52, 1")
    e("s_add_u32 s6, s6, s53")
    e("s_lshl_b32 s54, s53, 16")
    e("v_lshrrev_b32 v1, 4, v0")
    e("v_and_b32 v2, 15, v0")
    e("v_lshlrev_b32 v3, 2, v1")
    e("v_xor_b32 v3, v3, v2")
    for j in range(4):
        e(f"v_xor_b32 v23, {j}, v3")
        e(f"v_lshlrev_b32 v23, 4, v23")
        e(f"v_lshl_add_u32 v{4+j}, v1, 8, v23")
        e(f"v_lshl_add_u32 v{18+j}, v1, 13, v23")
    e("v_lshrrev_b32 v22, 3, v0")
    e("v_mul_u32_u24 v22, 1152, v22")
    e("v_and_b32 v23, 7, v0")
    e("v_xor_b32 v23, v23, v1")
    e("v_lshl_add_u32 v200, v23, 4, v22")
    e("v_xor_b32 v23, 4, v23")
    e("v_lshl_add_u32 v201, v23, 4, v22")
    e("v_and_b32 v23, 7, v0")
    e("v_bfe_u32 v9, v0, 4, 1")
    e("v_lshlrev_b32 v9, 2, v9")
    e("v_xor_b32 v23, v23, v9")
    e("v_lshl_add_u32 v222, v23, 4, v22")
    e("v_and_b32 v23, 31, v0")
    e("v_lshrrev_b32 v22, 5, v0")
    e("v_and_b32 v8, 3, v23")
    e("v_lshlrev_b32 v8, 2, v8")
    e("v_bfe_u32 v9, v23, 2, 2")
    e("v_or_b32 v8, v8, v9")
    e("v_xor_b32 v8, v8, v22")
    e("v_lshlrev_b32 v8, 4, v8")
    e("v_lshl_add_u32 v8, v23, 8, v8")
    e("v_add_u32 v8, s54, v8")
    e("v_bfe_u32 v9, v23, 1, 3")
    e("v_xor_b32 v9, v9, v22")
    e("v_lshlrev_b32 v9, 4, v9")
    e("v_lshl_add_u32 v9, v23, 7, v9")
    e("s_lshl_b32 s3, s7, 12")
    e("v_add_u32 v202, s3, v9")
    for s in range(1, 4):
        e(f"v_xor_b32 v{202+s}, {s<<5}, v202")
    for s in range(4):
        e(f"v_add_u32 v{208+s}, 114688, v{202+s}")
    e("v_lshrrev_b32 v10, 2, v2")
    e("v_and_b32 v11, 1, v1")
    e("v_lshlrev_b32 v11, 1, v11")
    e("v_bfe_u32 v12, v2, 1, 1")
    e("v_or_b32 v11, v11, v12")
    e("v_and_b32 v12, 1, v2")
    e("v_lshlrev_b32 v12, 3, v12")
    e("v_add_u32 v12, s54, v12")
    e("v_xor_b32 v13, v11, v22")
    e("v_lshl_add_u32 v13, v10, 2, v13")
    e("v_lshl_add_u32 v13, v13, 4, v12")
    e("v_lshl_add_u32 v14, v22, 2, v10")
    e("v_lshl_add_u32 v9, v14, 8, v13")
    e("v_lshrrev_b32 v13, 1, v10")
    e("v_lshl_add_u32 v13, v13, 2, v11")
    e("v_lshl_add_u32 v13, v13, 4, v12")
    e("v_lshl_add_u32 v14, v22, 3, v10")
    e("v_lshl_add_u32 v223, v14, 7, v13")
    e("v_lshlrev_b32 v14, 1, v22")
    e("v_xor_b32 v13, v11, v14")
    e("v_lshl_add_u32 v13, v10, 2, v13")
    e("v_lshl_add_u32 v13, v13, 4, v12")
    e("v_lshl_add_u32 v14, v22, 3, v10")
    e("v_lshl_add_u32 v3, v14, 8, v13")
    for db in range(4):
        for u in range(2):
            e(f"v_xor_b32 v{VA+2*db+u}, {(db<<6)^(u<<4)}, v3")
    for s in range(8):
        e(f"v_xor_b32 v{10+s}, {s<<5}, v8")
    e("s_waitcnt lgkmcnt(0)")
    e("s_mul_i32 s3, s5, 147456")
    e("s_add_u32 s20, s28, s3")
    e("s_addc_u32 s21, s29, 0")
    e("s_and_b32 s21, s21, 0xffff")
    e("s_mov_b32 s22, 0" if os.environ.get("NOXW") else "s_mov_b32 s22, 147456")
    e("s_mov_b32 s23, 0x20000")
    e("s_lshl_b32 s3, s5, 5")
    e("s_add_u32 s3, s3, s6")
    e("s_lshl_b32 s3, s3, 18")
    e("s_add_u32 s8, s30, s3")
    e("s_addc_u32 s9, s31, 0")
    e("s_and_b32 s9, s9, 0xffff")
    e("s_mov_b32 s10, 262144")
    e("s_mov_b32 s11, 0x20000")
    e("s_add_u32 s12, s32, s3")
    e("s_addc_u32 s13, s33, 0")
    e("s_and_b32 s13, s13, 0xffff")
    e("s_mov_b32 s14, 262144")
    e("s_mov_b32 s15, 0x20000")
    e("s_mov_b32 s16, s34")
    e("s_and_b32 s17, s35, 0xffff")
    e("s_mov_b32 s18, 0" if os.environ.get("NOXW") else "s_mov_b32 s18, 4718592")
    e("s_mov_b32 s19, 0x20000")
    e("s_mov_b32 s56, s36")
    e("s_and_b32 s57, s37, 0xffff")
    e("s_mov_b32 s58, 0" if os.environ.get("NOXW") else "s_mov_b32 s58, 4718592")
    e("s_mov_b32 s59, 0x20000")
    e("s_lshl_b32 s3, s4, 3")
    e("s_add_u32 s3, s3, s5")
    e("s_lshl_b32 s3, s3, 4")
    e("s_add_u32 s3, s3, s52")
    e("s_mul_i32 s3, s3, 147456")
    e("s_mul_i32 s47, s7, 36864")
    e("s_add_u32 s3, s3, s47")
    e("s_add_u32 s24, s38, s3")
    e("s_addc_u32 s25, s39, 0")
    e("s_and_b32 s25, s25, 0xffff")
    e("s_mov_b32 s26, 36864")
    e("s_mov_b32 s27, 0x20000")
    e("s_lshl_b32 s44, s7, 12")
    e("s_add_u32 s55, s44, s54")
    e("s_mov_b32 s46, 0x3e0293ee")
    e("s_lshl_b32 s48, s7, 17")
    e("s_lshl_b32 s3, s6, 8")
    e("s_add_u32 s48, s48, s3")
    e("s_mul_i32 s49, s51, 18432")
    e("s_lshl_b32 s40, s51, 11")
    e("s_lshl_b32 s3, s52, 8")
    e("s_lshl_b32 s47, s7, 5")
    e("s_add_u32 s3, s3, s47")
    e("s_mul_i32 s60, s3, 1152")
    e("s_add_u32 s37, s60, 512")
    e("s_mul_i32 s3, s53, 640")
    e("s_add_u32 s60, s60, s3")

    if PRIO:
        e("s_cmp_eq_u32 s53, 0")
        e("s_cbranch_scc1 L_prio")
        e("s_setprio 1")
        e("L_prio:")
    lg = Cnt("lgkmcnt")

    dmaq = []
    SPREAD = int(os.environ.get("SPREAD", "1"))
    def push(chunk):
        if os.environ.get("NODMA") and ("s[20:23]" in chunk[-1] or "s[16:19]" in chunk[-1] or "s[56:59]" in chunk[-1]): return
        if SPREAD: dmaq.append(chunk)
        else:
            for x in chunk: e(x)
    def drain(n=None):
        k = 0
        while dmaq and (n is None or k < n):
            for x in dmaq.pop(0): e(x)
            k += 1
    vm = Cnt("vmcnt")
    XADDR = [131072, 147456, 49152, 114688]
    def slot_of(u):
        return (u % 3) if u < 9 else ((u - 9 + 3) & 3)
    def issue_x(T):
        for j in range(2):
            push([f"s_add_u32 s3, s40, {XADDR[T&3] + j*1024}", "s_mov_b32 m0, s3",
                  f"s_add_u32 s50, s49, {j*9216 + 128*T}", f"buffer_load_dwordx4 v{200+j}, s[20:23], s50 offen lds"])
        vm.add(f"x{T}", 2)
    def issue_static(u):
        slot = slot_of(u)
        if u < 9:
            for j in range(4):
                push([f"s_add_u32 s3, s55, {slot*16384 + j*1024}", "s_mov_b32 m0, s3",
                      f"s_add_u32 s50, s48, {(64*u + 4*j)*8192}", f"buffer_load_dwordx4 v{18+j}, s[16:19], s50 offen lds"])
        elif u <= 41:
            if u == 9: srd, i = 8, 0
            elif u & 1 == 0: srd, i = 8, (u - 10) // 2 + 1
            else: srd, i = 12, (u - 11) // 2
            for j in range(4):
                c = []
                if j == 0:
                    c = [f"s_add_u32 s3, s55, {slot*16384}", "s_mov_b32 m0, s3", f"s_add_u32 s50, s44, {i*16384}"]
                c += [f"buffer_load_dwordx4 v{4+j}, s[{srd}:{srd+3}], s50 offen offset:{j*1024}{NT} lds"]
                push(c)
        else:
            tau = u - 42
            for j in range(4):
                push([f"s_add_u32 s3, s55, {slot*16384 + j*1024}", "s_mov_b32 m0, s3",
                      (f"s_add_u32 s50, s60, {j*9216 + (tau&1)*128*1152 + (tau>>1)*128}" if tau < 8 else f"s_add_u32 s50, s37, {j*9216 + (tau&1)*128*1152}"),
                      f"buffer_load_dwordx4 v222, s[56:59], s50 offen lds"])
        vm.add(f"u{u}", 4)
    def kv_of(v):
        if v == 0: return 8, 0
        if v & 1: return 8, (v - 1) // 2 + 1
        return 12, (v - 2) // 2
    PFQ = int(os.environ.get("PFQ", "0"))
    def touch_static(v):
        if not (PF or PFQ): return
        srd, i = kv_of(v)
        push([f"s_add_u32 s41, s44, {i*16384}", f"buffer_load_dword v23, v221, s[{srd}:{srd+3}], s41 offen"])
        vm.add("pf", 1)
    def touch_dyn(srd, sreg):
        if not PF: return
        push([f"s_add_u32 s41, {sreg}, {(PF//2 - 1)*16384}", f"buffer_load_dword v23, v221, s[{srd}:{srd+3}], s41 offen"])
    def issue_dyn(srd, sreg, slot):
        for j in range(4):
            c = []
            if j == 0:
                c = [f"s_add_u32 s3, s55, {slot*16384}", "s_mov_b32 m0, s3", "s_nop 0"]
            c += [f"buffer_load_dwordx4 v{4+j}, s[{srd}:{srd+3}], {sreg} offen offset:{j*1024}{NT} lds"]
            if j == 3:
                c += [f"s_add_u32 {sreg}, {sreg}, 16384"]
            push(c)
        touch_dyn(srd, sreg)

    def sync(issue, vmwait=("s_waitcnt vmcnt(11)" if PF else "s_waitcnt vmcnt(8)")):
        drain()
        lg.wait_all()
        if callable(vmwait): vmwait()
        else: e(vmwait)
        e("s_barrier")
        if issue: issue()

    fcount = [0]
    def run_stream(mf, fillers, events, LA=6, pre=0):
        n_mm = sum(1 for m in mf if m.get('mm'))
        nxt = pre
        fi = 0
        for n in range(n_mm):
            for ev in events.get(n, []):
                ev()
            while nxt < len(mf) and nxt <= n + LA and mf[nxt].get('gate', 0) <= n:
                m = mf[nxt]
                m['buf'] = FP + 4 * (fcount[0] % NFB); fcount[0] += 1
                m['tag'] = f"f{fcount[0]}"
                m['rd'](m['buf'], m['tag'])
                nxt += 1
            m = mf[n]
            lg.wait(m['tag'])
            m['mm'](m['buf'])
            drain(1)
            k = fillers.get(n, [])
            for f in k:
                e(f)
        for ev in events.get(n_mm, []):
            ev()
        while nxt < len(mf):
            m = mf[nxt]
            m['buf'] = FP + 4 * (fcount[0] % NFB); fcount[0] += 1
            m['tag'] = f"f{fcount[0]}"
            m['rd'](m['buf'], m['tag'])
            nxt += 1
        return [m for m in mf if not m.get('mm')]

    def w_frag(slot, s, db, T, xf):
        def rd(buf, tag):
            for u in range(2):
                e(f"ds_read_b64_tr_b16 {vr(buf+2*u,2)}, v{VA+2*db+u} offset:{slot*16384 + s*4096 + u*1024}")
            lg.add(tag, 2)
        def mm(buf):
            c = "0" if (T == 0 and s == 0) else vr(VO + 16*db, 16)
            e(f"v_mfma_f32_32x32x16_bf16 {vr(VO+16*db,16)}, {vr(buf,4)}, {vr(xf+4*s,4)}, {c}")
        return dict(rd=rd, mm=mm)
    def k_frag(slot, s, kb, S):
        def rd(buf, tag):
            e(f"ds_read_b128 {vr(buf,4)}, v{10+s} offset:{slot*16384 + kb*8192}")
            lg.add(tag, 1)
        def mm(buf):
            c = "0" if s == 0 else vr(S+16*kb, 16)
            e(f"v_mfma_f32_32x32x16_bf16 {vr(S+16*kb,16)}, {vr(buf,4)}, {vr(VQ+4*s,4)}, {c}")
        return dict(rd=rd, mm=mm)
    def v_frag(slot, kb, t, db):
        def rd(buf, tag):
            for u in range(2):
                e(f"ds_read_b64_tr_b16 {vr(buf+2*u,2)}, v{VA+2*db+u} offset:{slot*16384 + kb*8192+t*4096+u*2048}")
            lg.add(tag, 2)
        def mm(buf):
            p = VP + 4*(2*kb + t)
            e(f"v_mfma_f32_32x32x16_bf16 {vr(VO+16*db,16)}, {vr(buf,4)}, {vr(p,4)}, {vr(VO+16*db,16)}")
        return dict(rd=rd, mm=mm)
    def strip(m):
        m2 = dict(m); m2.pop('mm'); return m2
    def carry(pend, full):
        for a, b in zip(pend, full):
            b['buf'] = a['buf']; b['tag'] = a['tag']
        return len(pend)

    stamp(0)
    if STAG:
        e("s_cmp_eq_u32 s53, 0")
        e("s_cbranch_scc1 L_stag0")
        for _ in range(STAG):
            e("s_barrier")
        e("L_stag0:")
    WARM = int(os.environ.get("WARM", "1"))
    e("s_lshr_b32 s61, s2, 3")
    e("s_and_b32 s63, s2, 7")
    e("s_lshr_b32 s63, s63, 1")
    e("s_mov_b32 s32, s28")
    e("s_and_b32 s33, s29, 0xffff")
    e("s_mov_b32 s34, 1179648")
    e("s_mov_b32 s35, 0x20000")
    e("s_mul_i32 s3, s61, 288")
    e("v_add_u32 v220, s3, v221")
    e("v_lshlrev_b32 v220, 7, v220")
    e("v_cmp_gt_u32 vcc, 288, v221")
    e("v_mov_b32 v23, 0x40000000")
    e("s_nop 1")
    e("v_cndmask_b32 v220, v23, v220, vcc")
    e("s_mul_i32 s3, s61, 18")
    e("v_lshrrev_b32 v22, 4, v221")
    e("v_add_u32 v22, s3, v22")
    e("v_lshlrev_b32 v22, 13, v22")
    e("v_and_b32 v206, 15, v221")
    e("v_lshl_add_u32 v22, v206, 7, v22")
    e("s_lshl_b32 s3, s63, 11")
    e("v_add_u32 v22, s3, v22")
    e("v_cndmask_b32 v22, v23, v22, vcc")
    e("v_lshlrev_b32 v221, 6, v0")
    issue_x(0); issue_static(0); issue_x(1); issue_static(1); issue_x(2); issue_x(3)
    drain()
    if int(os.environ.get("WARMQ", "0")):
        e("buffer_load_dword v207, v220, s[32:35], 0 offen")
        e("buffer_load_dword v206, v22, s[16:19], 0 offen")
        vm.add("warm", 2)
    XFB = [SA, SA + 16]
    def xread(T):
        for s in range(4):
            a = XADDR[T&3]
            if a < 65536:
                e(f"ds_read_b128 {vr(XFB[T&1]+4*s,4)}, v{202+s} offset:{a}")
            else:
                e(f"ds_read_b128 {vr(XFB[T&1]+4*s,4)}, v{208+s} offset:{a-114688}")
        lg.add(f"x{T}", 4)
    def vmw(*tags):
        def f():
            idx = [max([i for i, t in enumerate(vm.ops) if t == tg], default=-1) for tg in tags]
            tg = tags[idx.index(max(idx))]
            if WARM: pass
            vm.wait(tg)
        return f
    sync(None, vmwait=vmw("x0"))
    xread(0)
    ntouch = PF + 4
    tq = list(range(ntouch))
    def touch_some(k):
        for _ in range(k):
            if tq: touch_static(tq.pop(0))
    per = -(-(ntouch - 2) // 8)
    def touch_q(k):
        if PFQ:
            k0 = int(os.environ.get("PFQ0", "1"))
            if k0 <= k < k0 + PFQ: touch_static(k - k0)
            return
        if not PF: return
        if k <= 7:
            touch_some(max(min(per, len(tq) - 2), 0))
        else:
            touch_some(1)
    sync(lambda: (issue_static(2), issue_x(4), touch_q(0)), vmwait=vmw("u0", "x1"))
    pend = []
    for T in range(9):
        mf = [w_frag(T % 3, s, db, T, XFB[T&1]) for s in range(4) for db in range(4)]
        pre = carry(pend, mf)
        events = {}
        if T < 8:
            events[4] = [lambda T=T: xread(T + 1)]
            def iss(T=T):
                if T + 3 <= 8: issue_static(T + 3)
                if T + 5 <= 8: issue_x(T + 5)
                if T + 1 == 7: (issue_static(9), issue_static(10))
                if T + 1 == 8: issue_static(11)
                touch_q(T + 1)
            tags = (f"u{T+1}", f"x{T+2}") if T + 2 <= 8 else (f"u{T+1}",)
            events[12] = [lambda T=T, iss=iss, tags=tags: sync(iss, vmwait=vmw(*tags))]
            nxtf = [strip(w_frag((T + 1) % 3, 0, db, T + 1, XFB[(T+1)&1])) for db in range(4)]
            for m in nxtf: m['gate'] = 12
            mf += nxtf
        else:
            events[12] = [lambda: sync(lambda: (issue_static(12), touch_q(9)), vmwait=vmw("u9"))]
        if False:
            events.setdefault(13, []).append(lambda T=T: e(f"s_memrealtime s[{64+2*(4+(0,1,2,4,6,8).index(T))}:{65+2*(4+(0,1,2,4,6,8).index(T))}]"))
        pend = run_stream(mf, {}, events, pre=pre, LA=int(os.environ.get('QLA','4')))
    drain()
    stamp(1)
    e("s_nop 15")
    for db in range(4):
        for t in range(2):
            F = VQ + 4 * (2*db + t)
            a = VO + 16*db + 8*t
            for j in range(4):
                e(f"v_cvt_pk_bf16_f32 v{F+j}, v{a+2*j}, v{a+2*j+1}")
    e("s_nop 1")
    for sp in range(8):
        F = VQ + 4*sp
        e(f"v_permlane32_swap_b32 v{F}, v{F+2}")
        e(f"v_permlane32_swap_b32 v{F+1}, v{F+3}")
    for k in range(8):
        db, u = k >> 1, k & 1
        e(f"v_xor_b32 v{VA+k}, {(db<<6)^(u<<5)}, v9")
    e("v_mov_b32 v18, 0xff800000")
    e("v_mov_b32 v21, 0xff800000")
    e("v_mov_b32 v19, 0")
    e("s_add_u32 s43, s44, 16384")
    e("s_add_u32 s42, s44, 49152")
    e("s_mov_b32 s45, 0")

    def max_ops(S):
        ops = []
        for c in range(4):
            b0 = S + 8*c
            ops.append(f"v_max3_f32 v{VT+c}, v{b0}, v{b0+1}, v{b0+2}")
        for c in range(4):
            b0 = S + 8*c
            ops.append(f"v_max3_f32 v{VT+c}, v{VT+c}, v{b0+3}, v{b0+4}")
        for c in range(4):
            b0 = S + 8*c
            ops.append(f"v_max3_f32 v{VT+c}, v{VT+c}, v{b0+5}, v{b0+6}")
        for c in range(4):
            b0 = S + 8*c
            ops.append(f"v_max_f32 v{VT+c}, v{VT+c}, v{b0+7}")
        ops.append(f"v_max3_f32 v{VT}, v{VT}, v{VT+1}, v{VT+2}")
        ops.append(f"v_max_f32 v{VT}, v{VT}, v{VT+3}")
        ops.append(f"v_mov_b32 v{VT+1}, v{VT}")
        ops.append("s_nop 1")
        ops.append(f"v_permlane32_swap_b32 v{VT}, v{VT+1}")
        ops.append(f"v_max_f32 v{VT}, v{VT}, v{VT+1}")
        ops.append(f"v_mul_f32 v{VT+4}, s46, v{VT}")
        ops.append(f"v_cmp_gt_f32 vcc, v{VT+4}, v21")
        return ops
    lab_ctr = [0]
    def rescale_check():
        lab = f"L_nors_{lab_ctr[0]}"; lab_ctr[0] += 1
        e(f"s_cbranch_vccz {lab}")
        e("s_nop 15")
        e(f"v_max_f32 v{VT+5}, v18, v{VT+4}")
        e(f"v_sub_f32 v{VT+6}, v18, v{VT+5}")
        e(f"v_exp_f32 v20, v{VT+6}")
        e(f"v_mov_b32 v18, v{VT+5}")
        e(f"v_add_f32 v21, 0x41000000, v{VT+5}")
        e(f"v_mul_f32 v19, v20, v19")
        for i in range(64):
            e(f"v_mul_f32 v{VO+i}, v20, v{VO+i}")
        e(f"{lab}:")
    def exp_ops(S, kb):
        b0 = S + 16*kb
        acc = [VT+8+2*kb, VT+9+2*kb]
        ops = []
        G = 4
        for gidx in range(6):
            if gidx < 4:
                for k in range(G):
                    i = b0 + G*gidx + k
                    ops.append(f"v_fma_f32 v{i}, v{i}, s46, -v18")
            if 1 <= gidx < 5:
                for k in range(G):
                    i = b0 + G*(gidx-1) + k
                    ops.append(f"v_exp_f32 v{i}, v{i}")
            if 2 <= gidx:
                g2 = gidx - 2
                i = b0 + G*g2
                if g2 == 0:
                    ops.append(f"v_add_f32 v{acc[0]}, v{i}, v{i+1}")
                    ops.append(f"v_add_f32 v{acc[1]}, v{i+2}, v{i+3}")
                else:
                    ops.append(f"v_add_f32 v{acc[0]}, v{acc[0]}, v{i}")
                    ops.append(f"v_add_f32 v{acc[1]}, v{acc[1]}, v{i+2}")
                    ops.append(f"v_add_f32 v{acc[0]}, v{acc[0]}, v{i+1}")
                    ops.append(f"v_add_f32 v{acc[1]}, v{acc[1]}, v{i+3}")
                p = VP + 8*kb + 2*g2
                ops.append(f"v_cvt_pk_bf16_f32 v{p}, v{i}, v{i+1}")
                ops.append(f"v_cvt_pk_bf16_f32 v{p+1}, v{i+2}, v{i+3}")
        ops.append(f"v_add_f32 v{acc[0]}, v{acc[0]}, v{acc[1]}")
        ops.append(f"v_add_f32 v19, v19, v{acc[0]}")
        return ops
    def spread(ops, positions):
        d = {}
        n = len(positions)
        per = len(ops) / n
        for k, op in enumerate(ops):
            p = positions[min(n-1, int(k / per))]
            d.setdefault(p, []).append(op)
        return d

    mf = [k_frag(3, s, kb, SA) for s in range(8) for kb in range(2)]
    zero_ops = [f"v_mov_b32 v{VO+i}, 0" for i in range(64)]
    e("s_nop 1")
    nxtf = [strip(k_frag(0, s, kb, SB)) for s in range(2) for kb in range(2)]
    for m in nxtf: m['gate'] = 12
    events = {12: [lambda: sync(lambda: issue_dyn(12, "s43", 3), vmwait=vmw("u10"))]}
    pend = run_stream(mf + nxtf, spread(zero_ops, list(range(16))), events)
    drain()
    e("s_nop 7")
    e("s_nop 7")
    for op in max_ops(SA):
        e(op)

    def iteration(par, pend, issue_mid, issue_end, doS=True, nextS=True, end_sync=True, wmid=None, wend=None):
        Scur, Snx = (SA, SB) if par == 0 else (SB, SA)
        kslot, vslot, k2slot = (0, 1, 2) if par == 0 else (2, 3, 0)
        rescale_check()
        ex0 = exp_ops(Scur, 0); ex1 = exp_ops(Scur, 1)
        mf = []
        events = {}
        fill = {}
        if doS:
            mf += [k_frag(kslot, s, kb, Snx) for s in range(8) for kb in range(2)]
            pre = carry(pend, mf)
            base = 16
            cut = 24
            fill.update(spread(ex0 + ex1[:cut], list(range(0, 15))))
            events[12] = [lambda: sync(issue_mid, **({'vmwait': wmid} if wmid else {}))]
            vgate = 12
        else:
            pre = 0
            base = 0
            cut = 24
            sync(issue_mid, **({'vmwait': wmid} if wmid else {}))
            vgate = 0
        vf = [v_frag(vslot, kb, t, db) for kb in range(2) for t in range(2) for db in range(4)]
        for m in vf: m['gate'] = vgate
        mf += vf
        if not doS:
            events[0] = [lambda: [e(op) for op in ex0 + ex1[:cut]] and None]
        for p, ops in spread(ex1[cut:], list(range(base, base + 7))).items():
            fill.setdefault(p, []).extend(ops)
        if nextS:
            for p, ops in spread(max_ops(Snx), list(range(base + 8, base + 16))).items():
                fill.setdefault(p, []).extend(ops)
        if end_sync:
            events[base + 12] = [lambda: sync(issue_end, **({'vmwait': wend} if wend else {}))]
        if doS and nextS and end_sync == True:
            nx = [strip(k_frag(k2slot, s, kb, Scur)) for s in range(2) for kb in range(2)]
            for m in nx: m['gate'] = base + 12
            mf += nx
        r = run_stream(mf, fill, events, pre=pre)
        drain()
        return r

    st0 = (len(lg.ops), fcount[0] % NFB, [ (m['buf']) for m in pend])
    e("L_loop:")
    pend = iteration(0, pend, lambda: issue_dyn(8, "s42", 0), lambda: issue_dyn(12, "s43", 1))
    pend = iteration(1, pend, lambda: issue_dyn(8, "s42", 2), lambda: issue_dyn(12, "s43", 3))
    st1 = (len(lg.ops), fcount[0] % NFB, [ (m['buf']) for m in pend])
    assert st0 == st1, (st0, st1)
    assert not dmaq
    e("s_add_u32 s45, s45, 1")
    e("s_cmp_lt_u32 s45, 7")
    e("s_cbranch_scc1 L_loop")
    pfo = ["pf"] if PF else []
    vm.ops = ["v14"]*4 + pfo + ["k16"]*4 + pfo + ["v15"]*4 + pfo
    pend = iteration(0, pend, lambda: issue_static(42), lambda: issue_static(43), end_sync="nok", wmid=vmw("v14"), wend=vmw("k16"))
    drain()
    if WARM:
        e("s_cmp_ge_u32 s51, 5")
        e("s_cbranch_scc1 L_nowarm2")
        e("s_mul_i32 s3, s63, 1179648")
        e("buffer_load_dword v220, v220, s[56:59], s3 offen")
        e("L_nowarm2:")
    pend = iteration(1, pend, lambda: issue_static(44), None, doS=False, nextS=False, end_sync=False, wmid=vmw("v15"))
    drain()
    stamp(2)
    e(f"v_mov_b32 v{VT+1}, v19")
    e("s_nop 1")
    e(f"v_permlane32_swap_b32 v19, v{VT+1}")
    e(f"v_add_f32 v19, v19, v{VT+1}")
    e("v_rcp_f32 v20, v19")
    e("v_lshlrev_b32 v1, 4, v0")
    XS = slot_of(41)*16384
    e("s_lshl_b32 s3, s51, 12")
    e("s_add_u32 s3, s3, 131072")
    e("v_add_u32 v2, s3, v1")
    e(f"s_add_u32 s3, s55, {XS}")
    e("v_add_u32 v3, s3, v1")
    e("s_nop 7")
    for i in range(64):
        e(f"v_mul_f32 v{VO+i}, v20, v{VO+i}")
    OWN = SA
    for db in range(4):
        for t in range(2):
            F = OWN + 4 * (2*db + t)
            a = VO + 16*db + 8*t
            for j in range(4):
                e(f"v_cvt_pk_bf16_f32 v{F+j}, v{a+2*j}, v{a+2*j+1}")
    e("s_nop 1")
    for sp in range(8):
        F = OWN + 4*sp
        e(f"v_permlane32_swap_b32 v{F}, v{F+2}")
        e(f"v_permlane32_swap_b32 v{F+1}, v{F+3}")
    if STAG:
        e("s_cmp_eq_u32 s53, 1")
        e("s_cbranch_scc1 L_stag1")
        for _ in range(STAG):
            e("s_barrier")
        e("L_stag1:")
    e("s_barrier")
    for k in range(4):
        e(f"ds_write_b128 v2, {vr(OWN+4*k,4)} offset:{k*1024}")
        e(f"ds_write_b128 v3, {vr(OWN+16+4*k,4)} offset:{k*1024}")
    e("s_add_u32 s3, s44, 131072")
    e("v_add_u32 v2, s3, v1")
    e(f"s_add_u32 s3, s44, {XS}")
    e("v_add_u32 v3, s3, v1")
    e("v_add_u32 v21, 65536, v3")
    e("s_waitcnt lgkmcnt(0)")
    e("s_barrier")
    H = [VQ, SB]
    for hh in range(2):
        for k in range(4):
            e(f"ds_read_b128 {vr(H[hh]+4*k,4)}, v2 offset:{hh*16384 + k*1024}")
        for k in range(4):
            e(f"ds_read_b128 {vr(H[hh]+16+4*k,4)}, v{3 if hh == 0 else 21} offset:{k*1024}")
        e("s_waitcnt lgkmcnt(0)")
    e("v_xor_b32 v11, 64, v223")
    e("v_mov_b32 v10, v223")
    e("s_lshl_b32 s3, s53, 6")
    e("v_xor_b32 v12, s3, v223")
    PK = SA
    def o_frag(slot, sp, nb, hh, acc):
        def rd(buf, tag):
            for u in range(2):
                e(f"ds_read_b64_tr_b16 {vr(buf+2*u,2)}, v{10+nb} offset:{slot*16384 + sp*2048 + u*512}")
            lg.add(tag, 2)
        def mm(buf):
            a = acc + 16*(nb & 1)
            c = "0" if (hh == 0 and sp == 0) else vr(a, 16)
            e(f"v_mfma_f32_32x32x16_bf16 {vr(a,16)}, {vr(buf,4)}, {vr(H[hh]+4*sp,4)}, {c}")
        return dict(rd=rd, mm=mm)
    def store_ops(ntl):
        acc = VO + 32 * (ntl & 1)
        def f():
            drain()
            nbs = range(2) if ntl < 4 else range(1)
            for nb in nbs:
                for j in range(8):
                    e(f"v_cvt_pk_bf16_f32 v{PK+8*nb+j}, v{acc+16*nb+2*j}, v{acc+16*nb+2*j+1}")
            if ntl < 4:
                e(f"s_mul_i32 s61, s53, 20480")
                e(f"s_add_u32 s61, s61, {ntl*4096}")
            else:
                e(f"s_lshl_b32 s61, s53, 11")
                e(f"s_add_u32 s61, s61, 16384")
            for nb in nbs:
                for tt in range(2):
                    e(f"buffer_store_dwordx4 {vr(PK+8*nb+4*tt,4)}, v1, s[24:27], s61 offen offset:{nb*2048 + tt*1024}{STF}")
                    vm.add("st", 1)
        return f
    def osync(tau):
        def iss():
            if tau + 3 < 10:
                issue_static(42 + tau + 3)
        sync(iss, vmwait=lambda: vm.wait(f"u{42+tau}"))
    if DIAG and os.environ.get("TAILST"): stamp(4)
    osync(0)
    if DIAG and os.environ.get("TAILST"): stamp(5)
    pend = []
    for tau in range(10):
        slot = slot_of(42 + tau)
        ntl = tau >> 1; hh = tau & 1
        acc = VO + 32 * (ntl & 1)
        def frs(tau):
            return [(sp, nb) for sp in range(8) for nb in range(2)] if tau < 8 else [(sp, 2) for sp in range(8)]
        mf = [o_frag(slot, sp, nb, hh, acc) for sp, nb in frs(tau)]
        nm = len(mf)
        pre = carry(pend, mf)
        events = {}
        if hh == 0 and ntl > 0:
            events[6 if nm == 16 else 3] = [store_ops(ntl - 1)]
        if tau < 9:
            events[nm - 4] = [lambda tau=tau: osync(tau + 1)]
            nx = [strip(o_frag(slot_of(43 + tau), sp, nb, 0, 0)) for sp, nb in frs(tau + 1)[:4]]
            for m in nx: m['gate'] = nm - 4
            mf += nx
        if DIAG and os.environ.get("TAILST") and tau in (2, 5, 8):
            events.setdefault(13, []).append(lambda tau=tau: e(f"s_memrealtime s[{64+2*(6+(2,5,8).index(tau))}:{65+2*(6+(2,5,8).index(tau))}]"))
        pend = run_stream(mf, {}, events, pre=pre)
    e("s_nop 15")
    store_ops(4)()
    if DIAG and os.environ.get("TAILST"): stamp(9)
    e("s_waitcnt vmcnt(0)")
    stamp(3)
    stamp_flush(4, 67108864)
    e("L_attn_done:")
    e("s_endpgm")

def gen_reduce():
    e(".globl reduce_kernel")
    e(".p2align 8")
    e(".type reduce_kernel,@function")
    e("reduce_kernel:")
    e("s_cmp_ge_u32 s2, 576")
    e("s_cbranch_scc1 L_rd_done")
    e("s_load_dwordx2 s[38:39], s[0:1], 96")
    e("s_load_dwordx2 s[36:37], s[0:1], 80")
    e("v_lshrrev_b32 v1, 6, v0")
    e("v_and_b32 v0, 63, v0")
    e("s_nop 0")
    e("v_readfirstlane_b32 s7, v1")
    e("s_nop 3")
    e("s_lshl_b32 s3, s2, 2")
    e("s_add_u32 s3, s3, s7")
    e("s_mul_i32 s4, s3, 58255")
    e("s_lshr_b32 s4, s4, 23")
    e("s_mul_i32 s5, s4, 144")
    e("s_sub_u32 s5, s3, s5")
    e("s_mul_i32 s6, s5, 1821")
    e("s_lshr_b32 s6, s6, 16")
    e("s_mul_i32 s8, s6, 36")
    e("s_sub_u32 s8, s5, s8")
    e("v_lshlrev_b32 v1, 4, v0")
    e("s_waitcnt lgkmcnt(0)")
    e("s_mul_i32 s9, s4, 2359296")
    e("s_lshl_b32 s10, s5, 10")
    e("s_add_u32 s9, s9, s10")
    e("s_add_u32 s12, s38, s9")
    e("s_addc_u32 s13, s39, 0")
    e("s_and_b32 s13, s13, 0xffff")
    e("s_mov_b32 s14, 2359296")
    e("s_mov_b32 s15, 0x20000")
    e("s_mov_b32 s16, s36")
    e("s_and_b32 s17, s37, 0xffff")
    e("s_mov_b32 s18, 2359296")
    e("s_mov_b32 s19, 0x20000")
    for p in range(16):
        e(f"s_mov_b32 s20, {p*147456}")
        e(f"buffer_load_dwordx4 {vr(8+4*p,4)}, v1, s[12:15], s20 offen{RLF}")
    e("s_and_b32 s9, s4, 7")
    e("s_lshr_b32 s10, s4, 3")
    e("s_lshl_b32 s9, s9, 7")
    e("s_lshl_b32 s11, s6, 5")
    e("s_add_u32 s9, s9, s11")
    e("v_and_b32 v2, 31, v0")
    e("v_add_u32 v2, s9, v2")
    e("v_mul_u32_u24 v2, 2304, v2")
    e("v_lshrrev_b32 v3, 5, v0")
    e("v_lshl_add_u32 v2, v3, 4, v2")
    e("s_mul_i32 s10, s10, 1152")
    e("s_lshl_b32 s11, s8, 5")
    e("s_add_u32 s10, s10, s11")
    e("v_add_u32 v2, s10, v2")
    A = 80
    for p in range(16):
        e(f"s_waitcnt vmcnt({15-p})")
        for k in range(4):
            src = 8 + 4*p + k
            if p == 0:
                e(f"v_lshlrev_b32 v{A+2*k}, 16, v{src}")
                e(f"v_and_b32 v{A+2*k+1}, 0xffff0000, v{src}")
            else:
                e(f"v_lshlrev_b32 v{A+8+2*k}, 16, v{src}")
                e(f"v_and_b32 v{A+8+2*k+1}, 0xffff0000, v{src}")
        if p > 0:
            for k in range(8):
                e(f"v_add_f32 v{A+k}, v{A+k}, v{A+8+k}")
    for k in range(4):
        e(f"v_cvt_pk_bf16_f32 v{4+k}, v{A+2*k}, v{A+2*k+1}")
    e("s_nop 1")
    e("v_permlane32_swap_b32 v4, v6")
    e("v_permlane32_swap_b32 v5, v7")
    e("buffer_store_dwordx4 v[4:7], v2, s[16:19], 0 offen")
    e("s_waitcnt vmcnt(0)")
    e("L_rd_done:")
    e("s_endpgm")

def desc(name, vgpr, accum, sgpr=(100 if DIAG else 64)):
    e(f".amdhsa_kernel {name}")
    e(f"  .amdhsa_next_free_vgpr {vgpr}")
    e(f"  .amdhsa_next_free_sgpr {sgpr}")
    e(f"  .amdhsa_accum_offset {accum}")
    e("  .amdhsa_group_segment_fixed_size 0")
    e("  .amdhsa_kernarg_size 104")
    e("  .amdhsa_user_sgpr_count 2")
    e("  .amdhsa_user_sgpr_kernarg_segment_ptr 1")
    e("  .amdhsa_system_sgpr_workgroup_id_x 1")
    e(".end_amdhsa_kernel")

gen_attn()
gen_reduce()
e('.section .rodata,"a"')
e(".p2align 6")
desc("attn_kernel", 256, 256)
e(".p2align 6")
desc("reduce_kernel", 96, 96)

with open(sys.argv[1] if len(sys.argv) > 1 else OUT, "w") as f:
    f.write(HEADER + "\n".join(L) + "\n")
```

```python
import sys, os

NAME = "concat_heads__mha_block_cached__mha_block_cached__near_ridge"
OUT = f"cdna_kernels/{NAME}.s"
DIAG = int(os.environ.get("DIAG", "0"))
NT = " nt" if int(os.environ.get("NT", "0")) else ""
STF = os.environ.get("STF", "")
STF = (" " + STF) if STF else ""
PF = int(os.environ.get("PF", "0"))
RLF = os.environ.get("RLF", "")
RLF = (" " + RLF) if RLF else ""
PRIO = int(os.environ.get("PRIO", "0"))
STAG = int(os.environ.get("STAG", "0"))

L = []
def e(s=""):
    L.append(s)

def stamp(idx):
    if not DIAG:
        return
    e(f"s_memrealtime s[{64+2*idx}:{65+2*idx}]")
    e("s_waitcnt lgkmcnt(0)")

def stamp_flush(n, base, wreg="s51"):
    if not DIAG:
        return
    if os.environ.get("DBG"):
        lab = f"L_st_{len(L)}"
        e(f"s_cmp_lg_u32 {wreg}, 0")
        e(f"s_cbranch_scc1 {lab}")
        e("s_mov_b64 exec, 1")
        for i in range(1, n):
            e(f"s_sub_u32 s62, s{64+2*i}, s64")
            e("v_mov_b32 v20, s62")
            e(f"v_mov_b32 v22, {4*i}")
            e("global_atomic_umax v22, v20, s[94:95]")
            e(f"v_mov_b32 v22, {4*(i+4)}")
            e("global_atomic_add v22, v20, s[94:95]")
            e("s_nop 1")
        e("s_waitcnt vmcnt(0)")
        e(f"{lab}:")
        return
    lab = f"L_st_{len(L)}"
    e(f"s_cmp_lg_u32 {wreg}, 0")
    e(f"s_cbranch_scc1 {lab}")
    e("s_mov_b64 exec, 1")
    e("s_lshl_b32 s62, s2, 7")
    e(f"s_add_u32 s62, s62, {base}")
    e("v_mov_b32 v22, s62")
    for i in range(n):
        e(f"v_mov_b32 v20, s{64+2*i}")
        e(f"v_mov_b32 v21, s{65+2*i}")
        e(f"global_store_dwordx2 v22, v[20:21], s[38:39] offset:{8*i}")
        e("s_nop 1")
    e("s_waitcnt vmcnt(0)")
    e(f"{lab}:")

def vr(a, n):
    return f"v[{a}:{a+n-1}]"

HEADER = f"""; Kernarg layout for this problem (104 bytes, ptrs only, base s[0:1]):
; @launch kernel=attn_kernel grid=(256,1,1) block=(512,1,1) lds=163840
; @launch kernel=reduce_kernel grid=(576,1,1) block=(256,1,1) lds=0
.amdgcn_target "amdgcn-amd-amdhsa--gfx950"
.text
"""

class Cnt:
    def __init__(self, name):
        self.name = name
        self.ops = []
    def add(self, tag, n=1):
        self.ops += [tag] * n
        assert len(self.ops) <= (15 if self.name == "lgkmcnt" else 63), (self.name, len(self.ops))
    def wait(self, tag):
        idx = [i for i, t in enumerate(self.ops) if t == tag]
        if not idx:
            return
        last = max(idx)
        n = len(self.ops) - 1 - last
        e(f"s_waitcnt {self.name}({n})")
        self.ops = self.ops[last+1:]
    def wait_all(self):
        if self.ops:
            e(f"s_waitcnt {self.name}(0)")
        self.ops = []

VO = 24; SA = 88; SB = 120; VP = 152; FP = 168; VT = 200; VA = 212; VQ = 224
NFB = 8

def gen_attn():
    e(".globl attn_kernel")
    e(".p2align 8")
    e(".type attn_kernel,@function")
    e("attn_kernel:")
    e("s_cmp_ge_u32 s2, 256")
    e("s_cbranch_scc1 L_attn_done")
    e("s_load_dwordx2 s[38:39], s[0:1], 96")
    if DIAG: e("s_load_dwordx2 s[94:95], s[0:1], 88")
    e("s_and_b32 s3, s2, 7")
    e("s_and_b32 s4, s3, 1")
    e("s_lshr_b32 s3, s3, 1")
    e("s_lshr_b32 s47, s2, 3")
    e("s_and_b32 s52, s47, 3")
    e("s_lshl_b32 s3, s3, 2")
    e("s_add_u32 s52, s52, s3")
    e("s_lshr_b32 s5, s47, 2")
    e("s_mul_i32 s3, s4, 40")
    e("s_add_u32 s0, s0, s3")
    e("s_addc_u32 s1, s1, 0")
    e("s_load_dwordx8 s[28:35], s[0:1], 0")
    e("s_load_dwordx2 s[36:37], s[0:1], 32")
    e("v_mov_b32 v221, v0")
    e("v_lshrrev_b32 v1, 6, v0")
    e("v_and_b32 v0, 63, v0")
    e("s_nop 0")
    e("v_readfirstlane_b32 s51, v1")
    e("s_nop 3")
    e("s_and_b32 s7, s51, 3")
    e("s_lshr_b32 s53, s51, 2")
    e("s_lshl_b32 s6, s52, 1")
    e("s_add_u32 s6, s6, s53")
    e("s_lshl_b32 s54, s53, 16")
    e("v_lshrrev_b32 v1, 4, v0")
    e("v_and_b32 v2, 15, v0")
    e("v_lshlrev_b32 v3, 2, v1")
    e("v_xor_b32 v3, v3, v2")
    for j in range(4):
        e(f"v_xor_b32 v23, {j}, v3")
        e(f"v_lshlrev_b32 v23, 4, v23")
        e(f"v_lshl_add_u32 v{4+j}, v1, 8, v23")
        e(f"v_lshl_add_u32 v{18+j}, v1, 13, v23")
    e("v_lshrrev_b32 v22, 3, v0")
    e("v_mul_u32_u24 v22, 1152, v22")
    e("v_and_b32 v23, 7, v0")
    e("v_xor_b32 v23, v23, v1")
    e("v_lshl_add_u32 v200, v23, 4, v22")
    e("v_xor_b32 v23, 4, v23")
    e("v_lshl_add_u32 v201, v23, 4, v22")
    e("v_and_b32 v23, 7, v0")
    e("v_bfe_u32 v9, v0, 4, 1")
    e("v_lshlrev_b32 v9, 2, v9")
    e("v_xor_b32 v23, v23, v9")
    e("v_lshl_add_u32 v222, v23, 4, v22")
    e("v_and_b32 v23, 31, v0")
    e("v_lshrrev_b32 v22, 5, v0")
    e("v_and_b32 v8, 3, v23")
    e("v_lshlrev_b32 v8, 2, v8")
    e("v_bfe_u32 v9, v23, 2, 2")
    e("v_or_b32 v8, v8, v9")
    e("v_xor_b32 v8, v8, v22")
    e("v_lshlrev_b32 v8, 4, v8")
    e("v_lshl_add_u32 v8, v23, 8, v8")
    e("v_add_u32 v8, s54, v8")
    e("v_bfe_u32 v9, v23, 1, 3")
    e("v_xor_b32 v9, v9, v22")
    e("v_lshlrev_b32 v9, 4, v9")
    e("v_lshl_add_u32 v9, v23, 7, v9")
    e("s_lshl_b32 s3, s7, 12")
    e("v_add_u32 v202, s3, v9")
    for s in range(1, 4):
        e(f"v_xor_b32 v{202+s}, {s<<5}, v202")
    for s in range(4):
        e(f"v_add_u32 v{208+s}, 114688, v{202+s}")
    e("v_lshrrev_b32 v10, 2, v2")
    e("v_and_b32 v11, 1, v1")
    e("v_lshlrev_b32 v11, 1, v11")
    e("v_bfe_u32 v12, v2, 1, 1")
    e("v_or_b32 v11, v11, v12")
    e("v_and_b32 v12, 1, v2")
    e("v_lshlrev_b32 v12, 3, v12")
    e("v_add_u32 v12, s54, v12")
    e("v_xor_b32 v13, v11, v22")
    e("v_lshl_add_u32 v13, v10, 2, v13")
    e("v_lshl_add_u32 v13, v13, 4, v12")
    e("v_lshl_add_u32 v14, v22, 2, v10")
    e("v_lshl_add_u32 v9, v14, 8, v13")
    e("v_lshrrev_b32 v13, 1, v10")
    e("v_lshl_add_u32 v13, v13, 2, v11")
    e("v_lshl_add_u32 v13, v13, 4, v12")
    e("v_lshl_add_u32 v14, v22, 3, v10")
    e("v_lshl_add_u32 v223, v14, 7, v13")
    e("v_lshlrev_b32 v14, 1, v22")
    e("v_xor_b32 v13, v11, v14")
    e("v_lshl_add_u32 v13, v10, 2, v13")
    e("v_lshl_add_u32 v13, v13, 4, v12")
    e("v_lshl_add_u32 v14, v22, 3, v10")
    e("v_lshl_add_u32 v3, v14, 8, v13")
    for db in range(4):
        for u in range(2):
            e(f"v_xor_b32 v{VA+2*db+u}, {(db<<6)^(u<<4)}, v3")
    for s in range(8):
        e(f"v_xor_b32 v{10+s}, {s<<5}, v8")
    e("s_waitcnt lgkmcnt(0)")
    e("s_mul_i32 s3, s5, 147456")
    e("s_add_u32 s20, s28, s3")
    e("s_addc_u32 s21, s29, 0")
    e("s_and_b32 s21, s21, 0xffff")
    e("s_mov_b32 s22, 0" if os.environ.get("NOXW") else "s_mov_b32 s22, 147456")
    e("s_mov_b32 s23, 0x20000")
    e("s_lshl_b32 s3, s5, 5")
    e("s_add_u32 s3, s3, s6")
    e("s_lshl_b32 s3, s3, 18")
    e("s_add_u32 s8, s30, s3")
    e("s_addc_u32 s9, s31, 0")
    e("s_and_b32 s9, s9, 0xffff")
    e("s_mov_b32 s10, 262144")
    e("s_mov_b32 s11, 0x20000")
    e("s_add_u32 s12, s32, s3")
    e("s_addc_u32 s13, s33, 0")
    e("s_and_b32 s13, s13, 0xffff")
    e("s_mov_b32 s14, 262144")
    e("s_mov_b32 s15, 0x20000")
    e("s_mov_b32 s16, s34")
    e("s_and_b32 s17, s35, 0xffff")
    e("s_mov_b32 s18, 0" if os.environ.get("NOXW") else "s_mov_b32 s18, 4718592")
    e("s_mov_b32 s19, 0x20000")
    e("s_mov_b32 s56, s36")
    e("s_and_b32 s57, s37, 0xffff")
    e("s_mov_b32 s58, 0" if os.environ.get("NOXW") else "s_mov_b32 s58, 4718592")
    e("s_mov_b32 s59, 0x20000")
    e("s_lshl_b32 s3, s4, 3")
    e("s_add_u32 s3, s3, s5")
    e("s_lshl_b32 s3, s3, 4")
    e("s_add_u32 s3, s3, s52")
    e("s_mul_i32 s3, s3, 147456")
    e("s_mul_i32 s47, s7, 36864")
    e("s_add_u32 s3, s3, s47")
    e("s_add_u32 s24, s38, s3")
    e("s_addc_u32 s25, s39, 0")
    e("s_and_b32 s25, s25, 0xffff")
    e("s_mov_b32 s26, 36864")
    e("s_mov_b32 s27, 0x20000")
    e("s_lshl_b32 s44, s7, 12")
    e("s_add_u32 s55, s44, s54")
    e("s_mov_b32 s46, 0x3e0293ee")
    e("s_lshl_b32 s48, s7, 17")
    e("s_lshl_b32 s3, s6, 8")
    e("s_add_u32 s48, s48, s3")
    e("s_mul_i32 s49, s51, 18432")
    e("s_lshl_b32 s40, s51, 11")
    e("s_lshl_b32 s3, s52, 8")
    e("s_lshl_b32 s47, s7, 5")
    e("s_add_u32 s3, s3, s47")
    e("s_mul_i32 s60, s3, 1152")
    e("s_add_u32 s37, s60, 512")
    e("s_mul_i32 s3, s53, 640")
    e("s_add_u32 s60, s60, s3")

    if PRIO:
        e("s_cmp_eq_u32 s53, 0")
        e("s_cbranch_scc1 L_prio")
        e("s_setprio 1")
        e("L_prio:")
    lg = Cnt("lgkmcnt")

    dmaq = []
    SPREAD = int(os.environ.get("SPREAD", "1"))
    def push(chunk):
        if os.environ.get("NODMA") and ("s[20:23]" in chunk[-1] or "s[16:19]" in chunk[-1] or "s[56:59]" in chunk[-1]): return
        if SPREAD: dmaq.append(chunk)
        else:
            for x in chunk: e(x)
    def drain(n=None):
        k = 0
        while dmaq and (n is None or k < n):
            for x in dmaq.pop(0): e(x)
            k += 1
    vm = Cnt("vmcnt")
    XADDR = [131072, 147456, 131072, 147456]
    def slot_of(u):
        return (u % 3) if u < 9 else ((u - 9 + 3) & 3)
    def issue_x(T):
        for j in range(2):
            push([f"s_add_u32 s3, s40, {XADDR[T&3] + j*1024}", "s_mov_b32 m0, s3",
                  f"s_add_u32 s50, s49, {j*9216 + 128*T}", f"buffer_load_dwordx4 v{200+j}, s[20:23], s50 offen lds"])
        vm.add(f"x{T}", 2)
    def issue_static(u):
        slot = slot_of(u)
        if u < 9:
            for j in range(4):
                push([f"s_add_u32 s3, s55, {slot*16384 + j*1024}", "s_mov_b32 m0, s3",
                      f"s_add_u32 s50, s48, {(64*u + 4*j)*8192}", f"buffer_load_dwordx4 v{18+j}, s[16:19], s50 offen lds"])
        elif u <= 41:
            if u == 9: srd, i = 8, 0
            elif u & 1 == 0: srd, i = 8, (u - 10) // 2 + 1
            else: srd, i = 12, (u - 11) // 2
            for j in range(4):
                c = []
                if j == 0:
                    c = [f"s_add_u32 s3, s55, {slot*16384}", "s_mov_b32 m0, s3", f"s_add_u32 s50, s44, {i*16384}"]
                c += [f"buffer_load_dwordx4 v{4+j}, s[{srd}:{srd+3}], s50 offen offset:{j*1024}{NT} lds"]
                push(c)
        else:
            tau = u - 42
            for j in range(4):
                push([f"s_add_u32 s3, s55, {slot*16384 + j*1024}", "s_mov_b32 m0, s3",
                      (f"s_add_u32 s50, s60, {j*9216 + (tau&1)*128*1152 + (tau>>1)*128}" if tau < 8 else f"s_add_u32 s50, s37, {j*9216 + (tau&1)*128*1152}"),
                      f"buffer_load_dwordx4 v222, s[56:59], s50 offen lds"])
        vm.add(f"u{u}", 4)
    def kv_of(v):
        if v == 0: return 8, 0
        if v & 1: return 8, (v - 1) // 2 + 1
        return 12, (v - 2) // 2
    PFQ = int(os.environ.get("PFQ", "0"))
    def touch_static(v):
        if not (PF or PFQ): return
        srd, i = kv_of(v)
        push([f"s_add_u32 s41, s44, {i*16384}", f"buffer_load_dword v23, v221, s[{srd}:{srd+3}], s41 offen"])
        vm.add("pf", 1)
    def touch_dyn(srd, sreg):
        if not PF: return
        push([f"s_add_u32 s41, {sreg}, {(PF//2 - 1)*16384}", f"buffer_load_dword v23, v221, s[{srd}:{srd+3}], s41 offen"])
    def issue_dyn(srd, sreg, slot):
        for j in range(4):
            c = []
            if j == 0:
                c = [f"s_add_u32 s3, s55, {slot*16384}", "s_mov_b32 m0, s3", "s_nop 0"]
            c += [f"buffer_load_dwordx4 v{4+j}, s[{srd}:{srd+3}], {sreg} offen offset:{j*1024}{NT} lds"]
            if j == 3:
                c += [f"s_add_u32 {sreg}, {sreg}, 16384"]
            push(c)
        touch_dyn(srd, sreg)

    def sync(issue, vmwait=("s_waitcnt vmcnt(11)" if PF else "s_waitcnt vmcnt(8)")):
        drain()
        lg.wait_all()
        if callable(vmwait): vmwait()
        else: e(vmwait)
        e("s_barrier")
        if issue: issue()

    fcount = [0]
    def run_stream(mf, fillers, events, LA=6, pre=0):
        n_mm = sum(1 for m in mf if m.get('mm'))
        nxt = pre
        fi = 0
        for n in range(n_mm):
            for ev in events.get(n, []):
                ev()
            while nxt < len(mf) and nxt <= n + LA and mf[nxt].get('gate', 0) <= n:
                m = mf[nxt]
                m['buf'] = FP + 4 * (fcount[0] % NFB); fcount[0] += 1
                m['tag'] = f"f{fcount[0]}"
                m['rd'](m['buf'], m['tag'])
                nxt += 1
            m = mf[n]
            lg.wait(m['tag'])
            m['mm'](m['buf'])
            drain(1)
            k = fillers.get(n, [])
            for f in k:
                e(f)
        for ev in events.get(n_mm, []):
            ev()
        while nxt < len(mf):
            m = mf[nxt]
            m['buf'] = FP + 4 * (fcount[0] % NFB); fcount[0] += 1
            m['tag'] = f"f{fcount[0]}"
            m['rd'](m['buf'], m['tag'])
            nxt += 1
        return [m for m in mf if not m.get('mm')]

    def w_frag(slot, s, db, T, xf):
        def rd(buf, tag):
            for u in range(2):
                e(f"ds_read_b64_tr_b16 {vr(buf+2*u,2)}, v{VA+2*db+u} offset:{slot*16384 + s*4096 + u*1024}")
            lg.add(tag, 2)
        def mm(buf):
            c = "0" if (T == 0 and s == 0) else vr(VO + 16*db, 16)
            e(f"v_mfma_f32_32x32x16_bf16 {vr(VO+16*db,16)}, {vr(buf,4)}, {vr(xf+4*s,4)}, {c}")
        return dict(rd=rd, mm=mm)
    def k_frag(slot, s, kb, S):
        def rd(buf, tag):
            e(f"ds_read_b128 {vr(buf,4)}, v{10+s} offset:{slot*16384 + kb*8192}")
            lg.add(tag, 1)
        def mm(buf):
            c = "0" if s == 0 else vr(S+16*kb, 16)
            e(f"v_mfma_f32_32x32x16_bf16 {vr(S+16*kb,16)}, {vr(buf,4)}, {vr(VQ+4*s,4)}, {c}")
        return dict(rd=rd, mm=mm)
    def v_frag(slot, kb, t, db):
        def rd(buf, tag):
            for u in range(2):
                e(f"ds_read_b64_tr_b16 {vr(buf+2*u,2)}, v{VA+2*db+u} offset:{slot*16384 + kb*8192+t*4096+u*2048}")
            lg.add(tag, 2)
        def mm(buf):
            p = VP + 4*(2*kb + t)
            e(f"v_mfma_f32_32x32x16_bf16 {vr(VO+16*db,16)}, {vr(buf,4)}, {vr(p,4)}, {vr(VO+16*db,16)}")
        return dict(rd=rd, mm=mm)
    def strip(m):
        m2 = dict(m); m2.pop('mm'); return m2
    def carry(pend, full):
        for a, b in zip(pend, full):
            b['buf'] = a['buf']; b['tag'] = a['tag']
        return len(pend)

    stamp(0)
    if STAG:
        e("s_cmp_eq_u32 s53, 0")
        e("s_cbranch_scc1 L_stag0")
        for _ in range(STAG):
            e("s_barrier")
        e("L_stag0:")
    WARM = int(os.environ.get("WARM", "1"))
    e("s_lshr_b32 s61, s2, 3")
    e("s_and_b32 s63, s2, 7")
    e("s_lshr_b32 s63, s63, 1")
    e("s_mov_b32 s32, s28")
    e("s_and_b32 s33, s29, 0xffff")
    e("s_mov_b32 s34, 1179648")
    e("s_mov_b32 s35, 0x20000")
    e("s_mul_i32 s3, s61, 288")
    e("v_add_u32 v220, s3, v221")
    e("v_lshlrev_b32 v220, 7, v220")
    e("v_cmp_gt_u32 vcc, 288, v221")
    e("v_mov_b32 v23, 0x40000000")
    e("s_nop 1")
    e("v_cndmask_b32 v220, v23, v220, vcc")
    e("s_mul_i32 s3, s61, 18")
    e("v_lshrrev_b32 v22, 4, v221")
    e("v_add_u32 v22, s3, v22")
    e("v_lshlrev_b32 v22, 13, v22")
    e("v_and_b32 v206, 15, v221")
    e("v_lshl_add_u32 v22, v206, 7, v22")
    e("s_lshl_b32 s3, s63, 11")
    e("v_add_u32 v22, s3, v22")
    e("v_cndmask_b32 v22, v23, v22, vcc")
    e("v_lshlrev_b32 v221, 6, v0")
    issue_x(0); issue_static(0); issue_x(1); issue_static(1)
    if int(os.environ.get("EK", "0")) == 0: issue_static(9)
    drain()
    if int(os.environ.get("WARMQ", "0")):
        e("buffer_load_dword v207, v220, s[32:35], 0 offen")
        e("buffer_load_dword v206, v22, s[16:19], 0 offen")
        vm.add("warm", 2)
    XFB = [SA, SA + 16]
    def xread(T):
        for s in range(4):
            a = XADDR[T&3]
            if a < 65536:
                e(f"ds_read_b128 {vr(XFB[T&1]+4*s,4)}, v{202+s} offset:{a}")
            else:
                e(f"ds_read_b128 {vr(XFB[T&1]+4*s,4)}, v{208+s} offset:{a-114688}")
        lg.add(f"x{T}", 4)
    def vmw(*tags):
        def f():
            idx = [max([i for i, t in enumerate(vm.ops) if t == tg], default=-1) for tg in tags]
            tg = tags[idx.index(max(idx))]
            if WARM: pass
            vm.wait(tg)
        return f
    sync(None, vmwait=vmw("x0"))
    xread(0)
    ntouch = PF + 4
    tq = list(range(ntouch))
    def touch_some(k):
        for _ in range(k):
            if tq: touch_static(tq.pop(0))
    per = -(-(ntouch - 2) // 8)
    def touch_q(k):
        if PFQ:
            k0 = int(os.environ.get("PFQ0", "1"))
            if k0 <= k < k0 + PFQ: touch_static(k - k0 + 1)
            return
        if not PF: return
        if k <= 7:
            touch_some(max(min(per, len(tq) - 2), 0))
        else:
            touch_some(1)
    sync(lambda: (issue_x(2), issue_static(2), touch_q(0)), vmwait=vmw("u0", "x1"))
    pend = []
    for T in range(9):
        mf = [w_frag(T % 3, s, db, T, XFB[T&1]) for s in range(4) for db in range(4)]
        pre = carry(pend, mf)
        events = {}
        if T < 8:
            events[4] = [lambda T=T: xread(T + 1)]
            def iss(T=T):
                if T + 3 <= 8: issue_x(T + 3)
                if T + 3 <= 8: issue_static(T + 3)
                if T + 1 == int(os.environ.get("EK", "0")): issue_static(9)
                if T + 1 == 7: issue_static(10)
                if T + 1 == 8: issue_static(11)
                touch_q(T + 1)
            tags = (f"u{T+1}", f"x{T+2}") if T + 2 <= 8 else (f"u{T+1}",)
            events[12] = [lambda T=T, iss=iss, tags=tags: sync(iss, vmwait=vmw(*tags))]
            nxtf = [strip(w_frag((T + 1) % 3, 0, db, T + 1, XFB[(T+1)&1])) for db in range(4)]
            for m in nxtf: m['gate'] = 12
            mf += nxtf
        else:
            events[12] = [lambda: sync(lambda: (issue_static(12), touch_q(9)), vmwait=vmw("u9"))]
        if False:
            events.setdefault(13, []).append(lambda T=T: e(f"s_memrealtime s[{64+2*(4+(0,1,2,4,6,8).index(T))}:{65+2*(4+(0,1,2,4,6,8).index(T))}]"))
        pend = run_stream(mf, {}, events, pre=pre, LA=int(os.environ.get('QLA','4')))
    drain()
    stamp(1)
    e("s_nop 15")
    for db in range(4):
        for t in range(2):
            F = VQ + 4 * (2*db + t)
            a = VO + 16*db + 8*t
            for j in range(4):
                e(f"v_cvt_pk_bf16_f32 v{F+j}, v{a+2*j}, v{a+2*j+1}")
    e("s_nop 1")
    for sp in range(8):
        F = VQ + 4*sp
        e(f"v_permlane32_swap_b32 v{F}, v{F+2}")
        e(f"v_permlane32_swap_b32 v{F+1}, v{F+3}")
    for k in range(8):
        db, u = k >> 1, k & 1
        e(f"v_xor_b32 v{VA+k}, {(db<<6)^(u<<5)}, v9")
    e("v_mov_b32 v18, 0xff800000")
    e("v_mov_b32 v21, 0xff800000")
    e("v_mov_b32 v19, 0")
    e("s_add_u32 s43, s44, 16384")
    e("s_add_u32 s42, s44, 49152")
    e("s_mov_b32 s45, 0")

    def max_ops(S):
        ops = []
        for c in range(4):
            b0 = S + 8*c
            ops.append(f"v_max3_f32 v{VT+c}, v{b0}, v{b0+1}, v{b0+2}")
        for c in range(4):
            b0 = S + 8*c
            ops.append(f"v_max3_f32 v{VT+c}, v{VT+c}, v{b0+3}, v{b0+4}")
        for c in range(4):
            b0 = S + 8*c
            ops.append(f"v_max3_f32 v{VT+c}, v{VT+c}, v{b0+5}, v{b0+6}")
        for c in range(4):
            b0 = S + 8*c
            ops.append(f"v_max_f32 v{VT+c}, v{VT+c}, v{b0+7}")
        ops.append(f"v_max3_f32 v{VT}, v{VT}, v{VT+1}, v{VT+2}")
        ops.append(f"v_max_f32 v{VT}, v{VT}, v{VT+3}")
        ops.append(f"v_mov_b32 v{VT+1}, v{VT}")
        ops.append("s_nop 1")
        ops.append(f"v_permlane32_swap_b32 v{VT}, v{VT+1}")
        ops.append(f"v_max_f32 v{VT}, v{VT}, v{VT+1}")
        ops.append(f"v_mul_f32 v{VT+4}, s46, v{VT}")
        ops.append(f"v_cmp_gt_f32 vcc, v{VT+4}, v21")
        return ops
    lab_ctr = [0]
    def rescale_check():
        lab = f"L_nors_{lab_ctr[0]}"; lab_ctr[0] += 1
        e(f"s_cbranch_vccz {lab}")
        e("s_nop 15")
        e(f"v_max_f32 v{VT+5}, v18, v{VT+4}")
        e(f"v_sub_f32 v{VT+6}, v18, v{VT+5}")
        e(f"v_exp_f32 v20, v{VT+6}")
        e(f"v_mov_b32 v18, v{VT+5}")
        e(f"v_add_f32 v21, 0x41000000, v{VT+5}")
        e(f"v_mul_f32 v19, v20, v19")
        for i in range(64):
            e(f"v_mul_f32 v{VO+i}, v20, v{VO+i}")
        e(f"{lab}:")
    def exp_ops(S, kb):
        b0 = S + 16*kb
        acc = [VT+8+2*kb, VT+9+2*kb]
        ops = []
        G = 4
        for gidx in range(6):
            if gidx < 4:
                for k in range(G):
                    i = b0 + G*gidx + k
                    ops.append(f"v_fma_f32 v{i}, v{i}, s46, -v18")
            if 1 <= gidx < 5:
                for k in range(G):
                    i = b0 + G*(gidx-1) + k
                    ops.append(f"v_exp_f32 v{i}, v{i}")
            if 2 <= gidx:
                g2 = gidx - 2
                i = b0 + G*g2
                if g2 == 0:
                    ops.append(f"v_add_f32 v{acc[0]}, v{i}, v{i+1}")
                    ops.append(f"v_add_f32 v{acc[1]}, v{i+2}, v{i+3}")
                else:
                    ops.append(f"v_add_f32 v{acc[0]}, v{acc[0]}, v{i}")
                    ops.append(f"v_add_f32 v{acc[1]}, v{acc[1]}, v{i+2}")
                    ops.append(f"v_add_f32 v{acc[0]}, v{acc[0]}, v{i+1}")
                    ops.append(f"v_add_f32 v{acc[1]}, v{acc[1]}, v{i+3}")
                p = VP + 8*kb + 2*g2
                ops.append(f"v_cvt_pk_bf16_f32 v{p}, v{i}, v{i+1}")
                ops.append(f"v_cvt_pk_bf16_f32 v{p+1}, v{i+2}, v{i+3}")
        ops.append(f"v_add_f32 v{acc[0]}, v{acc[0]}, v{acc[1]}")
        ops.append(f"v_add_f32 v19, v19, v{acc[0]}")
        return ops
    def spread(ops, positions):
        d = {}
        n = len(positions)
        per = len(ops) / n
        for k, op in enumerate(ops):
            p = positions[min(n-1, int(k / per))]
            d.setdefault(p, []).append(op)
        return d

    mf = [k_frag(3, s, kb, SA) for s in range(8) for kb in range(2)]
    zero_ops = [f"v_mov_b32 v{VO+i}, 0" for i in range(64)]
    e("s_nop 1")
    nxtf = [strip(k_frag(0, s, kb, SB)) for s in range(2) for kb in range(2)]
    for m in nxtf: m['gate'] = 12
    events = {12: [lambda: sync(lambda: issue_dyn(12, "s43", 3), vmwait=vmw("u10"))]}
    pend = run_stream(mf + nxtf, spread(zero_ops, list(range(16))), events)
    drain()
    e("s_nop 7")
    e("s_nop 7")
    for op in max_ops(SA):
        e(op)

    def iteration(par, pend, issue_mid, issue_end, doS=True, nextS=True, end_sync=True, wmid=None, wend=None):
        Scur, Snx = (SA, SB) if par == 0 else (SB, SA)
        kslot, vslot, k2slot = (0, 1, 2) if par == 0 else (2, 3, 0)
        rescale_check()
        ex0 = exp_ops(Scur, 0); ex1 = exp_ops(Scur, 1)
        mf = []
        events = {}
        fill = {}
        if doS:
            mf += [k_frag(kslot, s, kb, Snx) for s in range(8) for kb in range(2)]
            pre = carry(pend, mf)
            base = 16
            cut = 24
            fill.update(spread(ex0 + ex1[:cut], list(range(0, 15))))
            events[12] = [lambda: sync(issue_mid, **({'vmwait': wmid} if wmid else {}))]
            vgate = 12
        else:
            pre = 0
            base = 0
            cut = 24
            sync(issue_mid, **({'vmwait': wmid} if wmid else {}))
            vgate = 0
        vf = [v_frag(vslot, kb, t, db) for kb in range(2) for t in range(2) for db in range(4)]
        for m in vf: m['gate'] = vgate
        mf += vf
        if not doS:
            events[0] = [lambda: [e(op) for op in ex0 + ex1[:cut]] and None]
        for p, ops in spread(ex1[cut:], list(range(base, base + 7))).items():
            fill.setdefault(p, []).extend(ops)
        if nextS:
            for p, ops in spread(max_ops(Snx), list(range(base + 8, base + 16))).items():
                fill.setdefault(p, []).extend(ops)
        if end_sync:
            events[base + 12] = [lambda: sync(issue_end, **({'vmwait': wend} if wend else {}))]
        if doS and nextS and end_sync == True:
            nx = [strip(k_frag(k2slot, s, kb, Scur)) for s in range(2) for kb in range(2)]
            for m in nx: m['gate'] = base + 12
            mf += nx
        r = run_stream(mf, fill, events, pre=pre)
        drain()
        return r

    st0 = (len(lg.ops), fcount[0] % NFB, [ (m['buf']) for m in pend])
    e("L_loop:")
    pend = iteration(0, pend, lambda: issue_dyn(8, "s42", 0), lambda: issue_dyn(12, "s43", 1))
    pend = iteration(1, pend, lambda: issue_dyn(8, "s42", 2), lambda: issue_dyn(12, "s43", 3))
    st1 = (len(lg.ops), fcount[0] % NFB, [ (m['buf']) for m in pend])
    assert st0 == st1, (st0, st1)
    assert not dmaq
    e("s_add_u32 s45, s45, 1")
    e("s_cmp_lt_u32 s45, 7")
    e("s_cbranch_scc1 L_loop")
    pfo = ["pf"] if PF else []
    vm.ops = ["v14"]*4 + pfo + ["k16"]*4 + pfo + ["v15"]*4 + pfo
    pend = iteration(0, pend, lambda: issue_static(42), lambda: issue_static(43), end_sync="nok", wmid=vmw("v14"), wend=vmw("k16"))
    drain()
    if WARM:
        e("s_cmp_ge_u32 s51, 5")
        e("s_cbranch_scc1 L_nowarm2")
        e("s_mul_i32 s3, s63, 1179648")
        e("buffer_load_dword v220, v220, s[56:59], s3 offen")
        e("L_nowarm2:")
    pend = iteration(1, pend, lambda: issue_static(44), None, doS=False, nextS=False, end_sync=False, wmid=vmw("v15"))
    drain()
    stamp(2)
    e(f"v_mov_b32 v{VT+1}, v19")
    e("s_nop 1")
    e(f"v_permlane32_swap_b32 v19, v{VT+1}")
    e(f"v_add_f32 v19, v19, v{VT+1}")
    e("v_rcp_f32 v20, v19")
    e("v_lshlrev_b32 v1, 4, v0")
    XS = slot_of(41)*16384
    e("s_lshl_b32 s3, s51, 12")
    e("s_add_u32 s3, s3, 131072")
    e("v_add_u32 v2, s3, v1")
    e(f"s_add_u32 s3, s55, {XS}")
    e("v_add_u32 v3, s3, v1")
    e("s_nop 7")
    for i in range(64):
        e(f"v_mul_f32 v{VO+i}, v20, v{VO+i}")
    OWN = SA
    for db in range(4):
        for t in range(2):
            F = OWN + 4 * (2*db + t)
            a = VO + 16*db + 8*t
            for j in range(4):
                e(f"v_cvt_pk_bf16_f32 v{F+j}, v{a+2*j}, v{a+2*j+1}")
    e("s_nop 1")
    for sp in range(8):
        F = OWN + 4*sp
        e(f"v_permlane32_swap_b32 v{F}, v{F+2}")
        e(f"v_permlane32_swap_b32 v{F+1}, v{F+3}")
    if STAG:
        e("s_cmp_eq_u32 s53, 1")
        e("s_cbranch_scc1 L_stag1")
        for _ in range(STAG):
            e("s_barrier")
        e("L_stag1:")
    e("s_barrier")
    for k in range(4):
        e(f"ds_write_b128 v2, {vr(OWN+4*k,4)} offset:{k*1024}")
        e(f"ds_write_b128 v3, {vr(OWN+16+4*k,4)} offset:{k*1024}")
    e("s_add_u32 s3, s44, 131072")
    e("v_add_u32 v2, s3, v1")
    e(f"s_add_u32 s3, s44, {XS}")
    e("v_add_u32 v3, s3, v1")
    e("v_add_u32 v21, 65536, v3")
    e("s_waitcnt lgkmcnt(0)")
    e("s_barrier")
    H = [VQ, SB]
    for hh in range(2):
        for k in range(4):
            e(f"ds_read_b128 {vr(H[hh]+4*k,4)}, v2 offset:{hh*16384 + k*1024}")
        for k in range(4):
            e(f"ds_read_b128 {vr(H[hh]+16+4*k,4)}, v{3 if hh == 0 else 21} offset:{k*1024}")
        e("s_waitcnt lgkmcnt(0)")
    e("v_xor_b32 v11, 64, v223")
    e("v_mov_b32 v10, v223")
    e("s_lshl_b32 s3, s53, 6")
    e("v_xor_b32 v12, s3, v223")
    PK = SA
    def o_frag(slot, sp, nb, hh, acc):
        def rd(buf, tag):
            for u in range(2):
                e(f"ds_read_b64_tr_b16 {vr(buf+2*u,2)}, v{10+nb} offset:{slot*16384 + sp*2048 + u*512}")
            lg.add(tag, 2)
        def mm(buf):
            a = acc + 16*(nb & 1)
            c = "0" if (hh == 0 and sp == 0) else vr(a, 16)
            e(f"v_mfma_f32_32x32x16_bf16 {vr(a,16)}, {vr(buf,4)}, {vr(H[hh]+4*sp,4)}, {c}")
        return dict(rd=rd, mm=mm)
    def store_ops(ntl):
        acc = VO + 32 * (ntl & 1)
        def f():
            drain()
            nbs = range(2) if ntl < 4 else range(1)
            for nb in nbs:
                for j in range(8):
                    e(f"v_cvt_pk_bf16_f32 v{PK+8*nb+j}, v{acc+16*nb+2*j}, v{acc+16*nb+2*j+1}")
            if ntl < 4:
                e(f"s_mul_i32 s61, s53, 20480")
                e(f"s_add_u32 s61, s61, {ntl*4096}")
            else:
                e(f"s_lshl_b32 s61, s53, 11")
                e(f"s_add_u32 s61, s61, 16384")
            for nb in nbs:
                for tt in range(2):
                    e(f"buffer_store_dwordx4 {vr(PK+8*nb+4*tt,4)}, v1, s[24:27], s61 offen offset:{nb*2048 + tt*1024}{STF}")
                    vm.add("st", 1)
        return f
    def osync(tau):
        def iss():
            if tau + 3 < 10:
                issue_static(42 + tau + 3)
        sync(iss, vmwait=lambda: vm.wait(f"u{42+tau}"))
    if DIAG and os.environ.get("TAILST"): stamp(4)
    osync(0)
    if DIAG and os.environ.get("TAILST"): stamp(5)
    pend = []
    for tau in range(10):
        slot = slot_of(42 + tau)
        ntl = tau >> 1; hh = tau & 1
        acc = VO + 32 * (ntl & 1)
        def frs(tau):
            return [(sp, nb) for sp in range(8) for nb in range(2)] if tau < 8 else [(sp, 2) for sp in range(8)]
        mf = [o_frag(slot, sp, nb, hh, acc) for sp, nb in frs(tau)]
        nm = len(mf)
        pre = carry(pend, mf)
        events = {}
        if hh == 0 and ntl > 0:
            events[6 if nm == 16 else 3] = [store_ops(ntl - 1)]
        if tau < 9:
            events[nm - 4] = [lambda tau=tau: osync(tau + 1)]
            nx = [strip(o_frag(slot_of(43 + tau), sp, nb, 0, 0)) for sp, nb in frs(tau + 1)[:4]]
            for m in nx: m['gate'] = nm - 4
            mf += nx
        if DIAG and os.environ.get("TAILST") and tau in (2, 5, 8):
            events.setdefault(13, []).append(lambda tau=tau: e(f"s_memrealtime s[{64+2*(6+(2,5,8).index(tau))}:{65+2*(6+(2,5,8).index(tau))}]"))
        pend = run_stream(mf, {}, events, pre=pre)
    e("s_nop 15")
    store_ops(4)()
    if DIAG and os.environ.get("TAILST"): stamp(9)
    e("s_waitcnt vmcnt(0)")
    stamp(3)
    stamp_flush(4, 67108864)
    e("L_attn_done:")
    e("s_endpgm")

def gen_reduce():
    e(".globl reduce_kernel")
    e(".p2align 8")
    e(".type reduce_kernel,@function")
    e("reduce_kernel:")
    e("s_cmp_ge_u32 s2, 576")
    e("s_cbranch_scc1 L_rd_done")
    e("s_load_dwordx2 s[38:39], s[0:1], 96")
    e("s_load_dwordx2 s[36:37], s[0:1], 80")
    e("v_lshrrev_b32 v1, 6, v0")
    e("v_and_b32 v0, 63, v0")
    e("s_nop 0")
    e("v_readfirstlane_b32 s7, v1")
    e("s_nop 3")
    e("s_lshl_b32 s3, s2, 2")
    e("s_add_u32 s3, s3, s7")
    e("s_mul_i32 s4, s3, 58255")
    e("s_lshr_b32 s4, s4, 23")
    e("s_mul_i32 s5, s4, 144")
    e("s_sub_u32 s5, s3, s5")
    e("s_mul_i32 s6, s5, 1821")
    e("s_lshr_b32 s6, s6, 16")
    e("s_mul_i32 s8, s6, 36")
    e("s_sub_u32 s8, s5, s8")
    e("v_lshlrev_b32 v1, 4, v0")
    e("s_waitcnt lgkmcnt(0)")
    e("s_mul_i32 s9, s4, 2359296")
    e("s_lshl_b32 s10, s5, 10")
    e("s_add_u32 s9, s9, s10")
    e("s_add_u32 s12, s38, s9")
    e("s_addc_u32 s13, s39, 0")
    e("s_and_b32 s13, s13, 0xffff")
    e("s_mov_b32 s14, 2359296")
    e("s_mov_b32 s15, 0x20000")
    e("s_mov_b32 s16, s36")
    e("s_and_b32 s17, s37, 0xffff")
    e("s_mov_b32 s18, 2359296")
    e("s_mov_b32 s19, 0x20000")
    for p in range(16):
        e(f"s_mov_b32 s20, {p*147456}")
        e(f"buffer_load_dwordx4 {vr(8+4*p,4)}, v1, s[12:15], s20 offen{RLF}")
    e("s_and_b32 s9, s4, 7")
    e("s_lshr_b32 s10, s4, 3")
    e("s_lshl_b32 s9, s9, 7")
    e("s_lshl_b32 s11, s6, 5")
    e("s_add_u32 s9, s9, s11")
    e("v_and_b32 v2, 31, v0")
    e("v_add_u32 v2, s9, v2")
    e("v_mul_u32_u24 v2, 2304, v2")
    e("v_lshrrev_b32 v3, 5, v0")
    e("v_lshl_add_u32 v2, v3, 4, v2")
    e("s_mul_i32 s10, s10, 1152")
    e("s_lshl_b32 s11, s8, 5")
    e("s_add_u32 s10, s10, s11")
    e("v_add_u32 v2, s10, v2")
    A = 80
    for p in range(16):
        e(f"s_waitcnt vmcnt({15-p})")
        for k in range(4):
            src = 8 + 4*p + k
            if p == 0:
                e(f"v_lshlrev_b32 v{A+2*k}, 16, v{src}")
                e(f"v_and_b32 v{A+2*k+1}, 0xffff0000, v{src}")
            else:
                e(f"v_lshlrev_b32 v{A+8+2*k}, 16, v{src}")
                e(f"v_and_b32 v{A+8+2*k+1}, 0xffff0000, v{src}")
        if p > 0:
            for k in range(8):
                e(f"v_add_f32 v{A+k}, v{A+k}, v{A+8+k}")
    for k in range(4):
        e(f"v_cvt_pk_bf16_f32 v{4+k}, v{A+2*k}, v{A+2*k+1}")
    e("s_nop 1")
    e("v_permlane32_swap_b32 v4, v6")
    e("v_permlane32_swap_b32 v5, v7")
    e("buffer_store_dwordx4 v[4:7], v2, s[16:19], 0 offen")
    e("s_waitcnt vmcnt(0)")
    e("L_rd_done:")
    e("s_endpgm")

def desc(name, vgpr, accum, sgpr=(100 if DIAG else 64)):
    e(f".amdhsa_kernel {name}")
    e(f"  .amdhsa_next_free_vgpr {vgpr}")
    e(f"  .amdhsa_next_free_sgpr {sgpr}")
    e(f"  .amdhsa_accum_offset {accum}")
    e("  .amdhsa_group_segment_fixed_size 0")
    e("  .amdhsa_kernarg_size 104")
    e("  .amdhsa_user_sgpr_count 2")
    e("  .amdhsa_user_sgpr_kernarg_segment_ptr 1")
    e("  .amdhsa_system_sgpr_workgroup_id_x 1")
    e(".end_amdhsa_kernel")

gen_attn()
gen_reduce()
e('.section .rodata,"a"')
e(".p2align 6")
desc("attn_kernel", 256, 256)
e(".p2align 6")
desc("reduce_kernel", 96, 96)

with open(sys.argv[1] if len(sys.argv) > 1 else OUT, "w") as f:
    f.write(HEADER + "\n".join(L) + "\n")
```
